```python
import torch

def _softmax(x, axis=-1):
    return torch.softmax(x, dim=axis)
def _gelu(x):
    return torch.nn.functional.gelu(x, approximate="tanh")
def _silu(x):
    return torch.nn.functional.silu(x)
def _sigmoid(x):
    return torch.sigmoid(x)
def _layernorm(x, axis=-1, eps=1e-5):
    m = x.mean(dim=axis, keepdim=True)
    v = x.var(dim=axis, keepdim=True, unbiased=False)
    return (x - m) / torch.sqrt(v + eps)
def _scatter_add(tgt, idx, src, axis=0):
    return tgt.clone().index_add_(axis, idx, src)
def _segment_sum(src, seg, n):
    out = torch.zeros((n,) + src.shape[1:], dtype=src.dtype)
    return out.index_add_(0, seg, src)
def _pad(x, pw):
    flat = tuple(v for pair in reversed(pw) for v in pair)
    return torch.nn.functional.pad(x, flat)

kernel_name = 'interleave_layers__grouped_kv_mqa__mixer_channel_mlp__prompt'

def setup_inputs():

    _w = (lambda a: (lambda t: t.to(torch.bfloat16) if t.is_floating_point() else t)(torch.as_tensor(a)))
    def _A_setup():
        B, S, D, H = 1, 2048, 1024, 32
        Dh = D // H
        return {
            "x": _w((lambda *s: torch.randn(*s, dtype=torch.bfloat16) * 0.05)(B, S, D)),
            "wq": _w((lambda *s: torch.randn(*s, dtype=torch.bfloat16) * 0.05)(D, H * Dh)),
            "wk": _w((lambda *s: torch.randn(*s, dtype=torch.bfloat16) * 0.05)(D, Dh)),
            "wv": _w((lambda *s: torch.randn(*s, dtype=torch.bfloat16) * 0.05)(D, Dh)),
            "wo": _w((lambda *s: torch.randn(*s, dtype=torch.bfloat16) * 0.05)(H * Dh, D)),
        }
    _A_in = _A_setup()

    def _B_setup():
        B, S, D, F = 1, 2048, 1024, 3584
        return {
            "x": _w((lambda *s: torch.randn(*s, dtype=torch.bfloat16) * 0.05)(B, S, D)),
            "w1": _w((lambda *s: torch.randn(*s, dtype=torch.bfloat16) * 3.2)(D, F) * (D ** -0.5)),
            "b1": _w((lambda *s: torch.randn(*s, dtype=torch.bfloat16) * 1.6)(F)),
            "w2": _w((lambda *s: torch.randn(*s, dtype=torch.bfloat16) * 0.8)(F, D) * (F ** -0.5)),
            "b2": _w((lambda *s: torch.randn(*s, dtype=torch.bfloat16) * 0.8)(D)),
        }
    _B_in = _B_setup()

    return {
        "A_x": _A_in["x"],
        "A_wq": _A_in["wq"],
        "A_wk": _A_in["wk"],
        "A_wv": _A_in["wv"],
        "A_wo": _A_in["wo"],
        "B_x": _B_in["x"],
        "B_w1": _B_in["w1"],
        "B_b1": _B_in["b1"],
        "B_w2": _B_in["w2"],
        "B_b2": _B_in["b2"],
    }

def reference(A_x, A_wq, A_wk, A_wv, A_wo, B_x, B_w1, B_b1, B_w2, B_b2):
    def _A_ref(x, wq, wk, wv, wo):
        B, S, D = x.shape
        H = 32
        Dh = D // H
        q = (lambda x, *d: x.permute(*d))((x @ wq).reshape(B, S, H, Dh), 0, 2, 1, 3)
        k = x @ wk
        v = x @ wv
        scores = torch.einsum("bhqd,bkd->bhqk", q, k) * (Dh ** -0.5)
        p = _softmax(scores, axis=-1)
        o = torch.einsum("bhqk,bkd->bhqd", p, v)
        return (lambda x, *d: x.permute(*d))(o, 0, 2, 1, 3).reshape(B, S, H * Dh) @ wo

    def _B_ref(x, w1, b1, w2, b2):
        y = _layernorm(x, axis=-1)
        h = _gelu(torch.einsum("bsd,df->bsf", y, w1) + b1)
        return torch.einsum("bsf,fd->bsd", h, w2) + b2

    x = A_x
    x = x + _A_ref(_layernorm(x, axis=-1), A_wq, A_wk, A_wv, A_wo)
    x = x + _B_ref(_layernorm(x, axis=-1), B_w1, B_b1, B_w2, B_b2)
    x = x + _A_ref(_layernorm(x, axis=-1), A_wq, A_wk, A_wv, A_wo)
    x = x + _B_ref(_layernorm(x, axis=-1), B_w1, B_b1, B_w2, B_b2)
    return x
```

```python
import re

TRANS = ("v_exp_f32", "v_log_f32", "v_rcp_f32", "v_rsq_f32", "v_sqrt_f32", "v_sin_f32", "v_cos_f32")


def v(n, k=1):
    return f"v{n}" if k == 1 else f"v[{n}:{n+k-1}]"


def a(n, k=1):
    return f"a{n}" if k == 1 else f"a[{n}:{n+k-1}]"


def s(n, k=1):
    return f"s{n}" if k == 1 else f"s[{n}:{n+k-1}]"


def regs(op):
    op = op.strip()
    op = op.lstrip("-")
    m = re.fullmatch(r"abs\((.*)\)", op) or re.fullmatch(r"\|(.*)\|", op)
    if m:
        op = m.group(1)
    m = re.fullmatch(r"([vas])(\d+)", op)
    if m:
        return {(m.group(1), int(m.group(2)))}
    m = re.fullmatch(r"([vas])\[(\d+):(\d+)\]", op)
    if m:
        return {(m.group(1), i) for i in range(int(m.group(2)), int(m.group(3)) + 1)}
    if op == "vcc":
        return {("s", "vcc")}
    if op == "m0":
        return {("s", "m0")}
    if op == "exec":
        return {("s", "exec")}
    return set()


class Ins:
    def __init__(self, text):
        self.text = text
        t = text.split(";")[0].strip()
        self.label = t.endswith(":")
        self.directive = t.startswith(".") and not self.label
        self.empty = not t
        self.kind = None
        self.w = set()
        self.r = set()
        self.states = 0
        if self.label or self.directive or self.empty:
            return
        parts = t.split(None, 1)
        op = self.op = parts[0]
        rest = parts[1] if len(parts) > 1 else ""
        ops = [x.strip() for x in rest.split(",")] if rest else []
        mods = ""
        if ops:
            last = ops[-1].split(None, 1)
            ops[-1] = last[0]
            mods = last[1] if len(last) > 1 else ""
        self.states = 1
        R = [regs(o) for o in ops]
        U = lambda l: set().union(*l) if l else set()
        if op == "s_nop":
            self.kind = "nop"
            self.states = int(ops[0], 0) + 1
        elif op.startswith("v_mfma") or op.startswith("v_smfmac"):
            self.kind = "mfma"
            self.passes = 8 if "32x32" in op else 4
            self.w = R[0]
            if op.startswith("v_smfmac"):
                self.ab = R[1] | R[2] | R[3]
                self.c = R[0]
            else:
                self.ab = R[1] | R[2]
                self.c = R[3]
            self.r = self.ab | self.c
        elif op.startswith("v_"):
            self.kind = "valu"
            self.trans = op.startswith(TRANS)
            self.dot = op.startswith("v_dot")
            self.perm = op.startswith("v_permlane")
            self.rdlane = op.startswith("v_readfirstlane") or op.startswith("v_readlane")
            if self.perm:
                self.w = R[0] | R[1]
                self.r = R[0] | R[1]
            elif "_co_" in op:
                self.w = R[0] | R[1]
                self.r = U(R[2:])
            else:
                self.w = R[0]
                self.r = U(R[1:])
                if op.startswith(("v_fmac", "v_dot2c", "v_writelane")):
                    self.r |= R[0]
            if self.dot:
                self.dotc = R[3] if len(R) > 3 else R[0]
        elif op.startswith("ds_"):
            self.kind = "ds"
            if op.startswith("ds_read") or op.startswith("ds_bpermute"):
                self.w = R[0]
                self.r = U(R[1:])
            else:
                self.r = U(R)
        elif op.startswith(("buffer_", "global_")):
            self.kind = "vmem"
            self.dma = " lds" in (" " + mods) or "load_lds" in op
            self.wide_store = False
            if self.dma:
                self.r = U(R) | {("s", "m0")}
            elif "_load" in op:
                self.w = R[0]
                self.r = U(R[1:])
            elif "_store" in op:
                self.r = U(R)
                data = R[0] if op.startswith("buffer_") else R[1]
                if op.endswith(("x3", "x4")):
                    self.wide_store = True
                    self.data = data
            else:
                self.r = U(R)
        elif op.startswith("s_"):
            self.kind = "salu"
            if op.startswith(("s_cmp", "s_waitcnt", "s_barrier", "s_cbranch", "s_branch", "s_endpgm", "s_bitcmp", "s_setprio", "s_sleep")):
                self.r = U(R)
            else:
                self.w = R[0] if R else set()
                self.r = U(R[1:])
        else:
            raise ValueError("unknown instruction: " + text)


def need(p, c):
    n = 0
    if p.kind == "valu":
        wv = {x for x in p.w if x[0] in "va"}
        ws = {x for x in p.w if x[0] == "s"}
        if c.kind == "mfma" and wv & c.r:
            n = max(n, 3 if p.dot else 2)
        if c.kind == "valu":
            if p.trans and not c.trans and wv & c.r:
                n = max(n, 1)
            if c.perm and wv & c.r:
                n = max(n, 2)
            if c.rdlane and wv & c.r:
                n = max(n, 1)
            if ws & c.r:
                n = max(n, 4 if (c.rdlane or c.op.startswith("v_writelane")) else 2)
            if p.dot:
                if c.dot and c.op == p.op:
                    if wv & (c.r - c.dotc):
                        n = max(n, 3)
                elif wv & (c.r | c.w):
                    n = max(n, 3)
        if c.kind in ("vmem", "ds"):
            if ws & c.r:
                n = max(n, 5)
            if p.dot and wv & c.r:
                n = max(n, 3)
            if p.trans and wv & c.r:
                n = max(n, 1)
        if c.kind == "salu" and ws & c.r:
            n = max(n, 1)
    elif p.kind == "mfma":
        big = 12 if p.passes == 8 else 8
        if c.kind in ("valu", "vmem", "ds") and p.w & (c.r | c.w):
            n = max(n, big)
        if c.kind == "mfma":
            if p.w & c.ab:
                n = max(n, big)
            if p.w & c.c and not (p.w == c.c and p.op == c.op):
                n = max(n, big - 2)
            if p.w & c.w and not (p.w & c.c) and p.passes > c.passes:
                n = max(n, big)
        if c.kind == "valu" and p.c & c.w:
            n = max(n, 7 if p.passes == 8 else 3)
    elif p.kind == "vmem":
        if p.wide_store and p.data & c.w:
            n = max(n, 2 if c.kind == "valu" else 1)
    elif p.kind == "salu":
        if ("s", "m0") in p.w and c.kind == "vmem" and c.dma:
            n = max(n, 1)
    return n


def pad(ins_list, prefix=()):
    out = list(prefix)
    added = 0
    for c in ins_list:
        if c.kind is not None:
            dist = 0
            short = 0
            for p in reversed(out):
                if dist >= 12:
                    break
                if p.kind is not None:
                    short = max(short, need(p, c) - dist)
                    dist += p.states
            if short > 0:
                out.append(Ins(f"s_nop {short-1}"))
                added += 1
        out.append(c)
    return out[len(prefix):], added


class Prog:
    def __init__(self):
        self.ins = []
        self.vmq = []
        self.lgq = []
        self.nlabel = 0

    def __call__(self, text):
        for line in text.split("\n"):
            if line.strip():
                self.ins.append(Ins(line.strip()))

    def comment(self, text):
        self.ins.append(Ins("; " + text))

    def newlabel(self, base):
        self.nlabel += 1
        return f"L_{base}_{self.nlabel}"

    def vm(self, text, tag=None):
        self(text)
        self.vmq.append(tag)

    def lg(self, text, tag=None):
        self(text)
        self.lgq.append(tag)

    @staticmethod
    def _count(q, tags):
        idx = [i for i, t in enumerate(q) if t in tags]
        if not idx:
            return None
        return len(q) - 1 - max(idx)

    def wait(self, vm=None, lg=None):
        tags = lambda x: x if isinstance(x, list) else ([] if x is None else [x])
        vm, lg = tags(vm), tags(lg)
        parts = []
        n = self._count(self.vmq, list(vm))
        if n is not None:
            n = min(n, 63)
            parts.append(f"vmcnt({n})")
            self.vmq = self.vmq[len(self.vmq) - n:] if n else []
        n = self._count(self.lgq, list(lg))
        if n is not None:
            n = min(n, 15)
            parts.append(f"lgkmcnt({n})")
            self.lgq = self.lgq[len(self.lgq) - n:] if n else []
        if parts:
            self("s_waitcnt " + " ".join(parts))
        return bool(parts)

    def wait_all(self, vm=True, lg=True):
        parts = []
        if vm:
            parts.append("vmcnt(0)")
            self.vmq = []
        if lg:
            parts.append("lgkmcnt(0)")
            self.lgq = []
        self("s_waitcnt " + " ".join(parts))

    def check_backedges(self, ins):
        labels = {i.text.split(":")[0].strip(): n for n, i in enumerate(ins) if i.label}
        bad = []
        for n, i in enumerate(ins):
            if i.kind == "salu" and i.op.startswith(("s_cbranch", "s_branch")):
                tgt = i.text.split(";")[0].split()[1]
                if tgt in labels:
                    pre = ins[max(0, n - 40):n + 1]
                    post = ins[labels[tgt]:labels[tgt] + 40]
                    _, added = pad(post, pre)
                    if added:
                        bad.append(i.text)
        return bad

    def finish(self):
        ins, added = pad(self.ins)
        bad = self.check_backedges(ins)
        assert not bad, f"wait-state violation across branches: {bad}"
        lines = []
        for i in ins:
            lines.append(i.text if (i.label or i.directive) else "    " + i.text)
        return "\n".join(lines) + "\n", added
```

```python
import math, struct, sys
from dsl import Prog, v, a, s

NAME = "interleave_layers__grouped_kv_mqa__mixer_channel_mlp__prompt_kernel"
REF = "interleave_layers__grouped_kv_mqa__mixer_channel_mlp__prompt.s.ref"

MB = 1 << 20
CTR = 0
CTR_BYTES = 36864
CT_TEAM = 32768
CT_REP = 32768 + 2048
CS = 0x10000
STAMP = 0x40000
WP = 1 * MB
LAYER0 = 16 * MB
LSTRIDE = 48 * MB
XP = 0
OP = 4 * MB
X1P = 8 * MB
PART = 12 * MB
HP = 20 * MB
KV = 36 * MB
STX = 37 * MB
ST1 = 38 * MB
WS_BYTES = 256 * MB
OOB = 0x40000000

RING = 131072
KVR = RING + 16384
CSQ = RING + 24576

WS, X0, WQ, WKV, WO, PKS, B1, B2, OUT, DBG, CODE = 4, 8, 12, 16, 20, 24, 28, 32, 36, 40, 44
sW, sTAU, sJJ, sKH, sJ, sFS, sTT, sL, sLB, sPD, sTO, sCO = range(48, 60)
T = list(range(60, 68))
ARR = 68
sTRIP, sXK, sDS, sDL, sSA, sSB, sKS, sCT, sONE, sPUB, sSTO, sCSO, sW4K, sPD2 = range(84, 98)
sTM = 98

vLANE, vL16, vL4, vTRA, vTRB, vDS2K, vSTAMP, vTMP = range(8)
A = list(range(8, 16))
R = 16
PK = 48


def f32(x):
    return "0x%08x" % struct.unpack("<I", struct.pack("<f", x))[0]


def srd(n):
    return s(n, 4)


class Gen:
    def __init__(self, stop=None, stamps=False, force_fallback=False, **kw):
        self.P = Prog()
        self.stop = stop
        self.stamps = stamps
        self.force_fallback = force_fallback
        self.o = dict(LA=10, NB=48, rate=0.42, D=22, DSL=5, npre=8, budget=20, span=2)
        self.o.update(kw)

    def stamp(self, i):
        if not self.stamps:
            return
        P = self.P
        P(f"s_memrealtime {s(sTM,2)}")
        P(f"s_mov_b32 {s(sTM+3)}, m0")
        P(f"s_lshl_b32 {s(sTM+2)}, {s(sL)}, 4")
        P(f"s_add_u32 m0, {s(sTM+2)}, {i}")
        P.wait_all(vm=False)
        P(f"v_writelane_b32 {v(vSTAMP)}, {s(sTM)}, m0")
        P(f"s_mov_b32 m0, {s(sTM+3)}")

    def maybe_stop(self, name):
        if self.stop and self.stop[0] == name:
            self.P(f"s_cmp_eq_u32 {s(sL)}, {self.stop[1]}")
            self.P("s_cbranch_scc1 L_fin")

    def arrive(self, off_sgpr, imm):
        self.P(f"s_atomic_add {s(sONE)}, {s(WS,2)}, {s(off_sgpr)} offset:{imm}")

    def poll_issue(self, off_sgpr, imm, dst=sPD):
        self.P(f"s_mov_b32 {s(dst)}, 0")
        self.P(f"s_atomic_add {s(dst)}, {s(WS,2)}, {s(off_sgpr)} offset:{imm} glc")

    def poll_check(self, off_sgpr, imm, target, dst=sPD):
        P = self.P
        top, done = P.newlabel("poll"), P.newlabel("polled")
        P(f"s_mov_b32 {s(sTO)}, 0")
        P(f"{top}:")
        P.wait_all(vm=False)
        P(f"s_cmp_ge_u32 {s(dst)}, {target}")
        P(f"s_cbranch_scc1 {done}")
        P(f"s_add_u32 {s(sTO)}, {s(sTO)}, 1")
        P(f"s_cmp_ge_u32 {s(sTO)}, 0x20000")
        P(f"s_cbranch_scc1 {done}")
        self.poll_issue(off_sgpr, imm, dst)
        P(f"s_branch {top}")
        P(f"{done}:")

    def two_level_issue(self, word):
        P = self.P
        skip = P.newlabel("tl")
        P(f"s_mov_b32 {s(sPD2)}, 1")
        P(f"s_cmp_lg_u32 {s(sW)}, 0")
        P(f"s_cbranch_scc1 {skip}")
        P(f"s_atomic_add {s(sPD2)}, {s(WS,2)}, {s(sCT)} offset:{CT_TEAM + word} glc")
        P(f"{skip}:")

    def two_level_finish(self, word):
        P = self.P
        skip = P.newlabel("tl")
        P.wait_all(vm=False)
        P(f"s_cmp_lg_u32 {s(sPD2)}, 15")
        P(f"s_cbranch_scc1 {skip}")
        P(f"s_lshl_b32 {s(T[7])}, {s(sL)}, 2")
        for t in range(16):
            P(f"s_atomic_add {s(sONE)}, {s(WS,2)}, {s(T[7])} offset:{CT_REP + 128*t + word}")
        P(f"{skip}:")

    def stats_and_store(self, so_pk, so_st):
        P = self.P
        for i in range(4):
            P.vm(f"buffer_store_dwordx4 {v(PK+4*i,4)}, {v(vL16)}, {srd(WS)}, {s(so_pk)} offen offset:{1024*i} sc1", "pub")
        t0 = 64
        P(f"s_mov_b32 {s(T[6])}, 0x3f803f80")
        for i in range(16):
            c1 = "0" if i < 2 else v(t0 + (i & 1))
            c2 = "0" if i < 2 else v(t0 + 2 + (i & 1))
            P(f"v_dot2_f32_bf16 {v(t0+(i&1))}, {v(PK+i)}, {s(T[6])}, {c1}")
            P(f"v_dot2_f32_bf16 {v(t0+2+(i&1))}, {v(PK+i)}, {v(PK+i)}, {c2}")
        P(f"v_add_f32 {v(t0)}, {v(t0)}, {v(t0+1)}")
        P(f"v_add_f32 {v(t0+2)}, {v(t0+2)}, {v(t0+3)}")
        P(f"v_permlane32_swap_b32 {v(t0)}, {v(t0+2)}")
        P(f"v_add_f32 {v(t0)}, {v(t0)}, {v(t0+2)}")
        P.vm(f"buffer_store_dword {v(t0)}, {v(vL4)}, {srd(WS)}, {s(so_st)} offen sc1", "pub")

    def unpack_list(self, dst, src, n):
        out = []
        for i in range(n):
            out.append(f"v_lshlrev_b32 {v(dst+2*i)}, 16, {v(src+i)}")
            out.append(f"v_and_b32 {v(dst+2*i+1)}, 0xffff0000, {v(src+i)}")
        return out

    def pack_R(self):
        for i in range(16):
            self.P(f"v_cvt_pk_bf16_f32 {v(PK+i)}, {v(R+2*i)}, {v(R+2*i+1)}")

    def pub_offsets(self, xbuf, stbuf, lb=sLB):
        P = self.P
        P(f"s_lshl_b32 {s(sPUB)}, {s(sTT)}, 16")
        P(f"s_lshl_b32 {s(T[0])}, {s(sFS)}, 12")
        P(f"s_add_u32 {s(sPUB)}, {s(sPUB)}, {s(T[0])}")
        P(f"s_lshr_b32 {s(sSTO)}, {s(sPUB)}, 4")
        P(f"s_add_u32 {s(sPUB)}, {s(sPUB)}, {s(lb)}")
        P(f"s_add_u32 {s(sSTO)}, {s(sSTO)}, {s(lb)}")
        if xbuf:
            P(f"s_add_u32 {s(sPUB)}, {s(sPUB)}, {xbuf}")
        if stbuf is not None:
            P(f"s_add_u32 {s(sSTO)}, {s(sSTO)}, {stbuf}")

    def stat_sum_list(self, st):
        o = []
        for step in (8, 4, 2, 1):
            for i in range(step):
                o.append(f"v_add_f32 {v(st+i)}, {v(st+i)}, {v(st+i+step)}")
        o.append(f"v_mul_f32 {v(st)}, {f32(1/1024)}, {v(st)}")
        o.append(f"v_mov_b32 {v(st+1)}, {v(st)}")
        o.append(f"v_permlane32_swap_b32 {v(st)}, {v(st+1)}")
        o.append(f"v_fma_f32 {v(st+1)}, -{v(st)}, {v(st)}, {v(st+1)}")
        o.append(f"v_max_f32 {v(st+1)}, 0, {v(st+1)}")
        return o

    def stat_frag_list(self, ex, mean, sd, tmp):
        o = []
        sdv = v(sd) if sd is not None else "0"
        o.append(f"v_cvt_pk_bf16_f32 {v(ex+1)}, -{v(mean)}, {sdv}")
        o.append(f"v_lshlrev_b32 {v(tmp)}, 16, {v(ex+1)}")
        o.append(f"v_add_f32 {v(tmp)}, {v(tmp)}, {v(mean)}")
        o.append(f"v_cvt_pk_bf16_f32 {v(ex)}, -{v(mean)}, -{v(tmp)}")
        if sd is not None:
            o.append(f"v_and_b32 {v(tmp)}, 0xffff0000, {v(ex+1)}")
            o.append(f"v_sub_f32 {v(tmp)}, {v(sd)}, {v(tmp)}")
            o.append(f"v_cvt_pk_bf16_f32 {v(ex+2)}, {v(tmp)}, 0")
        else:
            o.append(f"v_mov_b32 {v(ex+2)}, 0")
        o.append(f"v_mov_b32 {v(ex+3)}, 0")
        return o

    def cs_frag_list(self, ex, cs, b, tmp):
        o = []
        bv = v(b) if b is not None else "0"
        o.append(f"v_cvt_pk_bf16_f32 {v(ex)}, {v(cs)}, {v(cs)}")
        o.append(f"v_and_b32 {v(tmp)}, 0xffff0000, {v(ex)}")
        o.append(f"v_sub_f32 {v(tmp)}, {v(cs)}, {v(tmp)}")
        o.append(f"v_cvt_pk_bf16_f32 {v(ex+1)}, {v(tmp)}, {bv}")
        if b is not None:
            o.append(f"v_lshrrev_b32 {v(ex+2)}, 16, {v(b)}")
        else:
            o.append(f"v_mov_b32 {v(ex+2)}, 0")
        o.append(f"v_mov_b32 {v(ex+3)}, 0")
        return o

    def wimg_setup(self, half):
        P = self.P
        P(f"s_lshl_b32 {s(sDL)}, {s(sTAU)}, 10")
        P(f"s_lshl_b32 {s(T[0])}, {s(sW)}, 1")
        P(f"s_add_u32 {s(T[0])}, {s(T[0])}, {half}")
        P(f"s_lshl_b32 {s(sSB)}, {s(T[0])}, 14")
        P(f"s_add_u32 {s(T[0])}, {s(T[0])}, {s(sJJ)}")
        P(f"s_and_b32 {s(T[0])}, {s(T[0])}, 7")
        P(f"s_lshl_b32 {s(sSA)}, {s(T[0])}, 18")
        P(f"s_lshl_b32 {s(T[0])}, {s(sFS)}, 7")
        P(f"s_add_u32 {s(sSA)}, {s(sSA)}, {s(T[0])}")

    def wimg_dma(self, rs, tag):
        P = self.P
        P(f"s_add_u32 m0, {s(sSB)}, {s(sDL)}")
        P(f"s_lshl4_add_u32 {s(sDS)}, {s(sDL)}, {s(sSA)}")
        P.vm(f"buffer_load_dwordx4 {v(vDS2K)}, {srd(rs)}, {s(sDS)} offen lds", tag)
        P(f"s_add_u32 {s(sDL)}, {s(sDL)}, 1024")
        P(f"s_and_b32 {s(sDL)}, {s(sDL)}, 0x3fff")

    def wkv_dma(self, n0, n1):
        P = self.P
        for g in range(n0 // 4, n1 // 4):
            P(f"s_add_u32 {s(T[0])}, {s(sTAU)}, {g}")
            P(f"s_and_b32 {s(T[0])}, {s(T[0])}, 3")
            P(f"s_lshl_b32 {s(T[0])}, {s(T[0])}, 12")
            P(f"s_lshl_b32 {s(T[1])}, {s(sW)}, 14")
            P(f"s_add_u32 {s(T[2])}, {s(T[1])}, {s(T[0])}")
            P(f"s_add_u32 {s(T[1])}, {s(T[2])}, {s(T[1])}")
            P(f"s_add_u32 m0, {s(T[1])}, 16384")
            for i in range(4):
                P.vm(f"buffer_load_dwordx4 {v(vL16)}, {srd(WKV)}, {s(T[2])} offen offset:{1024*i} lds", "wkv")

    def prologue(self):
        P = self.P
        P("s_cmp_ge_u32 s2, 256")
        P("s_cbranch_scc1 L_end")
        for reg, off in ((WS, 96), (X0, 0), (WQ, 8), (WO, 32), (T[4], 48), (B1, 56), (T[6], 64), (B2, 72), (OUT, 80), (DBG, 88)):
            P(f"s_load_dwordx2 {s(reg,2)}, s[0:1], {off}")
        P(f"s_load_dwordx4 {s(T[0],4)}, s[0:1], 16")
        P(f"v_lshrrev_b32 {v(vTMP)}, 6, v0")
        P(f"v_and_b32 {v(vLANE)}, 63, v0")
        P(f"v_readfirstlane_b32 {s(sW)}, {v(vTMP)}")
        for reg, n in ((WS, WS_BYTES), (X0, 4 * MB), (WQ, 2 * MB), (WKV, 65536), (WO, 2 * MB), (PKS, 7 * MB), (B1, 7168), (B2, 2048), (OUT, 4 * MB), (DBG, 256)):
            P(f"s_mov_b32 {s(reg+2)}, {n}")
            P(f"s_mov_b32 {s(reg+3)}, 0x00020000")
        sp = self.o["span"]
        if sp == 2:
            P(f"s_and_b32 {s(sKH)}, s2, 1")
            P(f"s_bfe_u32 {s(sJJ)}, s2, 0x30003")
            P(f"s_bfe_u32 {s(sTAU)}, s2, 0x20001")
            P(f"s_lshl_b32 {s(sTAU)}, {s(sTAU)}, 2")
            P(f"s_lshr_b32 {s(sJ)}, s2, 6")
            P(f"s_add_u32 {s(sTAU)}, {s(sTAU)}, {s(sJ)}")
        else:
            P(f"s_bfe_u32 {s(sKH)}, s2, 0x10006")
            P(f"s_bfe_u32 {s(sJJ)}, s2, 0x30003")
            P(f"s_and_b32 {s(sTAU)}, s2, 7")
            P(f"s_lshl_b32 {s(sTAU)}, {s(sTAU)}, 1")
            P(f"s_lshr_b32 {s(sJ)}, s2, 7")
            P(f"s_add_u32 {s(sTAU)}, {s(sTAU)}, {s(sJ)}")
        P(f"s_lshl3_add_u32 {s(sJ)}, {s(sKH)}, {s(sJJ)}")
        P(f"s_lshl1_add_u32 {s(sFS)}, {s(sJJ)}, {s(sKH)}")
        P(f"s_lshl2_add_u32 {s(sTT)}, {s(sTAU)}, {s(sW)}")
        P(f"s_mov_b32 {s(sL)}, 0")
        P(f"s_mov_b32 {s(sLB)}, {LAYER0}")
        P(f"s_mov_b32 {s(sONE)}, 1")
        P(f"s_lshl_b32 {s(sCO)}, {s(sTT)}, 9")
        P(f"s_lshl_b32 {s(sCT)}, {s(sTAU)}, 7")
        P(f"s_lshl_b32 {s(sW4K)}, {s(sW)}, 12")
        P(f"v_lshlrev_b32 {v(vL16)}, 4, {v(vLANE)}")
        P(f"v_lshlrev_b32 {v(vL4)}, 2, {v(vLANE)}")
        P(f"v_mov_b32 {v(vSTAMP)}, 0")
        P(f"v_and_b32 {v(A[0])}, 31, {v(vLANE)}")
        P(f"v_lshlrev_b32 {v(A[0])}, 11, {v(A[0])}")
        P(f"v_lshrrev_b32 {v(vTMP)}, 5, {v(vLANE)}")
        P(f"v_lshl_or_b32 {v(A[0])}, {v(vTMP)}, 4, {v(A[0])}")
        P(f"s_lshl_b32 {s(sDS)}, {s(sTT)}, 16")
        P(f"s_lshl_b32 {s(sDL)}, {s(sFS)}, 7")
        P(f"s_add_u32 {s(sDS)}, {s(sDS)}, {s(sDL)}")
        P.wait_all(vm=False)
        self.stamp(0)
        P(f"s_cmp_eq_u32 {s(sKH)}, 0")
        P(f"s_cselect_b32 {s(WKV)}, {s(T[0])}, {s(T[2])}")
        P(f"s_cselect_b32 {s(WKV+1)}, {s(T[1])}, {s(T[3])}")
        P("s_cmp_lt_u32 s2, 112")
        P(f"s_cselect_b32 {s(PKS)}, {s(T[4])}, {s(T[6])}")
        P(f"s_cselect_b32 {s(PKS+1)}, {s(T[5])}, {s(T[7])}")
        P("s_cmp_lg_u32 s2, 0")
        P("s_cbranch_scc1 L_nozero")
        for i in range(4):
            P(f"v_mov_b32 {v(64+i)}, 0")
        P(f"s_mul_i32 {s(T[0])}, {s(sW)}, {CTR_BYTES//4}")
        for i in range(CTR_BYTES // 4096):
            P(f"buffer_store_dwordx4 {v(64,4)}, {v(vL16)}, {srd(WS)}, {s(T[0])} offen sc1")
            P(f"s_add_u32 {s(T[0])}, {s(T[0])}, 1024")
        P("L_nozero:")
        for i in range(4):
            P.vm(f"buffer_load_dwordx4 {v(PK+4*i,4)}, {v(A[0])}, {srd(X0)}, {s(sDS)} offen offset:{32*i}", "x0")
        P("s_cmp_lg_u32 s2, 0")
        P("s_cbranch_scc1 L_noflag")
        P("s_waitcnt vmcnt(4)")
        P("s_barrier")
        P(f"s_cmp_lg_u32 {s(sW)}, 0")
        P("s_cbranch_scc1 L_noflag")
        P(f"s_atomic_add {s(sONE)}, {s(DBG,2)}, 0")
        P("L_noflag:")
        self.wkv_dma(0, 8)
        P(f"s_getpc_b64 {s(CODE,2)}")
        P("L_pc:")
        P(f"s_mov_b32 {s(CODE+2)}, L_end-L_pc")
        P(f"s_mov_b32 {s(CODE+3)}, 0x00020000")
        P(f"s_lshr_b32 {s(T[0])}, s2, 3")
        P(f"s_lshl2_add_u32 {s(T[0])}, {s(T[0])}, {s(sW)}")
        P(f"s_lshl_b32 {s(T[0])}, {s(T[0])}, 9")
        P(f"v_lshlrev_b32 {v(vTMP)}, 3, {v(vLANE)}")
        P.vm(f"buffer_load_dwordx2 {v(70,2)}, {v(vTMP)}, {srd(CODE)}, {s(T[0])} offen", "code")
        l = v(vLANE)
        P(f"v_lshrrev_b32 {v(A[1])}, 5, {l}")
        P(f"v_lshlrev_b32 {v(vTRA)}, 10, {v(A[1])}")
        P(f"v_bfe_u32 {v(A[1])}, {l}, 2, 2")
        P(f"v_lshl_or_b32 {v(vTRA)}, {v(A[1])}, 7, {v(vTRA)}")
        P(f"v_bfe_u32 {v(A[1])}, {l}, 3, 1")
        P(f"v_lshl_or_b32 {v(vTRA)}, {v(A[1])}, 6, {v(vTRA)}")
        P(f"v_bfe_u32 {v(A[1])}, {l}, 4, 1")
        P(f"v_lshl_or_b32 {v(vTRA)}, {v(A[1])}, 5, {v(vTRA)}")
        P(f"v_and_b32 {v(A[1])}, 1, {l}")
        P(f"v_lshl_or_b32 {v(vTRA)}, {v(A[1])}, 4, {v(vTRA)}")
        P(f"v_bfe_u32 {v(A[1])}, {l}, 1, 1")
        P(f"v_lshl_or_b32 {v(vTRA)}, {v(A[1])}, 3, {v(vTRA)}")
        P(f"s_lshl_b32 {s(T[0])}, {s(sW)}, 15")
        P(f"v_add_u32 {v(vTRA)}, {s(T[0])}, {v(vTRA)}")
        P(f"v_xor_b32 {v(vTRB)}, 64, {v(vTRA)}")
        P(f"v_lshrrev_b32 {v(A[1])}, 2, {l}")
        P(f"v_lshrrev_b32 {v(A[2])}, 4, {l}")
        P(f"v_xor_b32 {v(A[1])}, {v(A[1])}, {v(A[2])}")
        P(f"v_and_b32 {v(A[1])}, 1, {v(A[1])}")
        P(f"v_and_b32 {v(A[2])}, 3, {l}")
        P(f"v_lshlrev_b32 {v(A[2])}, 4, {v(A[2])}")
        P(f"v_lshl_or_b32 {v(A[2])}, {v(A[1])}, 6, {v(A[2])}")
        P(f"v_lshrrev_b32 {v(A[1])}, 3, {l}")
        P(f"v_lshl_or_b32 {v(vDS2K)}, {v(A[1])}, 11, {v(A[2])}")
        self.pub_offsets(XP, STX)
        P(f"v_mov_b32 {v(A[1])}, 0")
        P.wait(vm="x0")
        self.stats_and_store(sPUB, sSTO)
        P.vm(f"buffer_load_dword {v(68)}, {v(A[1])}, {srd(DBG)}, 0 offen sc1", "pub")
        self.wkv_dma(8, 16)
        P.wait(vm="pub")
        P(f"s_mov_b32 {s(sTO)}, 0")
        P("L_dbg:")
        P(f"v_readfirstlane_b32 {s(T[0])}, {v(68)}")
        P(f"s_cmp_lg_u32 {s(T[0])}, 0")
        P("s_cbranch_scc1 L_dbgok")
        P(f"s_add_u32 {s(sTO)}, {s(sTO)}, 1")
        P(f"s_cmp_ge_u32 {s(sTO)}, 0x20000")
        P("s_cbranch_scc1 L_dbgok")
        P(f"buffer_load_dword {v(68)}, {v(A[1])}, {srd(DBG)}, 0 offen sc1")
        P("s_waitcnt vmcnt(0)")
        P("s_branch L_dbg")
        P("L_dbgok:")
        self.arrive(sCO, 0)

    def gemm_a_addr(self, xbuf):
        P = self.P
        P(f"s_lshl_b32 {s(T[0])}, {s(sTT)}, 16")
        P(f"s_add_u32 {s(T[0])}, {s(T[0])}, {s(sLB)}")
        if xbuf:
            P(f"s_add_u32 {s(T[0])}, {s(T[0])}, {xbuf}")
        P(f"v_add_u32 {v(A[0])}, {s(T[0])}, {v(vL16)}")
        P(f"s_lshl1_add_u32 {s(sXK)}, {s(sW)}, {s(sJJ)}")
        P(f"s_lshl_b32 {s(sXK)}, {s(sXK)}, 13")
        P(f"s_and_b32 {s(sXK)}, {s(sXK)}, 0xffff")
        P(f"v_mov_b32 {v(A[1])}, {v(vTRA)}")
        P(f"v_mov_b32 {v(A[2])}, {v(vTRB)}")

    def xload(self, p):
        P = self.P
        P.vm(f"buffer_load_dwordx4 {a(4*p,4)}, {v(A[0])}, {srd(WS)}, {s(sXK)} offen offset:{1024*(p&3)} sc1", ("X", p))
        if p & 3 == 3:
            P(f"s_add_u32 {s(sXK)}, {s(sXK)}, 4096")
            P(f"s_and_b32 {s(sXK)}, {s(sXK)}, 0xffff")

    def gemm_a(self, acc, zero_init, nx, fill, hooks, csacc=None, ones=None):
        P = self.P
        WB = 64
        LA = self.o["LA"]

        def rd(p, t):
            if p & 15 == 0 and p and t == 0:
                for r in (A[1], A[2]):
                    P(f"v_add_u32 {v(r)}, 0x8000, {v(r)}")
                    P(f"v_and_b32 {v(r)}, 0x1ffff, {v(r)}")
            for e in range(2):
                P.lg(f"ds_read_b64_tr_b16 {v(WB+8*(p&3)+4*t+2*e,2)}, {v(A[1+t])} offset:{(p&15)*2048+e*512}", ("W", p, t))

        for p in range(2):
            rd(p, 0)
            rd(p, 1)
        fill = list(fill)
        for p in range(64):
            if p in hooks:
                hooks[p]()
            P.wait(vm=("X", p), lg=("W", p, 1))
            for t in range(2):
                c = "0" if (zero_init and p == 0) else v(acc + 16 * t, 16)
                P(f"v_mfma_f32_32x32x16_bf16 {v(acc+16*t,16)}, {v(WB+8*(p&3)+4*t,4)}, {a(4*p,4)}, {c}")
                if p + 2 < 64:
                    rd(p + 2, t)
                if t == 0:
                    n = 0
                    while fill and fill[0][0] <= p and n < 3:
                        P(fill.pop(0)[1])
                        n += 1
            while nx < min(64, p + LA + 1):
                self.xload(nx)
                nx += 1
            if csacc is not None and p < 16:
                for t in range(2):
                    c = "0" if p == 0 else v(csacc + 16 * t, 16)
                    P(f"v_mfma_f32_32x32x16_bf16 {v(csacc+16*t,16)}, {v(ones,4)}, {v(WB+8*(p&3)+4*t,4)}, {c}")
        for _, t in fill:
            P(t)

    def p1(self):
        P = self.P
        KW, KX, KA, KC, KS, ONES, QA, CSA, ST = 64, 128, 160, 168, 176, 184, 192, 224, 96
        l = v(vLANE)
        P.vmq = ["wkv"]
        self.wimg_setup(0)
        for i in range(16):
            self.wimg_dma(WQ, "wq0")
        for t in self.unpack_list(R, PK, 16):
            P(t)
        for i in range(4):
            P(f"v_mov_b32 {v(ONES+i)}, 0x3f803f80")
        P(f"v_lshrrev_b32 {v(A[4])}, 4, {l}")
        P(f"v_lshlrev_b32 {v(A[3])}, 9, {v(A[4])}")
        P(f"v_bfe_u32 {v(vTMP)}, {l}, 2, 2")
        P(f"v_lshl_or_b32 {v(A[5])}, {v(vTMP)}, 6, {v(A[3])}")
        P(f"v_and_b32 {v(vTMP)}, 3, {l}")
        P(f"v_lshl_or_b32 {v(A[5])}, {v(vTMP)}, 3, {v(A[5])}")
        P(f"s_lshl_b32 {s(T[0])}, {s(sW)}, 15")
        P(f"s_add_u32 {s(T[0])}, {s(T[0])}, 16384")
        P(f"v_add_u32 {v(A[5])}, {s(T[0])}, {v(A[5])}")
        P(f"v_and_b32 {v(vTMP)}, 15, {l}")
        P(f"v_lshl_or_b32 {v(A[3])}, {v(vTMP)}, 4, {v(A[3])}")
        P(f"v_lshlrev_b32 {v(A[6])}, 2, {v(vTMP)}")
        P(f"v_bfe_u32 {v(vTMP)}, {l}, 4, 1")
        P(f"v_lshl_or_b32 {v(A[6])}, {v(vTMP)}, 7, {v(A[6])}")
        P(f"v_lshrrev_b32 {v(vTMP)}, 5, {l}")
        P(f"v_lshl_or_b32 {v(A[6])}, {v(vTMP)}, 11, {v(A[6])}")
        P.wait(vm="wkv")
        for sx in range(8):
            for m in range(2):
                for e in range(2):
                    P.lg(f"ds_read_b64_tr_b16 {v(KW+8*sx+4*m+2*e,2)}, {v(A[5])} offset:{sx*2048+e*256+m*32}", ("kw", sx))
            if sx >= 2:
                P.wait(lg=("kw", sx - 2))
        P.wait_all(vm=False)
        P(f"s_lshr_b32 {s(T[4])}, {s(sJJ)}, 1")
        P(f"s_lshl2_add_u32 {s(T[4])}, {s(sTAU)}, {s(T[4])}")
        P(f"s_and_b32 {s(T[5])}, {s(sJJ)}, 1")
        P(f"s_lshl_b32 {s(T[3])}, {s(T[4])}, 9")
        P(f"s_lshl2_add_u32 {s(T[3])}, {s(sL)}, {s(T[3])}")
        self.poll_issue(T[3], 0)
        self.poll_issue(sCO, 0, sPD2)
        for sx in range(8):
            for m in range(2):
                c = "0" if sx == 0 else v(KC + 4 * m, 4)
                P(f"v_mfma_f32_16x16x32_bf16 {v(KC+4*m,4)}, {v(KW+8*sx+4*m,4)}, {v(ONES,4)}, {c}")
        self.gemm_a_addr(XP)
        self.wimg_setup(1)
        P(f"s_lshl_b32 {s(T[0])}, {s(T[4])}, 16")
        P(f"s_lshl_b32 {s(T[1])}, {s(T[5])}, 8")
        P(f"s_add_u32 {s(T[0])}, {s(T[0])}, {s(T[1])}")
        P(f"s_lshl2_add_u32 {s(T[0])}, {s(sW4K)}, {s(T[0])}")
        P(f"s_add_u32 {s(T[0])}, {s(T[0])}, {s(sLB)}")
        P(f"s_lshl_b32 {s(T[1])}, {s(T[4])}, 12")
        P(f"s_add_u32 {s(T[1])}, {s(T[1])}, {s(sLB)}")
        P(f"s_lshl_b32 {s(T[2])}, {s(T[5])}, 6")
        P(f"s_add_u32 {s(T[2])}, {s(T[2])}, {s(T[1])}")
        P(f"s_add_u32 {s(T[2])}, {s(T[2])}, {STX}")
        self.stamp(1)
        self.poll_check(T[3], 0, 16)
        self.stamp(2)
        for i in range(8):
            P.vm(f"buffer_load_dword {v(KS+i)}, {v(A[6])}, {srd(WS)}, {s(T[2])} offen offset:{256*i} sc1", "ks")
        for sx in range(8):
            P.vm(f"buffer_load_dwordx4 {v(KX+4*sx,4)}, {v(A[3])}, {srd(WS)}, {s(T[0])} offen offset:{2048*(sx&1)} sc1", ("kx", sx))
            if sx & 1:
                P(f"s_add_u32 {s(T[0])}, {s(T[0])}, 4096")
        for i in range(8):
            self.wimg_dma(WQ, "wq1")
        P(f"v_and_b32 {v(vTMP)}, 15, {l}")
        P(f"s_lshr_b32 {s(T[0])}, {s(sW4K)}, 1")
        P(f"s_add_u32 {s(T[0])}, {s(T[0])}, {KVR}")
        P(f"s_add_u32 {s(T[1])}, {s(T[1])}, {KV}")
        P(f"s_cmp_lg_u32 {s(sKH)}, 0")
        P("s_cbranch_scc1 L_vaddr")
        P(f"v_lshlrev_b32 {v(A[5])}, 7, {v(vTMP)}")
        P(f"v_lshl_or_b32 {v(A[6])}, {v(A[4])}, 5, {v(A[5])}")
        P(f"v_lshl_or_b32 {v(A[5])}, {v(A[4])}, 4, {v(A[5])}")
        P(f"v_mov_b32 {v(A[7])}, {v(A[3])}")
        P(f"s_lshl_b32 {s(T[2])}, {s(T[5])}, 8")
        P("s_branch L_kvaddr")
        P("L_vaddr:")
        P(f"v_lshlrev_b32 {v(A[5])}, 2, {v(vTMP)}")
        P(f"v_lshl_or_b32 {v(A[5])}, {v(A[4])}, 8, {v(A[5])}")
        P(f"v_and_b32 {v(A[6])}, 0x13, {l}")
        P(f"v_bfe_u32 {v(vTMP)}, {l}, 2, 1")
        P(f"v_lshl_or_b32 {v(A[6])}, {v(vTMP)}, 3, {v(A[6])}")
        P(f"v_bfe_u32 {v(vTMP)}, {l}, 3, 1")
        P(f"v_lshl_or_b32 {v(A[6])}, {v(vTMP)}, 2, {v(A[6])}")
        P(f"v_lshlrev_b32 {v(A[6])}, 6, {v(A[6])}")
        P(f"v_and_b32 {v(vTMP)}, 32, {l}")
        P(f"v_or_b32 {v(A[6])}, {v(vTMP)}, {v(A[6])}")
        P(f"v_mov_b32 {v(A[7])}, {v(vL16)}")
        P(f"s_lshl_b32 {s(T[2])}, {s(T[5])}, 10")
        P(f"s_add_u32 {s(T[2])}, {s(T[2])}, 2048")
        P("L_kvaddr:")
        P(f"s_add_u32 {s(T[1])}, {s(T[1])}, {s(T[2])}")
        P(f"s_cmp_eq_u32 {s(sW)}, 0")
        P(f"s_cselect_b32 {s(T[1])}, {s(T[1])}, {OOB}")
        P(f"v_add_u32 {v(A[5])}, {s(T[0])}, {v(A[5])}")
        P(f"v_add_u32 {v(A[6])}, {KVR}, {v(A[6])}")
        P.wait(vm="ks")
        for step in (4, 2, 1):
            for i in range(step):
                P(f"v_add_f32 {v(KS+i)}, {v(KS+i)}, {v(KS+i+step)}")
        P(f"v_mul_f32 {v(KS)}, {f32(1/1024)}, {v(KS)}")
        P(f"v_mov_b32 {v(KS+1)}, {v(KS)}")
        P(f"v_permlane32_swap_b32 {v(KS)}, {v(KS+1)}")
        P(f"v_add_f32 {v(KS)}, {v(KS)}, {v(KS+1)}")
        P(f"v_mov_b32 {v(KS+1)}, {v(KS)}")
        P(f"v_permlane16_swap_b32 {v(KS)}, {v(KS+1)}")
        P(f"v_fma_f32 {v(KS+1)}, -{v(KS)}, {v(KS)}, {v(KS+1)}")
        P(f"v_max_f32 {v(KS+1)}, 0, {v(KS+1)}")
        P(f"v_add_f32 {v(KS+1)}, {f32(1e-5)}, {v(KS+1)}")
        P(f"v_rsq_f32 {v(KS+1)}, {v(KS+1)}")
        for i in range(8):
            P(f"v_mul_f32 {v(KC+i)}, -{v(KS)}, {v(KC+i)}")
        for sx in range(8):
            P.wait(vm=("kx", sx))
            for m in range(2):
                P(f"v_mfma_f32_16x16x32_bf16 {v(KC+4*m,4)}, {v(KW+8*sx+4*m,4)}, {v(KX+4*sx,4)}, {v(KC+4*m,4)}")
        for i in range(8):
            P(f"v_mul_f32 {v(KA+i)}, {v(KS+1)}, {v(KC+i)}")
        P(f"s_cmp_lg_u32 {s(sKH)}, 0")
        P("s_cbranch_scc1 L_vwr")
        for m in range(2):
            P(f"ds_write_b128 {v(A[5])}, {v(KA+4*m,4)} offset:{64*m}")
        P("s_branch L_kvwr")
        P("L_vwr:")
        for m in range(2):
            for r in range(4):
                P(f"ds_write_b32 {v(A[5])}, {v(KA+4*m+r)} offset:{1024*m+64*r}")
        P("L_kvwr:")
        P.wait_all(vm=False)
        P("s_barrier")
        for w in range(4):
            for e in range(2):
                P.lg(f"ds_read_b128 {v(KX+8*w+4*e,4)}, {v(A[6])} offset:{2048*w+16*e}", ("kr", w))
        P.wait(lg=("kr", 1))
        for i in range(8):
            P(f"v_add_f32 {v(KX+i)}, {v(KX+i)}, {v(KX+8+i)}")
        P.wait(lg=("kr", 3))
        for i in range(8):
            P(f"v_add_f32 {v(KX+16+i)}, {v(KX+16+i)}, {v(KX+24+i)}")
        for i in range(8):
            P(f"v_add_f32 {v(KX+i)}, {v(KX+i)}, {v(KX+16+i)}")
        for i in range(4):
            P(f"v_cvt_pk_bf16_f32 {v(KA+i)}, {v(KX+2*i)}, {v(KX+2*i+1)}")
        P.vm(f"buffer_store_dwordx4 {v(KA,4)}, {v(A[7])}, {srd(WS)}, {s(T[1])} offen sc1", "kvst")
        self.poll_check(sCO, 0, 16, sPD2)
        self.stamp(3)
        for p in range(4):
            self.xload(p)
        for i in range(8):
            self.wimg_dma(WQ, "wq1")
        P.wait(vm="kvst")
        self.two_level_issue(0)
        for p in range(4, 8):
            self.xload(p)
        P(f"s_lshl_b32 {s(T[0])}, {s(sTT)}, 12")
        P(f"s_add_u32 {s(T[0])}, {s(T[0])}, {s(sLB)}")
        P(f"s_add_u32 {s(T[0])}, {s(T[0])}, {STX}")

        def h_stats():
            for i in range(16):
                P.vm(f"buffer_load_dword {v(ST+i)}, {v(vL4)}, {srd(WS)}, {s(T[0])} offen offset:{256*i} sc1", "st")

        def h_bar():
            P.wait(vm="wq1")
            P("s_barrier")

        def h_cs():
            P(f"v_permlane32_swap_b32 {v(CSA)}, {v(CSA+16)}")
            P(f"s_lshr_b32 {s(T[1])}, {s(sW4K)}, 4")
            P(f"s_add_u32 {s(T[1])}, {s(T[1])}, {CSQ}")
            P(f"v_add_u32 {v(vTMP)}, {s(T[1])}, {v(vL4)}")
            P.lg(f"ds_write_b32 {v(vTMP)}, {v(CSA)}", "csw")

        EXB, EXA = 112, 116
        c = math.log2(math.e) / math.sqrt(32)
        fill = []
        O_, LA_, SUMA = 128, 160, 188
        fill += [(0, f"v_mov_b32 {v(O_+i)}, 0") for i in range(32)]
        fill += [(4, f"v_mov_b32 {v(LA_+i)}, 0") for i in range(8)]
        fill += [(22, f"v_mov_b32 {v(224+i)}, 0") for i in range(16)]
        fill += [(22, f"v_mov_b32 {v(240+i)}, {f32(-1e30)}") for i in range(16)]
        st = self.stat_sum_list(ST)
        st += [f"v_add_f32 {v(ST+1)}, {f32(1e-5)}, {v(ST+1)}", f"v_rsq_f32 {v(ST+1)}, {v(ST+1)}"]
        st += self.stat_frag_list(EXB, ST, None, ST + 2)
        st += [f"v_mul_f32 {v(ST+1)}, {f32(c)}, {v(ST+1)}"]
        fill += [(44, t) for t in st]
        hooks = {3: lambda: P.wait(vm="wq1"), 5: lambda: self.two_level_finish(0), 13: h_bar, 19: h_cs, 26: h_stats,
                 44: lambda: P.wait(vm="st")}
        P.wait(vm="wq0")
        self.gemm_a(QA, True, 8, fill, hooks, csacc=CSA, ones=ONES)
        self.stamp(4)
        skip = P.newlabel("kvp")
        P.wait_all(vm=False)
        P(f"s_cmp_lg_u32 {s(sW)}, 0")
        P(f"s_cbranch_scc1 {skip}")
        self.poll_issue(sCT, CT_REP)
        self.poll_check(sCT, CT_REP, 16)
        P(f"{skip}:")
        P("s_barrier")
        self.stamp(5)
        KF = 168
        P(f"s_lshl_b32 {s(sKS)}, {s(sTAU)}, 14")
        P(f"s_add_u32 {s(T[0])}, {s(sLB)}, {KV}")
        P(f"v_add_u32 {v(A[0])}, {s(T[0])}, {v(vL16)}")
        for m in range(2):
            P.vm(f"buffer_load_dwordx4 {v(KF+4*m,4)}, {v(A[0])}, {srd(WS)}, {s(sKS)} offen offset:{1024*m} sc1", "k0")
        P(f"s_lshr_b32 {s(T[0])}, {s(sW4K)}, 1")
        P(f"s_add_u32 {s(sKS)}, {s(sKS)}, {s(T[0])}")
        P(f"s_add_u32 {s(sKS)}, {s(sKS)}, 2048")
        P(f"s_and_b32 {s(sKS)}, {s(sKS)}, 0x3ffff")
        P(f"s_add_u32 {s(sXK)}, {s(T[0])}, {RING}")
        for c_ in range(2):
            P(f"s_add_u32 m0, {s(sXK)}, {8192*c_}")
            for i in range(2):
                P.vm(f"buffer_load_dwordx4 {v(A[0])}, {srd(WS)}, {s(sKS)} offen offset:{1024*i} sc1 lds", "kv")
            P(f"s_add_u32 {s(sKS)}, {s(sKS)}, 8192")
            P(f"s_and_b32 {s(sKS)}, {s(sKS)}, 0x3ffff")
        P(f"v_and_b32 {v(vTMP)}, 31, {l}")
        P(f"v_lshlrev_b32 {v(vTMP)}, 2, {v(vTMP)}")
        P(f"v_lshrrev_b32 {v(A[1])}, 5, {l}")
        P(f"v_lshl_or_b32 {v(vTMP)}, {v(A[1])}, 9, {v(vTMP)}")
        P(f"v_add_u32 {v(vTMP)}, {CSQ}, {v(vTMP)}")
        for t in range(2):
            for e in range(2):
                P.lg(f"ds_read_b32 {v(ST+4+2*t+e)}, {v(vTMP)} offset:{128*t+256*e}", "csr")
        P.wait(lg="csr")
        for t in range(2):
            P(f"v_add_f32 {v(ST+4+2*t)}, {v(ST+4+2*t)}, {v(ST+5+2*t)}")
        for t in range(2):
            for x in self.cs_frag_list(EXA + 4 * t, ST + 4 + 2 * t, None, ST + 5 + 2 * t):
                P(x)
            P(f"v_mfma_f32_32x32x16_bf16 {v(QA+16*t,16)}, {v(EXA+4*t,4)}, {v(EXB,4)}, {v(QA+16*t,16)}")
        P(f"v_mov_b32 {v(A[2])}, 0xdddd")
        P(f"v_add_u32 {v(A[1])}, {RING}, {v(vL16)}")
        P(f"v_and_b32 {v(vTMP)}, 7, {l}")
        P(f"v_cmp_eq_u32 vcc, 0, {v(vTMP)}")
        P(f"v_cndmask_b32 {v(SUMA)}, 0, {v(ONES)}, vcc")
        P(f"v_cndmask_b32 {v(SUMA+1)}, 0, {v(ONES)}, vcc")
        P(f"v_cmp_eq_u32 vcc, 4, {v(vTMP)}")
        P(f"v_cndmask_b32 {v(SUMA+2)}, 0, {v(ONES)}, vcc")
        P(f"v_cndmask_b32 {v(SUMA+3)}, 0, {v(ONES)}, vcc")
        for i in range(8):
            P(f"v_mov_b32 {v(120+i)}, 0")
        for t in range(2):
            for i in range(16):
                P(f"v_mul_f32 {v(QA+16*t+i)}, {v(ST+1)}, {v(QA+16*t+i)}")
            for i in range(8):
                P(f"v_cvt_pk_bf16_f32 {v(PK+8*t+i)}, {v(QA+16*t+2*i)}, {v(QA+16*t+2*i+1)}")

    QF, SB, VF, O_, LA_, KF, ONES, SUMA = 48, (64, 80, 224, 240), 112, 128, 160, 168, 184, 188

    def qk(self, i, m, c=None):
        n, hd = i >> 1, i & 1
        d = v(self.SB[i & 3], 16)
        c = c or ("0" if m == 0 else d)
        return f"v_mfma_f32_32x32x16_bf16 {d}, {v(self.KF+8*(n&1)+4*m,4)}, {v(self.QF+8*hd+4*m,4)}, {c}"

    def pv(self, i, m):
        n, hd = i >> 1, i & 1
        return f"v_smfmac_f32_32x32x32_bf16 {v(self.O_+16*hd,16)}, {v(self.VF+8*(n&1)+4*m,4)}, {v(self.SB[i&3]+8*m,8)}, {v(A[2])}"

    def sm(self, i, m):
        return f"v_smfmac_f32_16x16x64_bf16 {v(self.LA_+4*(i&1),4)}, {v(self.SUMA,4)}, {v(self.SB[i&3]+8*m,8)}, {v(A[2])}"

    def ex(self, i, r):
        return f"v_exp_f32 {v(self.SB[i&3]+r)}, {v(self.SB[i&3]+r)}"

    def att_loop(self, trips_sgpr_setup, extra):
        P = self.P
        top = P.newlabel("att")
        trips_sgpr_setup()
        P(".p2align 3")
        P(f"{top}:")
        for it in range(4):
            for u in range(4):
                i = 4 * it + u + 3
                if u & 1 == 0:
                    n = (i + 1) // 2 + 1
                    rdst, roff = self.KF + 8 * (n & 1), 2048 + 2048 * u
                else:
                    n = i // 2
                    rdst, roff = self.VF + 8 * (n & 1), 2048 * (u - 1)
                rd = [f"ds_read_b128 {v(rdst+4*m,4)}, {v(A[1])} offset:{8192*it+roff+1024*m}" for m in range(2)]
                P(self.qk(i + 1, 0))
                if u == 0:
                    P("s_barrier")
                elif u == 1:
                    P(f"s_add_u32 {s(sKS)}, {s(sKS)}, 8192")
                elif extra:
                    extra[0]()
                for r in range(0, 3):
                    P(self.ex(i, r))
                P(self.sm(i - 1, 0))
                P(rd[0])
                for r in range(3, 5):
                    P(self.ex(i, r))
                P(self.qk(i + 1, 1))
                P("s_waitcnt lgkmcnt(1)")
                for r in range(5, 8):
                    P(self.ex(i, r))
                P(self.pv(i - 1, 0))
                if u == 0:
                    P(f"buffer_load_dwordx4 {v(A[0])}, {srd(WS)}, {s(sKS)} offen sc1 lds")
                elif u == 1:
                    P(f"s_and_b32 {s(sKS)}, {s(sKS)}, 0x3ffff")
                    if it == 3:
                        P(f"s_sub_u32 {s(sTRIP)}, {s(sTRIP)}, 1")
                elif extra:
                    extra[1]()
                for r in range(8, 11):
                    P(self.ex(i, r))
                P(self.sm(i - 1, 1))
                P(rd[1])
                for r in range(11, 13):
                    P(self.ex(i, r))
                P(self.pv(i - 1, 1))
                if u == 0:
                    P(f"buffer_load_dwordx4 {v(A[0])}, {srd(WS)}, {s(sKS)} offen offset:1024 sc1 lds")
                elif u == 1:
                    if extra:
                        extra[2](1)
                elif u == 2:
                    if extra:
                        extra[2](0)
                else:
                    P(f"s_waitcnt vmcnt({6 if extra else 2})")
                    P(f"s_add_u32 m0, {s(sXK)}, {8192*((it+3)&3)}")
                for r in range(13, 16):
                    P(self.ex(i, r))
        P(f"s_cmp_lg_u32 {s(sTRIP)}, 0")
        P(f"s_cbranch_scc1 {top}")

    def pack_setup(self):
        P = self.P
        l = v(vLANE)
        gw = T[7]
        P(f"s_lshl2_add_u32 {s(gw)}, s2, {s(sW)}")
        P(f"s_lshl_b32 {s(sDL)}, {s(sW)}, 15")
        P(f"s_cmp_ge_u32 {s(gw)}, 448")
        P("s_cbranch_scc1 L_pk2")
        P(f"v_lshrrev_b32 {v(vTMP)}, 3, {l}")
        P(f"v_mul_u32_u24 {v(vTMP)}, 5120, {v(vTMP)}")
        P(f"v_add_u32 {v(A[3])}, {v(vTMP)}, {v(vDS2K)}")
        P(f"s_lshr_b32 {s(T[0])}, {s(gw)}, 3")
        P(f"s_and_b32 {s(T[1])}, {s(gw)}, 7")
        P(f"s_mul_i32 {s(sDS)}, {s(T[1])}, {128*7168}")
        P(f"s_lshl_b32 {s(T[2])}, {s(T[0])}, 7")
        P(f"s_add_u32 {s(sDS)}, {s(sDS)}, {s(T[2])}")
        P(f"s_mov_b32 {s(sSA)}, {8*7168}")
        P(f"s_mov_b32 {s(sSB)}, {8*7168}")
        P(f"s_mul_i32 {s(sCSO)}, {s(T[1])}, 14336")
        P(f"s_lshl1_add_u32 {s(sCSO)}, {s(T[2])}, {s(sCSO)}")
        P(f"s_add_u32 {s(sCSO)}, {s(sCSO)}, {CS}")
        for t in range(2):
            P(f"s_lshl1_add_u32 {s(T[2])}, {s(T[0])}, {t}")
            P(f"s_mul_i32 {s(T[3])}, {s(T[2])}, 9363")
            P(f"s_lshr_b32 {s(T[3])}, {s(T[3])}, 16")
            P(f"s_mul_i32 {s(T[4])}, {s(T[3])}, 7")
            P(f"s_sub_u32 {s(T[2])}, {s(T[2])}, {s(T[4])}")
            P(f"s_sub_u32 {s(T[4])}, {s(T[1])}, {s(T[3])}")
            P(f"s_and_b32 {s(T[4])}, {s(T[4])}, 7")
            P(f"s_mul_i32 {s(T[3])}, {s(T[3])}, {896*1024}")
            P(f"s_cmp_lt_u32 {s(T[2])}, 2")
            P(f"s_cselect_b32 {s(T[5])}, 11, 10")
            P(f"s_cselect_b32 {s(T[6])}, 10, 16")
            P(f"s_lshl_b32 {s(T[5])}, 1, {s(T[5])}")
            P(f"s_lshl_b32 {s(T[2])}, {s(T[2])}, {s(T[6])}")
            P(f"s_mul_i32 {s(T[4])}, {s(T[4])}, {s(T[5])}")
            P(f"s_lshl3_add_u32 {s(T[2])}, {s(T[4])}, {s(T[2])}")
            P(f"s_add_u32 {s(T[2])}, {s(T[2])}, {s(T[3])}")
            P(f"s_add_u32 {s(ARR+8*t)}, {s(T[2])}, {WP}")
            for i in range(1, 8):
                P(f"s_add_u32 {s(ARR+8*t+i)}, {s(ARR+8*t+i-1)}, {s(T[5])}")
        P("s_branch L_pkdone")
        P("L_pk2:")
        NB = self.o["NB"]
        NT1 = (112 - NB) // 16
        P(f"v_mov_b32 {v(A[3])}, {v(vDS2K)}")
        P(f"s_sub_u32 {s(gw)}, {s(gw)}, 448")
        P(f"s_and_b32 {s(T[0])}, {s(gw)}, 15")
        P(f"s_bfe_u32 {s(T[1])}, {s(gw)}, 0x10004")
        P(f"s_lshr_b32 {s(T[2])}, {s(gw)}, 5")
        P(f"s_mul_i32 {s(sDS)}, {s(T[2])}, 14")
        P(f"s_add_u32 {s(sDS)}, {s(sDS)}, {s(T[1])}")
        P(f"s_lshl_b32 {s(sDS)}, {s(sDS)}, 15")
        P(f"s_lshl_b32 {s(T[3])}, {s(T[0])}, 7")
        P(f"s_add_u32 {s(sDS)}, {s(sDS)}, {s(T[3])}")
        P(f"s_mov_b32 {s(sSA)}, 16384")
        P(f"s_mov_b32 {s(sSB)}, 49152")
        P(f"s_mov_b32 {s(sCSO)}, {OOB}")
        P(f"s_lshr_b32 {s(T[3])}, {s(T[0])}, 1")
        P(f"s_sub_u32 {s(T[4])}, {s(T[2])}, {s(T[3])}")
        P(f"s_and_b32 {s(T[4])}, {s(T[4])}, 7")
        P(f"s_lshl1_add_u32 {s(T[4])}, {s(T[4])}, {s(T[1])}")
        P(f"s_lshr_b32 {s(T[2])}, {s(T[2])}, 3")
        P(f"s_xor_b32 {s(T[0])}, {s(T[0])}, {s(T[2])}")
        P(f"s_andn2_b32 {s(T[0])}, 1, {s(T[0])}")
        P(f"s_lshl3_add_u32 {s(T[3])}, {s(T[2])}, {s(T[3])}")
        P(f"s_mul_i32 {s(T[3])}, {s(T[3])}, {896*1024}")
        P(f"s_add_u32 {s(T[3])}, {s(T[3])}, {WP + 448*1024}")
        P(f"s_cmp_ge_u32 {s(gw)}, 512")
        P(f"s_cselect_b32 {s(T[3])}, {OOB}, {s(T[3])}")
        P(f"s_lshl1_add_u32 {s(T[5])}, {s(T[4])}, {s(T[0])}")
        P(f"s_lshl_b32 {s(T[5])}, {s(T[5])}, 11")
        P(f"s_add_u32 {s(T[5])}, {s(T[5])}, {s(T[3])}")
        P(f"s_mul_i32 {s(T[6])}, {s(T[0])}, {NB}")
        P(f"s_add_u32 {s(T[6])}, {s(T[6])}, {s(T[4])}")
        P(f"s_lshl_b32 {s(T[6])}, {s(T[6])}, 11")
        P(f"s_add_u32 {s(T[6])}, {s(T[6])}, {s(T[3])}")
        for i in range(8):
            for t in range(2):
                if i == 7:
                    P(f"s_mov_b32 {s(ARR+8*t+i)}, {OOB}")
                elif i < NT1:
                    P(f"s_add_u32 {s(ARR+8*t+i)}, {s(T[5])}, {65536*i + 1024*t}")
                else:
                    P(f"s_add_u32 {s(ARR+8*t+i)}, {s(T[6])}, {65536*NT1 + 32768*(i-NT1) + 1024*t}")
        P("L_pkdone:")
        P(f"s_sub_u32 {s(sDS)}, {s(sDS)}, {s(sSB)}")
        P(f"s_sub_u32 {s(sDL)}, {s(sDL)}, 1024")

    def pack_block(self):
        P = self.P
        CSA = 192
        for i in range(8):
            for t in range(2):
                for e in range(2):
                    P.lg(f"ds_read_b64_tr_b16 {a(8*i+4*t+2*e,2)}, {v((vTRA,vTRB)[t])} offset:{i*2048+e*512}", ("pk", i))
            if i >= 2:
                self.pack_out(i - 2)
        self.pack_out(6)
        self.pack_out(7)
        P(f"v_permlane32_swap_b32 {v(CSA)}, {v(CSA+16)}")
        P(f"buffer_store_dword {v(CSA)}, {v(vL4)}, {srd(WS)}, {s(sCSO)} offen sc1")

    def pack_out(self, i):
        P = self.P
        CSA = 192
        P.wait(lg=("pk", i))
        for t in range(2):
            c = "0" if i == 0 else v(CSA + 16 * t, 16)
            P(f"v_mfma_f32_32x32x16_bf16 {v(CSA+16*t,16)}, {v(self.ONES,4)}, {a(8*i+4*t,4)}, {c}")
            P(f"buffer_store_dwordx4 {a(8*i+4*t,4)}, {v(vL16)}, {srd(WS)}, {s(ARR+8*t+i)} offen sc1")

    def fallback(self):
        P = self.P
        M = A[4]
        P("s_waitcnt vmcnt(0) lgkmcnt(0)")
        for hd in range(2):
            i = hd
            S, CB = self.SB[i & 3], self.SB[2]
            l1, l2 = P.newlabel("fb"), P.newlabel("fb")
            P(f"v_mov_b32 {v(M)}, 0xff800000")
            P(f"s_mov_b32 {s(T[0])}, 0")
            P(f"{l1}:")
            for m in range(2):
                P(f"buffer_load_dwordx4 {v(self.KF+4*m,4)}, {v(A[0])}, {srd(WS)}, {s(T[0])} offen offset:{1024*m} sc1")
            P("s_waitcnt vmcnt(0)")
            P(self.qk(i, 0))
            P(self.qk(i, 1))
            for r in range(8):
                P(f"v_max3_f32 {v(M)}, {v(S+2*r)}, {v(S+2*r+1)}, {v(M)}")
            P(f"s_add_u32 {s(T[0])}, {s(T[0])}, 4096")
            P(f"s_cmp_lt_u32 {s(T[0])}, 0x40000")
            P(f"s_cbranch_scc1 {l1}")
            P(f"v_mov_b32 {v(vTMP)}, {v(M)}")
            P(f"v_permlane32_swap_b32 {v(M)}, {v(vTMP)}")
            P(f"v_max_f32 {v(M)}, {v(M)}, {v(vTMP)}")
            for r in range(16):
                P(f"v_sub_f32 {v(CB+r)}, 0, {v(M)}")
                P(f"v_mov_b32 {v(self.O_+16*hd+r)}, 0")
            for r in range(4):
                P(f"v_mov_b32 {v(self.LA_+4*hd+r)}, 0")
            P(f"s_mov_b32 {s(T[0])}, 0")
            P(f"{l2}:")
            for m in range(2):
                P(f"buffer_load_dwordx4 {v(self.KF+4*m,4)}, {v(A[0])}, {srd(WS)}, {s(T[0])} offen offset:{1024*m} sc1")
                P(f"buffer_load_dwordx4 {v(self.VF+4*m,4)}, {v(A[0])}, {srd(WS)}, {s(T[0])} offen offset:{2048+1024*m} sc1")
            P("s_waitcnt vmcnt(0)")
            P(self.qk(i, 0, v(CB, 16)))
            P(self.qk(i, 1))
            for r in range(16):
                P(self.ex(i, r))
            for m in range(2):
                P(self.pv(i, m))
                P(self.sm(i, m))
            P(f"s_add_u32 {s(T[0])}, {s(T[0])}, 4096")
            P(f"s_cmp_lt_u32 {s(T[0])}, 0x40000")
            P(f"s_cbranch_scc1 {l2}")
            P("s_nop 11")

    def p2(self):
        P = self.P
        P(f"s_mov_b32 {s(sTRIP)}, 4")
        P(f"s_cmp_lg_u32 {s(sL)}, 0")
        P("s_cbranch_scc1 L_att_pre2")
        self.pack_setup()
        P("L_att_pre2:")
        P.wait_all()
        self.stamp(6)
        P(f"s_add_u32 m0, {s(sXK)}, 16384")
        P(f"s_cmp_lg_u32 {s(sL)}, 0")
        P("s_cbranch_scc1 L_att_n")

        def pk_post(first):
            P(f"s_add_u32 {s(sDS)}, {s(sDS)}, {s(sSB if first else sSA)}")
            P(f"s_add_u32 {s(sDL)}, {s(sDL)}, 1024")
        pk = (lambda: P(f"s_mov_b32 m0, {s(sDL)}"),
              lambda: P(f"buffer_load_dwordx4 {v(A[3])}, {srd(PKS)}, {s(sDS)} offen lds"), pk_post)
        self.att_loop(lambda: P(f"s_mov_b32 {s(sTRIP)}, 2"), pk)
        P(f"s_mov_b32 {s(sTRIP)}, 2")
        P("L_att_n:")
        self.att_loop(lambda: None, None)
        P("s_waitcnt vmcnt(0)")
        P(f"s_cmp_lg_u32 {s(sL)}, 0")
        P("s_cbranch_scc1 L_att_c")
        P.wait_all()
        self.pack_block()
        P("L_att_c:")
        P(f"s_lshl1_add_u32 {s(sSA)}, {s(sW)}, {s(sJJ)}")
        P(f"s_lshl_b32 {s(sSA)}, {s(sSA)}, 18")
        P(f"s_sub_u32 {s(sSA)}, {s(sSA)}, 16384")
        P(f"s_lshl_b32 {s(T[0])}, {s(sFS)}, 7")
        P(f"v_add_u32 {v(A[3])}, {s(T[0])}, {v(vDS2K)}")
        P(f"s_lshl_b32 {s(sDL)}, {s(sW)}, 15")
        P(f"s_sub_u32 {s(sDL)}, {s(sDL)}, 1024")

        def wo_post(first):
            P(f"s_add_u32 {s(sSA)}, {s(sSA)}, 16384")
            P(f"s_add_u32 {s(sDL)}, {s(sDL)}, 1024")

        def wo_dma():
            P(f"s_and_b32 {s(sDS)}, {s(sSA)}, 0x1fffff")
            P(f"buffer_load_dwordx4 {v(A[3])}, {srd(WO)}, {s(sDS)} offen lds")
        wo = (lambda: P(f"s_mov_b32 m0, {s(sDL)}"), wo_dma, wo_post)
        self.att_loop(lambda: P(f"s_mov_b32 {s(sTRIP)}, 4"), wo)
        i = 127
        P(self.sm(i - 1, 0))
        P("s_waitcnt lgkmcnt(0)")
        for r in range(0, 3):
            P(self.ex(i, r))
        P(self.pv(i - 1, 0))
        for r in range(3, 6):
            P(self.ex(i, r))
        P(self.pv(i - 1, 1))
        for r in range(6, 9):
            P(self.ex(i, r))
        P(self.sm(i - 1, 1))
        for r in range(9, 11):
            P(self.ex(i, r))
        P(self.pv(i, 0))
        for r in range(11, 14):
            P(self.ex(i, r))
        P(self.sm(i, 0))
        for r in range(14, 16):
            P(self.ex(i, r))
        P("s_nop 1")
        P(self.sm(i, 1))
        P(self.pv(i, 1))
        self.pub_offsets(OP, None)
        self.stamp(7)
        lo, hi = (2.0 ** -60, 2.0 ** 60) if not self.force_fallback else (1.0, 0.5)
        P(f"v_min_f32 {v(A[4])}, {v(self.LA_)}, {v(self.LA_+4)}")
        P(f"v_add_f32 {v(A[5])}, {v(self.LA_)}, {v(self.LA_+4)}")
        P(f"v_cmp_nle_f32 vcc, {f32(lo)}, {v(A[4])}")
        P(f"s_mov_b64 {s(T[2],2)}, vcc")
        P(f"v_cmp_nge_f32 vcc, {f32(hi)}, {v(A[5])}")
        P(f"s_or_b64 {s(T[2],2)}, {s(T[2],2)}, vcc")
        P("s_cbranch_scc1 L_fallback")
        P("L_att_fin:")
        for hd in range(2):
            P(f"v_rcp_f32 {v(A[4+hd])}, {v(self.LA_+4*hd)}")
        for hd in range(2):
            for r in range(16):
                P(f"v_mul_f32 {v(self.O_+16*hd+r)}, {v(A[4+hd])}, {v(self.O_+16*hd+r)}")
            for r in range(8):
                P(f"v_cvt_pk_bf16_f32 {v(PK+8*hd+r)}, {v(self.O_+16*hd+2*r)}, {v(self.O_+16*hd+2*r+1)}")
            for m in range(2):
                P(f"buffer_store_dwordx4 {v(PK+8*hd+4*m,4)}, {v(vL16)}, {srd(WS)}, {s(sPUB)} offen offset:{2048*hd+1024*m} sc1")
        self.gemm_a_addr(OP)
        P.wait_all()
        self.arrive(sCO, 8)
        P("s_barrier")

    def wp_chunk(self, c, i):
        P = self.P
        if i == 0:
            P(f"s_add_u32 m0, {s(sW4K)}, {((c+8)%10)*16384}")
            P(f"s_add_u32 {s(sKS)}, {s(sKS)}, 16384")
        P.vm(f"buffer_load_dwordx4 {v(vL16)}, {srd(WS)}, {s(sKS)} offen offset:{1024*i} sc1 lds", ("C", c))

    EXA, EXB, B2P = 160, 188, 192

    def p3(self):
        P = self.P
        l = v(vLANE)
        skip = P.newlabel("pkw")
        P(f"s_cmp_lg_u32 {s(sL)}, 0")
        P(f"s_cbranch_scc1 {skip}")
        self.two_level_issue(8)
        self.two_level_finish(8)
        P(f"{skip}:")
        self.poll_issue(sCO, 8)
        P(f"v_lshrrev_b32 {v(A[4])}, 5, {l}")
        P(f"v_lshlrev_b32 {v(A[5])}, 4, {v(A[4])}")
        P(f"s_lshl_b32 {s(T[0])}, {s(sFS)}, 7")
        for i in range(4):
            P.vm(f"buffer_load_dwordx4 {v(self.B2P+4*i,4)}, {v(A[5])}, {srd(B2)}, {s(T[0])} offen offset:{32*i}", "b2")
        P(f"v_and_b32 {v(A[5])}, 0x13, {l}")
        P(f"v_bfe_u32 {v(vTMP)}, {l}, 2, 1")
        P(f"v_lshl_or_b32 {v(A[5])}, {v(vTMP)}, 3, {v(A[5])}")
        P(f"v_bfe_u32 {v(vTMP)}, {l}, 3, 1")
        P(f"v_lshl_or_b32 {v(A[5])}, {v(vTMP)}, 2, {v(A[5])}")
        P(f"v_lshlrev_b32 {v(A[5])}, 1, {v(A[5])}")
        P(f"v_lshl_or_b32 {v(A[5])}, {v(A[4])}, 30, {v(A[5])}")
        P(f"s_mul_i32 {s(T[0])}, {s(sJ)}, 448")
        CT, BT = 96, 124
        for t in range(7):
            P.vm(f"buffer_load_ushort {v(BT+t)}, {v(A[5])}, {srd(B1)}, {s(T[0])} offen offset:{64*t}", "b1")
        P(f"v_and_b32 {v(vTMP)}, 31, {l}")
        P(f"v_lshlrev_b32 {v(vTMP)}, 2, {v(vTMP)}")
        P(f"v_mul_u32_u24 {v(A[4])}, {4*14336}, {v(A[4])}")
        P(f"v_add_u32 {v(A[4])}, {v(A[4])}, {v(vTMP)}")
        P(f"s_mul_i32 {s(sKS)}, {s(sJ)}, {896*1024}")
        P(f"s_add_u32 {s(sKS)}, {s(sKS)}, {s(sW4K)}")
        P(f"s_add_u32 {s(sKS)}, {s(sKS)}, {WP - 16384}")
        P(f"s_mul_i32 {s(T[1])}, {s(sJ)}, 896")
        P(f"s_add_u32 {s(T[1])}, {s(T[1])}, {CS}")
        self.stamp(8)
        self.poll_check(sCO, 8, 16)
        self.stamp(9)
        for p in range(self.o["LA"]):
            self.xload(p)

        def h_pk_issue():
            P(f"s_lshl_b32 {s(T[2])}, {s(sTAU)}, 7")
            self.poll_issue(T[2], CT_REP + 8)

        def h_pk_check():
            self.poll_check(T[2], CT_REP + 8, 16)

        def h_cs(e):
            def f():
                for t in range(7):
                    P.vm(f"buffer_load_dword {v(CT+4*t+e)}, {v(A[4])}, {srd(WS)}, {s(T[1])} offen offset:{128*t} sc1", "cs")
                P(f"s_add_u32 {s(T[1])}, {s(T[1])}, 14336")
            return f

        def h_w(c):
            def f():
                for i in range(4):
                    self.wp_chunk(c, i)
            return f
        hooks = {30: h_pk_issue, 50: h_pk_check, 55: h_cs(0), 56: h_cs(1), 57: h_cs(2), 58: h_cs(3), 60: h_w(0), 62: h_w(1)}
        self.gemm_a(R, False, self.o["LA"], [], hooks)
        self.pub_offsets(X1P, ST1)
        self.stamp(10)
        self.pack_R()
        self.stats_and_store(sPUB, sSTO)
        P("s_barrier")
        for c in range(2, 4):
            for i in range(4):
                self.wp_chunk(c, i)
        P.wait(vm="pub")
        self.arrive(sCO, 16)
        fl = []
        for t in range(7):
            fl.append(f"v_add_f32 {v(CT+4*t)}, {v(CT+4*t)}, {v(CT+4*t+1)}")
            fl.append(f"v_add_f32 {v(CT+4*t+2)}, {v(CT+4*t+2)}, {v(CT+4*t+3)}")
            fl.append(f"v_lshlrev_b32 {v(BT+t)}, 16, {v(BT+t)}")
            fl.append(f"v_add_f32 {v(CT+4*t)}, {v(CT+4*t)}, {v(CT+4*t+2)}")
            fl += self.cs_frag_list(self.EXA + 4 * t, CT + 4 * t, BT + t, CT + 4 * t + 1)
        fl += self.unpack_list(R, PK, 16)
        npre = self.o["npre"]
        nd = (npre - 4) * 4
        k = 0
        for c in range(4, npre):
            for i in range(4):
                self.wp_chunk(c, i)
                k += 1
                while fl and len(fl) > (nd - k) * 8:
                    P(fl.pop(0))
                if k == nd - 4:
                    self.poll_issue(sCO, 16)
        for t in fl:
            P(t)
        P(f"s_lshl_b32 {s(T[0])}, {s(sTT)}, 16")
        P(f"s_add_u32 {s(T[0])}, {s(T[0])}, {s(sLB)}")
        P(f"s_add_u32 {s(T[0])}, {s(T[0])}, {X1P}")
        P(f"v_add_u32 {v(A[0])}, {s(T[0])}, {v(vL16)}")
        P(f"s_lshl_b32 {s(sXK)}, {s(sJJ)}, 13")
        P(f"s_lshl_b32 {s(T[0])}, {s(sTT)}, 12")
        P(f"s_add_u32 {s(T[0])}, {s(T[0])}, {s(sLB)}")
        P(f"s_add_u32 {s(T[0])}, {s(T[0])}, {ST1}")
        self.stamp(11)
        self.poll_check(sCO, 16, 16)
        self.stamp(12)

    def mlp(self):
        P = self.P
        o = self.o
        NB, DSL = o["NB"], o["DSL"]
        NQ1 = 112 - NB
        BLK = [64, 80, 96, 112]
        WF, ST, C1, C2, SD, TM = 128, 208, 224, 225, 226, 228
        SEND = [BLK[3], BLK[0]]
        PIN = BLK[1]
        steps = []
        tile_end = {}
        for p in range(64):
            for t in range(2):
                steps.append(dict(f=2 * p + t, x=("X", p), slot=p, acc=BLK[t], z=p == 0))
        for t in range(2):
            steps.append(dict(ex=t, acc=BLK[t]))
            tile_end[t] = len(steps) - 1
        x_dead = {}
        for t in range(2, 7):
            for p in range(64):
                steps.append(dict(f=128 + (t - 2) * 64 + p, x=None, slot=p, acc=BLK[t & 3], z=p == 0))
                if t == 6:
                    x_dead[p] = len(steps) - 1
            steps.append(dict(ex=t, acc=BLK[t & 3]))
            tile_end[t] = len(steps) - 1
        mlp2_start = len(steps)
        h_use = {}
        f = 448
        for q in range(NQ1):
            h_use[q] = len(steps)
            for k in range(4):
                steps.append(dict(f=f, x=("H", q), slot=q & 63, acc=SEND[k] if k < 2 else R + 16 * (k - 2), z=(q == 0 and k < 2)))
                f += 1
            if q + 64 < 112:
                x_dead[q + 64] = len(steps) - 1
        for q in range(NQ1, 112):
            h_use[q] = len(steps)
            for k in range(2):
                steps.append(dict(f=f, x=("H", q), slot=q & 63, acc=SEND[k], z=False))
                f += 1
        passb = len(steps)
        for q in range(NQ1, 112):
            for k in range(2):
                steps.append(dict(f=f, x=None, slot=q & 63, acc=R + 16 * k, z=False))
                f += 1
        N = len(steps)
        fstep = {st["f"]: i for i, st in enumerate(steps) if "f" in st}
        bar_step = {c: (fstep[16 * c - DSL] if c else -1) for c in range(56)}
        bar_at = {st: c for c, st in bar_step.items()}

        P(f"v_mov_b32 {v(A[1])}, {v(vL16)}")
        P(f"v_add_u32 {v(A[2])}, 0x10000, {v(vL16)}")
        P(f"v_add_u32 {v(A[3])}, 0x20000, {v(vL16)}")
        nx0 = o["LA"]
        for i in range(16):
            P.vm(f"buffer_load_dword {v(ST+i)}, {v(vL4)}, {srd(WS)}, {s(T[0])} offen offset:{256*i} sc1", "st")
            if i == 7:
                for p in range(4):
                    self.xload(p)
        for p in range(4, nx0):
            self.xload(p)
        P(f"s_mul_i32 {s(T[0])}, {s(sTT)}, {224*1024}")
        P(f"s_add_u32 {s(T[0])}, {s(T[0])}, {s(sLB)}")
        P(f"s_add_u32 {s(T[0])}, {s(T[0])}, {HP}")
        P(f"s_mul_i32 {s(T[1])}, {s(sJ)}, 14336")
        P(f"s_add_u32 {s(sPUB)}, {s(T[0])}, {s(T[1])}")
        P(f"s_mul_i32 {s(T[1])}, {s(sKH)}, {112*1024}")
        P(f"s_add_u32 {s(T[0])}, {s(T[0])}, {s(T[1])}")
        P(f"v_add_u32 {v(A[4])}, {s(T[0])}, {v(vL16)}")
        for r in range(8):
            P(f"s_add_u32 {s(T[0])}, {s(sJJ)}, {r}")
            P(f"s_and_b32 {s(T[0])}, {s(T[0])}, 7")
            P(f"s_mul_i32 {s(ARR+r)}, {s(T[0])}, 14336")
        sHC, sPF, sPM, sPO, sPI = ARR + 8, ARR + 9, ARR + 10, ARR + 11, ARR + 12
        P(f"s_lshl_b32 {s(T[0])}, {s(sKH)}, 7")
        P(f"s_add_u32 {s(sHC)}, {s(sCO)}, {s(T[0])}")
        P(f"s_lshl_b32 {s(T[0])}, {s(sTT)}, 9")
        P(f"s_lshl_b32 {s(T[1])}, {s(sL)}, 6")
        P(f"s_add_u32 {s(T[0])}, {s(T[0])}, {s(T[1])}")
        P(f"s_lshl2_add_u32 {s(sPM)}, {s(sJ)}, {s(T[0])}")
        P(f"s_xor_b32 {s(sPF)}, {s(sPM)}, 32")
        P(f"s_lshl4_add_u32 {s(T[0])}, {s(sTT)}, {s(sJ)}")
        P(f"s_lshl_b32 {s(T[0])}, {s(T[0])}, 13")
        P(f"s_add_u32 {s(T[0])}, {s(T[0])}, {s(sLB)}")
        P(f"s_add_u32 {s(sPI)}, {s(T[0])}, {PART}")
        P(f"s_xor_b32 {s(sPO)}, {s(sPI)}, {8 << 13}")

        def dsread(f):
            c, i = f >> 4, f & 15
            addr = ((c + 8) % 10) * 16384 + i * 1024
            P.lg(f"ds_read_b128 {v(WF+4*(f&7),4)}, {v(A[1+(addr>>16)])} offset:{addr & 0xffff}", ("F", f))

        def hload(q):
            t, r = q >> 4, q & 15
            if r == 0 and t and t & 1 == 0:
                P(f"v_add_u32 {v(A[4])}, 4096, {v(A[4])}")
            P.vm(f"buffer_load_dwordx4 {a(4*(q&63),4)}, {v(A[4])}, {srd(WS)}, {s(ARR+(r>>1))} offen offset:{2048*(t&1)+1024*(r&1)} sc1", ("H", q))

        polA_issue, polA_check = tile_end[5] - 20, tile_end[5] - 2
        polB_check = mlp2_start + o.get("bchk", 125)
        polB_issue = polB_check - 20
        polP_check = N - o.get("pchk", 26)
        polP_issue = polP_check - 18

        ops = []
        for p in range(nx0, 64):
            ops.append(dict(dl=2 * p, av=0, fn=(lambda p=p: self.xload(p)), k="x"))
        for c in range(o["npre"], 56):
            for i in range(4):
                av = bar_step[c - 8] + 1 if c >= 10 else 0
                ops.append(dict(dl=bar_step[c], av=av, fn=(lambda c=c, i=i: self.wp_chunk(c, i)), k="w"))
        for q in range(112):
            av = max(x_dead[q] + 1, polA_check + 1 if q < 64 else polB_check + 1)
            ops.append(dict(dl=h_use[q], av=av, fn=(lambda q=q: hload(q)), k="h"))
        queues = {k: [x for x in ops if x["k"] == k] for k in "xwh"}

        fill = []
        k1 = -2 * math.sqrt(2 / math.pi) * math.log2(math.e)
        sl = self.stat_sum_list(ST)
        sl += [f"v_add_f32 {v(ST+2)}, {f32(1e-5)}, {v(ST+1)}", f"v_rsq_f32 {v(ST+2)}, {v(ST+2)}",
               f"v_mul_f32 {v(ST+3)}, {v(ST+1)}, {v(ST+2)}", f"v_fmaak_f32 {v(ST+3)}, {v(ST+3)}, {v(ST+2)}, {f32(1e-5)}",
               f"v_rsq_f32 {v(ST+3)}, {v(ST+3)}", f"v_mul_f32 {v(ST+2)}, {v(ST+2)}, {v(ST+3)}",
               f"v_rcp_f32 {v(SD)}, {v(ST+2)}", f"v_mul_f32 {v(C1)}, {f32(k1)}, {v(ST+2)}",
               f"v_mul_f32 {v(C2)}, {v(ST+2)}, {v(ST+2)}", f"v_mul_f32 {v(C2)}, {v(C2)}, {v(C1)}",
               f"v_mul_f32 {v(C2)}, {f32(0.044715)}, {v(C2)}"]
        sl += self.stat_frag_list(self.EXB, ST, SD, ST + 4)
        fill += [(12, 8, t) for t in sl]
        for half in range(2):
            fill += [(12, 4, t) for t in self.unpack_list(TM, self.B2P + 8 * half, 8)]
            fill += [(12, 4, f"v_add_f32 {v(R+16*half+i)}, {v(R+16*half+i)}, {v(TM+i)}") for i in range(16)]

        def hstore(t, m):
            def f():
                if m == 0 and t and t & 1 == 0:
                    P(f"s_add_u32 {s(sPUB)}, {s(sPUB)}, 4096")
                P.vm(f"buffer_store_dwordx4 {v(PK+8*(t&1)+4*m,4)}, {v(vL16)}, {srd(WS)}, {s(sPUB)} offen offset:{2048*(t&1)+1024*m} sc1", ("hs", t))
            return f
        for t in range(7):
            st0 = tile_end[t] + 5
            b = BLK[t & 3]
            for g in range(4):
                e = [b + 4 * g + i for i in range(4)]
                tm = [TM + 4 * (g & 1) + i for i in range(4)]
                fill += [(st0, 4, f"v_mul_f32 {v(tm[i])}, {v(e[i])}, {v(e[i])}") for i in range(4)]
                fill += [(st0, 4, f"v_fma_f32 {v(tm[i])}, {v(tm[i])}, {v(C2)}, {v(C1)}") for i in range(4)]
                fill += [(st0, 4, f"v_mul_f32 {v(tm[i])}, {v(tm[i])}, {v(e[i])}") for i in range(4)]
                fill += [(st0, 8, f"v_exp_f32 {v(tm[i])}, {v(tm[i])}") for i in range(4)]
                fill += [(st0, 4, f"v_fma_f32 {v(tm[i])}, {v(tm[i])}, {v(SD)}, {v(SD)}") for i in range(4)]
                fill += [(st0, 8, f"v_rcp_f32 {v(tm[i])}, {v(tm[i])}") for i in range(4)]
                fill += [(st0, 4, f"v_mul_f32 {v(tm[i])}, {v(tm[i])}, {v(e[i])}") for i in range(4)]
                fill += [(st0, 4, f"v_cvt_pk_bf16_f32 {v(PK+8*(t&1)+2*g+i)}, {v(tm[2*i])}, {v(tm[2*i+1])}") for i in range(2)]
                if g & 1:
                    fill.append((st0, -1, hstore(t, g >> 1)))
            fill.append((st0, 0, ("done", t)))

        def pstore(i):
            def f():
                if i == 4:
                    P(f"s_add_u32 {s(sPO)}, {s(sPO)}, 4096")
                P.vm(f"buffer_store_dwordx4 {v(SEND[i>>2]+4*(i&3),4)}, {v(vL16)}, {srd(WS)}, {s(sPO)} offen offset:{1024*(i&3)} sc1", "ps")
            return f

        def pload(i):
            def f():
                if i == 4:
                    P(f"s_add_u32 {s(sPI)}, {s(sPI)}, 4096")
                P.vm(f"buffer_load_dwordx4 {v(PIN+4*i,4)}, {v(vL16)}, {srd(WS)}, {s(sPI)} offen offset:{1024*(i&3)} sc1", "pl")
            return f
        fill += [(passb + 5, -1, pstore(i)) for i in range(8)]
        fill.append((passb + 5, 0, ("done", "p")))
        fill += [(polP_check + 1, -1, pload(i)) for i in range(8)]

        pending = {}
        arrivals = {3: (("hs", 3), sHC, 128), 6: (("hs", 6), sHC, 136), "p": ("ps", sPF, 384)}
        epi_done = {}
        P.wait(vm=("C", 0))
        P("s_barrier")
        for f in range(DSL):
            dsread(f)
        credit = 0.0
        for i, st in enumerate(steps):
            if i == mlp2_start:
                self.stamp(13)
            if i == passb:
                self.stamp(14)
            if "f" in st:
                want_l = ("F", st["f"])
                if want_l in P.lgq and st["f"] + 1 < 896 and ("F", st["f"] + 1) in P.lgq and DSL >= 4:
                    want_l = ("F", st["f"] + 1)
                elif want_l not in P.lgq:
                    want_l = None
                P.wait(vm=st["x"], lg=want_l)
                if st["z"]:
                    for t, b in enumerate(BLK):
                        if b == st["acc"] and i > 130:
                            prev = [tt for tt in range(7) if BLK[tt & 3] == b and tile_end[tt] < i]
                            assert not prev or prev[-1] in epi_done, ("accumulator reused before its epilogue", i)
                c = "0" if st["z"] else v(st["acc"], 16)
                P(f"v_mfma_f32_32x32x16_bf16 {v(st['acc'],16)}, {v(WF+4*(st['f']&7),4)}, {a(4*st['slot'],4)}, {c}")
            else:
                assert not any(x[0] == 12 for x in fill)
                P(f"v_mfma_f32_32x32x16_bf16 {v(st['acc'],16)}, {v(self.EXA+4*st['ex'],4)}, {v(self.EXB,4)}, {v(st['acc'],16)}")
            budget = o["budget"]
            if i in bar_at:
                assert not any(x["dl"] <= i for x in queues["w"])
                P.wait(vm=("C", bar_at[i]))
                P("s_barrier")
                budget -= 8
            if i == 11:
                P.wait(vm="st")
            if i == polA_issue:
                self.poll_issue(sHC, 128)
            if i == polB_issue:
                self.poll_issue(sHC, 136)
            if i == polP_issue:
                self.poll_issue(sPM, 384)
            if i == polA_check:
                assert 3 in epi_done and 3 not in pending
                self.poll_check(sHC, 128, 8)
            if i == polB_check:
                assert 6 in epi_done and 6 not in pending
                self.poll_check(sHC, 136, 8)
            if i == polP_check:
                assert "p" in epi_done and "p" not in pending
                self.poll_check(sPM, 384, 1)
            if "f" in st and st["f"] + DSL < 896:
                dsread(st["f"] + DSL)
            credit = min(credit + o["rate"], 2.0)
            did_vm = False
            if fill and fill[0][0] <= i and fill[0][1] == -1:
                fill.pop(0)[2]()
                did_vm = True
            else:
                cand = [q[0] for q in queues.values() if q and q[0]["av"] <= i]
                if cand:
                    best = min(cand, key=lambda x: x["dl"])
                    if credit >= 1.0 or best["dl"] - i <= o["D"]:
                        queues[best["k"]].pop(0)
                        best["fn"]()
                        did_vm = True
            if did_vm:
                credit -= 1.0
                credit = max(credit, -1.0)
                budget -= 8
            for k in list(pending):
                tag, reg, imm = arrivals[k]
                if tag not in P.vmq or i - pending[k] >= o.get("arrw", 30):
                    P.wait(vm=tag)
                    self.arrive(reg, imm)
                    del pending[k]
            while fill and fill[0][0] <= i and 0 <= fill[0][1] <= budget:
                _, cost, t = fill.pop(0)
                if isinstance(t, tuple):
                    epi_done[t[1]] = i
                    if t[1] in arrivals:
                        pending[t[1]] = i
                else:
                    P(t)
                    budget -= cost
        assert not fill and not pending and not any(queues.values())
        self.info = dict(epi_done=epi_done, tile_end=tile_end, mlp2_start=mlp2_start, passb=passb, N=N)
        P(f"s_add_u32 {s(T[7])}, {s(sLB)}, {LSTRIDE}")
        self.pub_offsets(XP, STX, T[7])
        P.wait(vm="pl")
        self.stamp(15)
        P("s_nop 3")
        for i in range(32):
            P(f"v_add_f32 {v(R+i)}, {v(R+i)}, {v(PIN+i)}")
        self.pack_R()

    def build(self):
        P = self.P
        self.prologue()
        P("L_layer:")
        self.maybe_stop("p0")
        self.p1()
        self.maybe_stop("p1")
        self.p2()
        self.maybe_stop("p2")
        self.p3()
        self.maybe_stop("p3")
        self.mlp()
        P(f"s_cmp_lg_u32 {s(sL)}, 0")
        P("s_cbranch_scc1 L_out")
        self.stats_and_store(sPUB, sSTO)
        P("s_barrier")
        self.wkv_dma(0, 8)
        P(f"s_mov_b32 {s(sL)}, 1")
        P(f"s_add_u32 {s(sLB)}, {s(sLB)}, {LSTRIDE}")
        P(f"s_add_u32 {s(sCO)}, {s(sCO)}, 4")
        P(f"s_add_u32 {s(sCT)}, {s(sCT)}, 4")
        P.wait(vm="pub")
        self.arrive(sCO, 0)
        self.stamp(0)
        self.wkv_dma(8, 16)
        P("s_branch L_layer")
        P("L_fallback:")
        self.fallback()
        P("s_branch L_att_fin")
        P("L_out:")
        P(f"v_and_b32 {v(A[0])}, 31, {v(vLANE)}")
        P(f"v_lshlrev_b32 {v(A[0])}, 11, {v(A[0])}")
        P(f"v_lshrrev_b32 {v(vTMP)}, 5, {v(vLANE)}")
        P(f"v_lshl_or_b32 {v(A[0])}, {v(vTMP)}, 4, {v(A[0])}")
        P(f"s_lshl_b32 {s(sDS)}, {s(sTT)}, 16")
        P(f"s_lshl_b32 {s(sDL)}, {s(sFS)}, 7")
        P(f"s_add_u32 {s(sDS)}, {s(sDS)}, {s(sDL)}")
        for i in range(4):
            P(f"buffer_store_dwordx4 {v(PK+4*i,4)}, {v(A[0])}, {srd(OUT)}, {s(sDS)} offen offset:{32*i}")
        P("L_fin:")
        if self.stamps:
            P(f"s_mov_b32 {s(sL)}, 2")
            P("s_waitcnt vmcnt(0)")
            self.stamp(0)
            P(f"s_lshl2_add_u32 {s(T[0])}, s2, {s(sW)}")
            P(f"s_lshl_b32 {s(T[0])}, {s(T[0])}, 8")
            P(f"s_add_u32 {s(T[0])}, {s(T[0])}, {STAMP}")
            P(f"buffer_store_dword {v(vSTAMP)}, {v(vL4)}, {srd(WS)}, {s(T[0])} offen")
        if self.stop and len(self.stop) > 2:
            P(f"s_lshl2_add_u32 {s(T[0])}, s2, {s(sW)}")
            P(f"s_lshl_b32 {s(T[0])}, {s(T[0])}, 12")
            for i in range(4):
                P(f"buffer_store_dwordx4 {v(self.stop[2]+4*i,4)}, {v(vL16)}, {srd(OUT)}, {s(T[0])} offen offset:{1024*i}")
        P("L_end:")
        P("s_endpgm")
        body, nops = P.finish()
        self.nops = nops
        ref = open(REF).read().split("\n")
        head = [x for x in ref if x.startswith(";") and "@launch" not in x and "Override" not in x and "grid=ceil" not in x]
        txt = "\n".join(head) + "\n; @launch grid=(256,1,1) block=(256,1,1) lds=163840\n"
        txt += f""".amdgcn_target "amdgcn-amd-amdhsa--gfx950"
.text
.globl {NAME}
.p2align 8
.type {NAME},@function
{NAME}:
{body}.section .rodata,"a"
.p2align 6
.amdhsa_kernel {NAME}
  .amdhsa_next_free_vgpr 512
  .amdhsa_next_free_sgpr 102
  .amdhsa_accum_offset 256
  .amdhsa_group_segment_fixed_size 0
  .amdhsa_kernarg_size 104
  .amdhsa_user_sgpr_count 2
  .amdhsa_user_sgpr_kernarg_segment_ptr 1
  .amdhsa_system_sgpr_workgroup_id_x 1
.end_amdhsa_kernel
"""
        return txt


if __name__ == "__main__":
    g = Gen()
    txt = g.build()
    out = sys.argv[1] if len(sys.argv) > 1 else "k.s"
    open(out, "w").write(txt)
    print("nops", g.nops, "bytes", len(txt), g.info)
```

```python
import math, struct, sys
from dsl import Prog, v, a, s

NAME = "interleave_layers__grouped_kv_mqa__mixer_channel_mlp__prompt_kernel"
REF = "interleave_layers__grouped_kv_mqa__mixer_channel_mlp__prompt.s.ref"

MB = 1 << 20
CTR = 0
CTR_BYTES = 36864
CT_TEAM = 32768
CT_REP = 32768 + 2048
CS = 0x10000
STAMP = 0x40000
WP = 1 * MB
LAYER0 = 16 * MB
LSTRIDE = 48 * MB
XP = 0
OP = 4 * MB
X1P = 8 * MB
PART = 12 * MB
HP = 20 * MB
KV = 36 * MB
STX = 37 * MB
ST1 = 38 * MB
WS_BYTES = 256 * MB
OOB = 0x40000000

RING = 131072
KVR = RING + 16384
CSQ = RING + 24576

WS, X0, WQ, WKV, WO, PKS, B1, B2, OUT, DBG, CODE = 4, 8, 12, 16, 20, 24, 28, 32, 36, 40, 44
sW, sTAU, sJJ, sKH, sJ, sFS, sTT, sL, sLB, sPD, sTO, sCO = range(48, 60)
T = list(range(60, 68))
ARR = 68
sTRIP, sXK, sDS, sDL, sSA, sSB, sKS, sCT, sONE, sPUB, sSTO, sCSO, sW4K, sPD2 = range(84, 98)
sTM = 98

vLANE, vL16, vL4, vTRA, vTRB, vDS2K, vSTAMP, vTMP = range(8)
A = list(range(8, 16))
R = 16
PK = 48


def f32(x):
    return "0x%08x" % struct.unpack("<I", struct.pack("<f", x))[0]


def srd(n):
    return s(n, 4)


class Gen:
    def __init__(self, stop=None, stamps=False, force_fallback=False, **kw):
        self.P = Prog()
        self.stop = stop
        self.stamps = stamps
        self.force_fallback = force_fallback
        self.o = dict(LA=10, NB=48, rate=0.42, D=22, DSL=5, npre=8, budget=20, span=2)
        self.o.update(kw)

    def stamp(self, i):
        if not self.stamps:
            return
        P = self.P
        P(f"{'s_memtime' if self.stamps == 2 else 's_memrealtime'} {s(sTM,2)}")
        P(f"s_mov_b32 {s(sTM+3)}, m0")
        P(f"s_lshl_b32 {s(sTM+2)}, {s(sL)}, 4")
        P(f"s_add_u32 m0, {s(sTM+2)}, {i}")
        P.wait_all(vm=False)
        P(f"v_writelane_b32 {v(vSTAMP)}, {s(sTM)}, m0")
        P(f"s_mov_b32 m0, {s(sTM+3)}")

    def maybe_stop(self, name):
        if self.stop and self.stop[0] == name:
            self.P(f"s_cmp_eq_u32 {s(sL)}, {self.stop[1]}")
            self.P("s_cbranch_scc1 L_fin")

    def arrive(self, off_sgpr, imm):
        self.P(f"s_atomic_add {s(sONE)}, {s(WS,2)}, {s(off_sgpr)} offset:{imm}")

    def poll_issue(self, off_sgpr, imm, dst=sPD):
        self.P(f"s_mov_b32 {s(dst)}, 0")
        self.P(f"s_atomic_add {s(dst)}, {s(WS,2)}, {s(off_sgpr)} offset:{imm} glc")

    def poll_check(self, off_sgpr, imm, target, dst=sPD):
        P = self.P
        top, done = P.newlabel("poll"), P.newlabel("polled")
        P(f"s_mov_b32 {s(sTO)}, 0")
        P(f"{top}:")
        P.wait_all(vm=False)
        P(f"s_cmp_ge_u32 {s(dst)}, {target}")
        P(f"s_cbranch_scc1 {done}")
        P(f"s_add_u32 {s(sTO)}, {s(sTO)}, 1")
        P(f"s_cmp_ge_u32 {s(sTO)}, 0x20000")
        P(f"s_cbranch_scc1 {done}")
        self.poll_issue(off_sgpr, imm, dst)
        P(f"s_branch {top}")
        P(f"{done}:")

    def two_level_issue(self, word):
        P = self.P
        skip = P.newlabel("tl")
        P(f"s_mov_b32 {s(sPD2)}, 1")
        P(f"s_cmp_lg_u32 {s(sW)}, 0")
        P(f"s_cbranch_scc1 {skip}")
        P(f"s_atomic_add {s(sPD2)}, {s(WS,2)}, {s(sCT)} offset:{CT_TEAM + word} glc")
        P(f"{skip}:")

    def two_level_finish(self, word):
        P = self.P
        skip = P.newlabel("tl")
        P.wait_all(vm=False)
        P(f"s_cmp_lg_u32 {s(sPD2)}, 15")
        P(f"s_cbranch_scc1 {skip}")
        P(f"s_lshl_b32 {s(T[7])}, {s(sL)}, 2")
        for t in range(16):
            P(f"s_atomic_add {s(sONE)}, {s(WS,2)}, {s(T[7])} offset:{CT_REP + 128*t + word}")
        P(f"{skip}:")

    def stats_and_store(self, so_pk, so_st):
        P = self.P
        for i in range(4):
            P.vm(f"buffer_store_dwordx4 {v(PK+4*i,4)}, {v(vL16)}, {srd(WS)}, {s(so_pk)} offen offset:{1024*i} sc1", "pub")
        t0 = 64
        P(f"s_mov_b32 {s(T[6])}, 0x3f803f80")
        for i in range(16):
            c1 = "0" if i < 2 else v(t0 + (i & 1))
            c2 = "0" if i < 2 else v(t0 + 2 + (i & 1))
            P(f"v_dot2_f32_bf16 {v(t0+(i&1))}, {v(PK+i)}, {s(T[6])}, {c1}")
            P(f"v_dot2_f32_bf16 {v(t0+2+(i&1))}, {v(PK+i)}, {v(PK+i)}, {c2}")
        P(f"v_add_f32 {v(t0)}, {v(t0)}, {v(t0+1)}")
        P(f"v_add_f32 {v(t0+2)}, {v(t0+2)}, {v(t0+3)}")
        P(f"v_permlane32_swap_b32 {v(t0)}, {v(t0+2)}")
        P(f"v_add_f32 {v(t0)}, {v(t0)}, {v(t0+2)}")
        P.vm(f"buffer_store_dword {v(t0)}, {v(vL4)}, {srd(WS)}, {s(so_st)} offen sc1", "pub")

    def unpack_list(self, dst, src, n):
        out = []
        for i in range(n):
            out.append(f"v_lshlrev_b32 {v(dst+2*i)}, 16, {v(src+i)}")
            out.append(f"v_and_b32 {v(dst+2*i+1)}, 0xffff0000, {v(src+i)}")
        return out

    def pack_R(self):
        for i in range(16):
            self.P(f"v_cvt_pk_bf16_f32 {v(PK+i)}, {v(R+2*i)}, {v(R+2*i+1)}")

    def pub_offsets(self, xbuf, stbuf, lb=sLB):
        P = self.P
        P(f"s_lshl_b32 {s(sPUB)}, {s(sTT)}, 16")
        P(f"s_lshl_b32 {s(T[0])}, {s(sFS)}, 12")
        P(f"s_add_u32 {s(sPUB)}, {s(sPUB)}, {s(T[0])}")
        P(f"s_lshr_b32 {s(sSTO)}, {s(sPUB)}, 4")
        P(f"s_add_u32 {s(sPUB)}, {s(sPUB)}, {s(lb)}")
        P(f"s_add_u32 {s(sSTO)}, {s(sSTO)}, {s(lb)}")
        if xbuf:
            P(f"s_add_u32 {s(sPUB)}, {s(sPUB)}, {xbuf}")
        if stbuf is not None:
            P(f"s_add_u32 {s(sSTO)}, {s(sSTO)}, {stbuf}")

    def stat_sum_list(self, st):
        o = []
        for step in (8, 4, 2, 1):
            for i in range(step):
                o.append(f"v_add_f32 {v(st+i)}, {v(st+i)}, {v(st+i+step)}")
        o.append(f"v_mul_f32 {v(st)}, {f32(1/1024)}, {v(st)}")
        o.append(f"v_mov_b32 {v(st+1)}, {v(st)}")
        o.append(f"v_permlane32_swap_b32 {v(st)}, {v(st+1)}")
        o.append(f"v_fma_f32 {v(st+1)}, -{v(st)}, {v(st)}, {v(st+1)}")
        o.append(f"v_max_f32 {v(st+1)}, 0, {v(st+1)}")
        return o

    def stat_frag_list(self, ex, mean, sd, tmp):
        o = []
        sdv = v(sd) if sd is not None else "0"
        o.append(f"v_cvt_pk_bf16_f32 {v(ex+1)}, -{v(mean)}, {sdv}")
        o.append(f"v_lshlrev_b32 {v(tmp)}, 16, {v(ex+1)}")
        o.append(f"v_add_f32 {v(tmp)}, {v(tmp)}, {v(mean)}")
        o.append(f"v_cvt_pk_bf16_f32 {v(ex)}, -{v(mean)}, -{v(tmp)}")
        if sd is not None:
            o.append(f"v_and_b32 {v(tmp)}, 0xffff0000, {v(ex+1)}")
            o.append(f"v_sub_f32 {v(tmp)}, {v(sd)}, {v(tmp)}")
            o.append(f"v_cvt_pk_bf16_f32 {v(ex+2)}, {v(tmp)}, 0")
        else:
            o.append(f"v_mov_b32 {v(ex+2)}, 0")
        o.append(f"v_mov_b32 {v(ex+3)}, 0")
        return o

    def cs_frag_list(self, ex, cs, b, tmp):
        o = []
        bv = v(b) if b is not None else "0"
        o.append(f"v_cvt_pk_bf16_f32 {v(ex)}, {v(cs)}, {v(cs)}")
        o.append(f"v_and_b32 {v(tmp)}, 0xffff0000, {v(ex)}")
        o.append(f"v_sub_f32 {v(tmp)}, {v(cs)}, {v(tmp)}")
        o.append(f"v_cvt_pk_bf16_f32 {v(ex+1)}, {v(tmp)}, {bv}")
        if b is not None:
            o.append(f"v_lshrrev_b32 {v(ex+2)}, 16, {v(b)}")
        else:
            o.append(f"v_mov_b32 {v(ex+2)}, 0")
        o.append(f"v_mov_b32 {v(ex+3)}, 0")
        return o

    def wimg_setup(self, half):
        P = self.P
        P(f"s_lshl_b32 {s(sDL)}, {s(sTAU)}, 10")
        P(f"s_lshl_b32 {s(T[0])}, {s(sW)}, 1")
        P(f"s_add_u32 {s(T[0])}, {s(T[0])}, {half}")
        P(f"s_lshl_b32 {s(sSB)}, {s(T[0])}, 14")
        P(f"s_add_u32 {s(T[0])}, {s(T[0])}, {s(sJJ)}")
        P(f"s_and_b32 {s(T[0])}, {s(T[0])}, 7")
        P(f"s_lshl_b32 {s(sSA)}, {s(T[0])}, 18")
        P(f"s_lshl_b32 {s(T[0])}, {s(sFS)}, 7")
        P(f"s_add_u32 {s(sSA)}, {s(sSA)}, {s(T[0])}")

    def wimg_dma(self, rs, tag):
        P = self.P
        P(f"s_add_u32 m0, {s(sSB)}, {s(sDL)}")
        P(f"s_lshl4_add_u32 {s(sDS)}, {s(sDL)}, {s(sSA)}")
        P.vm(f"buffer_load_dwordx4 {v(vDS2K)}, {srd(rs)}, {s(sDS)} offen lds", tag)
        P(f"s_add_u32 {s(sDL)}, {s(sDL)}, 1024")
        P(f"s_and_b32 {s(sDL)}, {s(sDL)}, 0x3fff")

    def wkv_dma(self, n0, n1):
        P = self.P
        for g in range(n0 // 4, n1 // 4):
            P(f"s_add_u32 {s(T[0])}, {s(sTAU)}, {g}")
            P(f"s_and_b32 {s(T[0])}, {s(T[0])}, 3")
            P(f"s_lshl_b32 {s(T[0])}, {s(T[0])}, 12")
            P(f"s_lshl_b32 {s(T[1])}, {s(sW)}, 14")
            P(f"s_add_u32 {s(T[2])}, {s(T[1])}, {s(T[0])}")
            P(f"s_add_u32 {s(T[1])}, {s(T[2])}, {s(T[1])}")
            P(f"s_add_u32 m0, {s(T[1])}, 16384")
            for i in range(4):
                P.vm(f"buffer_load_dwordx4 {v(vL16)}, {srd(WKV)}, {s(T[2])} offen offset:{1024*i} lds", "wkv")

    def prologue(self):
        P = self.P
        P("s_cmp_ge_u32 s2, 256")
        P("s_cbranch_scc1 L_end")
        for reg, off in ((WS, 96), (X0, 0), (WQ, 8), (WO, 32), (T[4], 48), (B1, 56), (T[6], 64), (B2, 72), (OUT, 80), (DBG, 88)):
            P(f"s_load_dwordx2 {s(reg,2)}, s[0:1], {off}")
        P(f"s_load_dwordx4 {s(T[0],4)}, s[0:1], 16")
        P(f"v_lshrrev_b32 {v(vTMP)}, 6, v0")
        P(f"v_and_b32 {v(vLANE)}, 63, v0")
        P(f"v_readfirstlane_b32 {s(sW)}, {v(vTMP)}")
        for reg, n in ((WS, WS_BYTES), (X0, 4 * MB), (WQ, 2 * MB), (WKV, 65536), (WO, 2 * MB), (PKS, 7 * MB), (B1, 7168), (B2, 2048), (OUT, 4 * MB), (DBG, 256)):
            P(f"s_mov_b32 {s(reg+2)}, {n}")
            P(f"s_mov_b32 {s(reg+3)}, 0x00020000")
        sp = self.o["span"]
        if sp == 2:
            P(f"s_and_b32 {s(sKH)}, s2, 1")
            P(f"s_bfe_u32 {s(sJJ)}, s2, 0x30003")
            P(f"s_bfe_u32 {s(sTAU)}, s2, 0x20001")
            P(f"s_lshl_b32 {s(sTAU)}, {s(sTAU)}, 2")
            P(f"s_lshr_b32 {s(sJ)}, s2, 6")
            P(f"s_add_u32 {s(sTAU)}, {s(sTAU)}, {s(sJ)}")
        else:
            P(f"s_bfe_u32 {s(sKH)}, s2, 0x10006")
            P(f"s_bfe_u32 {s(sJJ)}, s2, 0x30003")
            P(f"s_and_b32 {s(sTAU)}, s2, 7")
            P(f"s_lshl_b32 {s(sTAU)}, {s(sTAU)}, 1")
            P(f"s_lshr_b32 {s(sJ)}, s2, 7")
            P(f"s_add_u32 {s(sTAU)}, {s(sTAU)}, {s(sJ)}")
        P(f"s_lshl3_add_u32 {s(sJ)}, {s(sKH)}, {s(sJJ)}")
        P(f"s_lshl1_add_u32 {s(sFS)}, {s(sJJ)}, {s(sKH)}")
        P(f"s_lshl2_add_u32 {s(sTT)}, {s(sTAU)}, {s(sW)}")
        P(f"s_mov_b32 {s(sL)}, 0")
        P(f"s_mov_b32 {s(sLB)}, {LAYER0}")
        P(f"s_mov_b32 {s(sONE)}, 1")
        P(f"s_lshl_b32 {s(sCO)}, {s(sTT)}, 9")
        P(f"s_lshl_b32 {s(sCT)}, {s(sTAU)}, 7")
        P(f"s_lshl_b32 {s(sW4K)}, {s(sW)}, 12")
        P(f"v_lshlrev_b32 {v(vL16)}, 4, {v(vLANE)}")
        P(f"v_lshlrev_b32 {v(vL4)}, 2, {v(vLANE)}")
        P(f"v_mov_b32 {v(vSTAMP)}, 0")
        P(f"v_and_b32 {v(A[0])}, 31, {v(vLANE)}")
        P(f"v_lshlrev_b32 {v(A[0])}, 11, {v(A[0])}")
        P(f"v_lshrrev_b32 {v(vTMP)}, 5, {v(vLANE)}")
        P(f"v_lshl_or_b32 {v(A[0])}, {v(vTMP)}, 4, {v(A[0])}")
        P(f"s_lshl_b32 {s(sDS)}, {s(sTT)}, 16")
        P(f"s_lshl_b32 {s(sDL)}, {s(sFS)}, 7")
        P(f"s_add_u32 {s(sDS)}, {s(sDS)}, {s(sDL)}")
        P.wait_all(vm=False)
        self.stamp(0)
        P(f"s_cmp_eq_u32 {s(sKH)}, 0")
        P(f"s_cselect_b32 {s(WKV)}, {s(T[0])}, {s(T[2])}")
        P(f"s_cselect_b32 {s(WKV+1)}, {s(T[1])}, {s(T[3])}")
        P("s_cmp_lt_u32 s2, 112")
        P(f"s_cselect_b32 {s(PKS)}, {s(T[4])}, {s(T[6])}")
        P(f"s_cselect_b32 {s(PKS+1)}, {s(T[5])}, {s(T[7])}")
        P("s_cmp_lg_u32 s2, 0")
        P("s_cbranch_scc1 L_nozero")
        for i in range(4):
            P(f"v_mov_b32 {v(64+i)}, 0")
        P(f"s_mul_i32 {s(T[0])}, {s(sW)}, {CTR_BYTES//4}")
        for i in range(CTR_BYTES // 4096):
            P(f"buffer_store_dwordx4 {v(64,4)}, {v(vL16)}, {srd(WS)}, {s(T[0])} offen sc1")
            P(f"s_add_u32 {s(T[0])}, {s(T[0])}, 1024")
        P("L_nozero:")
        for i in range(4):
            P.vm(f"buffer_load_dwordx4 {v(PK+4*i,4)}, {v(A[0])}, {srd(X0)}, {s(sDS)} offen offset:{32*i}", "x0")
        P("s_cmp_lg_u32 s2, 0")
        P("s_cbranch_scc1 L_noflag")
        P("s_waitcnt vmcnt(4)")
        P("s_barrier")
        P(f"s_cmp_lg_u32 {s(sW)}, 0")
        P("s_cbranch_scc1 L_noflag")
        P(f"s_atomic_add {s(sONE)}, {s(DBG,2)}, 0")
        P("L_noflag:")
        self.wkv_dma(0, 8)
        P(f"s_getpc_b64 {s(CODE,2)}")
        P("L_pc:")
        P(f"s_mov_b32 {s(CODE+2)}, L_end-L_pc")
        P(f"s_mov_b32 {s(CODE+3)}, 0x00020000")
        P(f"s_lshr_b32 {s(T[0])}, s2, 3")
        P(f"s_lshl2_add_u32 {s(T[0])}, {s(T[0])}, {s(sW)}")
        P(f"s_lshl_b32 {s(T[0])}, {s(T[0])}, 9")
        P(f"v_lshlrev_b32 {v(vTMP)}, 3, {v(vLANE)}")
        P.vm(f"buffer_load_dwordx2 {v(70,2)}, {v(vTMP)}, {srd(CODE)}, {s(T[0])} offen", "code")
        l = v(vLANE)
        P(f"v_lshrrev_b32 {v(A[1])}, 5, {l}")
        P(f"v_lshlrev_b32 {v(vTRA)}, 10, {v(A[1])}")
        P(f"v_bfe_u32 {v(A[1])}, {l}, 2, 2")
        P(f"v_lshl_or_b32 {v(vTRA)}, {v(A[1])}, 7, {v(vTRA)}")
        P(f"v_bfe_u32 {v(A[1])}, {l}, 3, 1")
        P(f"v_lshl_or_b32 {v(vTRA)}, {v(A[1])}, 6, {v(vTRA)}")
        P(f"v_bfe_u32 {v(A[1])}, {l}, 4, 1")
        P(f"v_lshl_or_b32 {v(vTRA)}, {v(A[1])}, 5, {v(vTRA)}")
        P(f"v_and_b32 {v(A[1])}, 1, {l}")
        P(f"v_lshl_or_b32 {v(vTRA)}, {v(A[1])}, 4, {v(vTRA)}")
        P(f"v_bfe_u32 {v(A[1])}, {l}, 1, 1")
        P(f"v_lshl_or_b32 {v(vTRA)}, {v(A[1])}, 3, {v(vTRA)}")
        P(f"s_lshl_b32 {s(T[0])}, {s(sW)}, 15")
        P(f"v_add_u32 {v(vTRA)}, {s(T[0])}, {v(vTRA)}")
        P(f"v_xor_b32 {v(vTRB)}, 64, {v(vTRA)}")
        P(f"v_lshrrev_b32 {v(A[1])}, 2, {l}")
        P(f"v_lshrrev_b32 {v(A[2])}, 4, {l}")
        P(f"v_xor_b32 {v(A[1])}, {v(A[1])}, {v(A[2])}")
        P(f"v_and_b32 {v(A[1])}, 1, {v(A[1])}")
        P(f"v_and_b32 {v(A[2])}, 3, {l}")
        P(f"v_lshlrev_b32 {v(A[2])}, 4, {v(A[2])}")
        P(f"v_lshl_or_b32 {v(A[2])}, {v(A[1])}, 6, {v(A[2])}")
        P(f"v_lshrrev_b32 {v(A[1])}, 3, {l}")
        P(f"v_lshl_or_b32 {v(vDS2K)}, {v(A[1])}, 11, {v(A[2])}")
        self.pub_offsets(XP, STX)
        P(f"v_mov_b32 {v(A[1])}, 0")
        P.wait(vm="x0")
        self.stats_and_store(sPUB, sSTO)
        P.vm(f"buffer_load_dword {v(68)}, {v(A[1])}, {srd(DBG)}, 0 offen sc1", "pub")
        self.wkv_dma(8, 16)
        P.wait(vm="pub")
        P(f"s_mov_b32 {s(sTO)}, 0")
        P("L_dbg:")
        P(f"v_readfirstlane_b32 {s(T[0])}, {v(68)}")
        P(f"s_cmp_lg_u32 {s(T[0])}, 0")
        P("s_cbranch_scc1 L_dbgok")
        P(f"s_add_u32 {s(sTO)}, {s(sTO)}, 1")
        P(f"s_cmp_ge_u32 {s(sTO)}, 0x20000")
        P("s_cbranch_scc1 L_dbgok")
        P(f"buffer_load_dword {v(68)}, {v(A[1])}, {srd(DBG)}, 0 offen sc1")
        P("s_waitcnt vmcnt(0)")
        P("s_branch L_dbg")
        P("L_dbgok:")
        self.arrive(sCO, 0)

    def gemm_a_addr(self, xbuf):
        P = self.P
        P(f"s_lshl_b32 {s(T[0])}, {s(sTT)}, 16")
        P(f"s_add_u32 {s(T[0])}, {s(T[0])}, {s(sLB)}")
        if xbuf:
            P(f"s_add_u32 {s(T[0])}, {s(T[0])}, {xbuf}")
        P(f"v_add_u32 {v(A[0])}, {s(T[0])}, {v(vL16)}")
        P(f"s_lshl1_add_u32 {s(sXK)}, {s(sW)}, {s(sJJ)}")
        P(f"s_lshl_b32 {s(sXK)}, {s(sXK)}, 13")
        P(f"s_and_b32 {s(sXK)}, {s(sXK)}, 0xffff")
        P(f"v_mov_b32 {v(A[1])}, {v(vTRA)}")
        P(f"v_mov_b32 {v(A[2])}, {v(vTRB)}")

    def xload(self, p):
        P = self.P
        P.vm(f"buffer_load_dwordx4 {a(4*p,4)}, {v(A[0])}, {srd(WS)}, {s(sXK)} offen offset:{1024*(p&3)} sc1", ("X", p))
        if p & 3 == 3:
            P(f"s_add_u32 {s(sXK)}, {s(sXK)}, 4096")
            P(f"s_and_b32 {s(sXK)}, {s(sXK)}, 0xffff")

    def gemm_a(self, acc, zero_init, nx, fill, hooks, csacc=None, ones=None):
        P = self.P
        WB = 64
        LA = self.o["LA"]

        def rd(p, t):
            if p & 15 == 0 and p and t == 0:
                for r in (A[1], A[2]):
                    P(f"v_add_u32 {v(r)}, 0x8000, {v(r)}")
                    P(f"v_and_b32 {v(r)}, 0x1ffff, {v(r)}")
            for e in range(2):
                P.lg(f"ds_read_b64_tr_b16 {v(WB+8*(p&3)+4*t+2*e,2)}, {v(A[1+t])} offset:{(p&15)*2048+e*512}", ("W", p, t))

        for p in range(2):
            rd(p, 0)
            rd(p, 1)
        fill = list(fill)
        for p in range(64):
            if p in hooks:
                hooks[p]()
            P.wait(vm=("X", p), lg=("W", p, 1))
            for t in range(2):
                c = "0" if (zero_init and p == 0) else v(acc + 16 * t, 16)
                P(f"v_mfma_f32_32x32x16_bf16 {v(acc+16*t,16)}, {v(WB+8*(p&3)+4*t,4)}, {a(4*p,4)}, {c}")
                if p + 2 < 64:
                    rd(p + 2, t)
                if t == 0:
                    n = 0
                    while fill and fill[0][0] <= p and n < 3:
                        P(fill.pop(0)[1])
                        n += 1
            while nx < min(64, p + LA + 1):
                self.xload(nx)
                nx += 1
            if csacc is not None and p < 16:
                for t in range(2):
                    c = "0" if p == 0 else v(csacc + 16 * t, 16)
                    P(f"v_mfma_f32_32x32x16_bf16 {v(csacc+16*t,16)}, {v(ones,4)}, {v(WB+8*(p&3)+4*t,4)}, {c}")
        for _, t in fill:
            P(t)

    def p1(self):
        P = self.P
        KW, KX, KA, KC, KS, ONES, QA, CSA, ST = 64, 128, 160, 168, 176, 184, 192, 224, 96
        l = v(vLANE)
        P.vmq = ["wkv"]
        self.wimg_setup(0)
        for i in range(16):
            self.wimg_dma(WQ, "wq0")
        for t in self.unpack_list(R, PK, 16):
            P(t)
        for i in range(4):
            P(f"v_mov_b32 {v(ONES+i)}, 0x3f803f80")
        P(f"v_lshrrev_b32 {v(A[4])}, 4, {l}")
        P(f"v_lshlrev_b32 {v(A[3])}, 9, {v(A[4])}")
        P(f"v_bfe_u32 {v(vTMP)}, {l}, 2, 2")
        P(f"v_lshl_or_b32 {v(A[5])}, {v(vTMP)}, 6, {v(A[3])}")
        P(f"v_and_b32 {v(vTMP)}, 3, {l}")
        P(f"v_lshl_or_b32 {v(A[5])}, {v(vTMP)}, 3, {v(A[5])}")
        P(f"s_lshl_b32 {s(T[0])}, {s(sW)}, 15")
        P(f"s_add_u32 {s(T[0])}, {s(T[0])}, 16384")
        P(f"v_add_u32 {v(A[5])}, {s(T[0])}, {v(A[5])}")
        P(f"v_and_b32 {v(vTMP)}, 15, {l}")
        P(f"v_lshl_or_b32 {v(A[3])}, {v(vTMP)}, 4, {v(A[3])}")
        P(f"v_lshlrev_b32 {v(A[6])}, 2, {v(vTMP)}")
        P(f"v_bfe_u32 {v(vTMP)}, {l}, 4, 1")
        P(f"v_lshl_or_b32 {v(A[6])}, {v(vTMP)}, 7, {v(A[6])}")
        P(f"v_lshrrev_b32 {v(vTMP)}, 5, {l}")
        P(f"v_lshl_or_b32 {v(A[6])}, {v(vTMP)}, 11, {v(A[6])}")
        P.wait(vm="wkv")
        for sx in range(8):
            for m in range(2):
                for e in range(2):
                    P.lg(f"ds_read_b64_tr_b16 {v(KW+8*sx+4*m+2*e,2)}, {v(A[5])} offset:{sx*2048+e*256+m*32}", ("kw", sx))
            if sx >= 2:
                P.wait(lg=("kw", sx - 2))
        P.wait_all(vm=False)
        P(f"s_lshr_b32 {s(T[4])}, {s(sJJ)}, 1")
        P(f"s_lshl2_add_u32 {s(T[4])}, {s(sTAU)}, {s(T[4])}")
        P(f"s_and_b32 {s(T[5])}, {s(sJJ)}, 1")
        P(f"s_lshl_b32 {s(T[3])}, {s(T[4])}, 9")
        P(f"s_lshl2_add_u32 {s(T[3])}, {s(sL)}, {s(T[3])}")
        self.poll_issue(T[3], 0)
        self.poll_issue(sCO, 0, sPD2)
        for sx in range(8):
            for m in range(2):
                c = "0" if sx == 0 else v(KC + 4 * m, 4)
                P(f"v_mfma_f32_16x16x32_bf16 {v(KC+4*m,4)}, {v(KW+8*sx+4*m,4)}, {v(ONES,4)}, {c}")
        self.gemm_a_addr(XP)
        self.wimg_setup(1)
        P(f"s_lshl_b32 {s(T[0])}, {s(T[4])}, 16")
        P(f"s_lshl_b32 {s(T[1])}, {s(T[5])}, 8")
        P(f"s_add_u32 {s(T[0])}, {s(T[0])}, {s(T[1])}")
        P(f"s_lshl2_add_u32 {s(T[0])}, {s(sW4K)}, {s(T[0])}")
        P(f"s_add_u32 {s(T[0])}, {s(T[0])}, {s(sLB)}")
        P(f"s_lshl_b32 {s(T[1])}, {s(T[4])}, 12")
        P(f"s_add_u32 {s(T[1])}, {s(T[1])}, {s(sLB)}")
        P(f"s_lshl_b32 {s(T[2])}, {s(T[5])}, 6")
        P(f"s_add_u32 {s(T[2])}, {s(T[2])}, {s(T[1])}")
        P(f"s_add_u32 {s(T[2])}, {s(T[2])}, {STX}")
        self.stamp(1)
        self.poll_check(T[3], 0, 16)
        self.stamp(2)
        for i in range(8):
            P.vm(f"buffer_load_dword {v(KS+i)}, {v(A[6])}, {srd(WS)}, {s(T[2])} offen offset:{256*i} sc1", "ks")
        for sx in range(8):
            P.vm(f"buffer_load_dwordx4 {v(KX+4*sx,4)}, {v(A[3])}, {srd(WS)}, {s(T[0])} offen offset:{2048*(sx&1)} sc1", ("kx", sx))
            if sx & 1:
                P(f"s_add_u32 {s(T[0])}, {s(T[0])}, 4096")
        for i in range(8):
            self.wimg_dma(WQ, "wq1")
        P(f"v_and_b32 {v(vTMP)}, 15, {l}")
        P(f"s_lshr_b32 {s(T[0])}, {s(sW4K)}, 1")
        P(f"s_add_u32 {s(T[0])}, {s(T[0])}, {KVR}")
        P(f"s_add_u32 {s(T[1])}, {s(T[1])}, {KV}")
        P(f"s_cmp_lg_u32 {s(sKH)}, 0")
        P("s_cbranch_scc1 L_vaddr")
        P(f"v_lshlrev_b32 {v(A[5])}, 7, {v(vTMP)}")
        P(f"v_lshl_or_b32 {v(A[6])}, {v(A[4])}, 5, {v(A[5])}")
        P(f"v_lshl_or_b32 {v(A[5])}, {v(A[4])}, 4, {v(A[5])}")
        P(f"v_mov_b32 {v(A[7])}, {v(A[3])}")
        P(f"s_lshl_b32 {s(T[2])}, {s(T[5])}, 8")
        P("s_branch L_kvaddr")
        P("L_vaddr:")
        P(f"v_lshlrev_b32 {v(A[5])}, 2, {v(vTMP)}")
        P(f"v_lshl_or_b32 {v(A[5])}, {v(A[4])}, 8, {v(A[5])}")
        P(f"v_and_b32 {v(A[6])}, 0x13, {l}")
        P(f"v_bfe_u32 {v(vTMP)}, {l}, 2, 1")
        P(f"v_lshl_or_b32 {v(A[6])}, {v(vTMP)}, 3, {v(A[6])}")
        P(f"v_bfe_u32 {v(vTMP)}, {l}, 3, 1")
        P(f"v_lshl_or_b32 {v(A[6])}, {v(vTMP)}, 2, {v(A[6])}")
        P(f"v_lshlrev_b32 {v(A[6])}, 6, {v(A[6])}")
        P(f"v_and_b32 {v(vTMP)}, 32, {l}")
        P(f"v_or_b32 {v(A[6])}, {v(vTMP)}, {v(A[6])}")
        P(f"v_mov_b32 {v(A[7])}, {v(vL16)}")
        P(f"s_lshl_b32 {s(T[2])}, {s(T[5])}, 10")
        P(f"s_add_u32 {s(T[2])}, {s(T[2])}, 2048")
        P("L_kvaddr:")
        P(f"s_add_u32 {s(T[1])}, {s(T[1])}, {s(T[2])}")
        P(f"s_cmp_eq_u32 {s(sW)}, 0")
        P(f"s_cselect_b32 {s(T[1])}, {s(T[1])}, {OOB}")
        P(f"v_add_u32 {v(A[5])}, {s(T[0])}, {v(A[5])}")
        P(f"v_add_u32 {v(A[6])}, {KVR}, {v(A[6])}")
        P.wait(vm="ks")
        for step in (4, 2, 1):
            for i in range(step):
                P(f"v_add_f32 {v(KS+i)}, {v(KS+i)}, {v(KS+i+step)}")
        P(f"v_mul_f32 {v(KS)}, {f32(1/1024)}, {v(KS)}")
        P(f"v_mov_b32 {v(KS+1)}, {v(KS)}")
        P(f"v_permlane32_swap_b32 {v(KS)}, {v(KS+1)}")
        P(f"v_add_f32 {v(KS)}, {v(KS)}, {v(KS+1)}")
        P(f"v_mov_b32 {v(KS+1)}, {v(KS)}")
        P(f"v_permlane16_swap_b32 {v(KS)}, {v(KS+1)}")
        P(f"v_fma_f32 {v(KS+1)}, -{v(KS)}, {v(KS)}, {v(KS+1)}")
        P(f"v_max_f32 {v(KS+1)}, 0, {v(KS+1)}")
        P(f"v_add_f32 {v(KS+1)}, {f32(1e-5)}, {v(KS+1)}")
        P(f"v_rsq_f32 {v(KS+1)}, {v(KS+1)}")
        for i in range(8):
            P(f"v_mul_f32 {v(KC+i)}, -{v(KS)}, {v(KC+i)}")
        for sx in range(8):
            P.wait(vm=("kx", sx))
            for m in range(2):
                P(f"v_mfma_f32_16x16x32_bf16 {v(KC+4*m,4)}, {v(KW+8*sx+4*m,4)}, {v(KX+4*sx,4)}, {v(KC+4*m,4)}")
        for i in range(8):
            P(f"v_mul_f32 {v(KA+i)}, {v(KS+1)}, {v(KC+i)}")
        P(f"s_cmp_lg_u32 {s(sKH)}, 0")
        P("s_cbranch_scc1 L_vwr")
        for m in range(2):
            P(f"ds_write_b128 {v(A[5])}, {v(KA+4*m,4)} offset:{64*m}")
        P("s_branch L_kvwr")
        P("L_vwr:")
        for m in range(2):
            for r in range(4):
                P(f"ds_write_b32 {v(A[5])}, {v(KA+4*m+r)} offset:{1024*m+64*r}")
        P("L_kvwr:")
        P.wait_all(vm=False)
        P("s_barrier")
        for w in range(4):
            for e in range(2):
                P.lg(f"ds_read_b128 {v(KX+8*w+4*e,4)}, {v(A[6])} offset:{2048*w+16*e}", ("kr", w))
        P.wait(lg=("kr", 1))
        for i in range(8):
            P(f"v_add_f32 {v(KX+i)}, {v(KX+i)}, {v(KX+8+i)}")
        P.wait(lg=("kr", 3))
        for i in range(8):
            P(f"v_add_f32 {v(KX+16+i)}, {v(KX+16+i)}, {v(KX+24+i)}")
        for i in range(8):
            P(f"v_add_f32 {v(KX+i)}, {v(KX+i)}, {v(KX+16+i)}")
        for i in range(4):
            P(f"v_cvt_pk_bf16_f32 {v(KA+i)}, {v(KX+2*i)}, {v(KX+2*i+1)}")
        P.vm(f"buffer_store_dwordx4 {v(KA,4)}, {v(A[7])}, {srd(WS)}, {s(T[1])} offen sc1", "kvst")
        self.poll_check(sCO, 0, 16, sPD2)
        self.stamp(3)
        for p in range(4):
            self.xload(p)
        for i in range(8):
            self.wimg_dma(WQ, "wq1")
        P.wait(vm="kvst")
        self.two_level_issue(0)
        for p in range(4, 8):
            self.xload(p)
        P(f"s_lshl_b32 {s(T[0])}, {s(sTT)}, 12")
        P(f"s_add_u32 {s(T[0])}, {s(T[0])}, {s(sLB)}")
        P(f"s_add_u32 {s(T[0])}, {s(T[0])}, {STX}")

        def h_stats():
            for i in range(16):
                P.vm(f"buffer_load_dword {v(ST+i)}, {v(vL4)}, {srd(WS)}, {s(T[0])} offen offset:{256*i} sc1", "st")

        def h_bar():
            P.wait(vm="wq1")
            P("s_barrier")

        def h_cs():
            P(f"v_permlane32_swap_b32 {v(CSA)}, {v(CSA+16)}")
            P(f"s_lshr_b32 {s(T[1])}, {s(sW4K)}, 4")
            P(f"s_add_u32 {s(T[1])}, {s(T[1])}, {CSQ}")
            P(f"v_add_u32 {v(vTMP)}, {s(T[1])}, {v(vL4)}")
            P.lg(f"ds_write_b32 {v(vTMP)}, {v(CSA)}", "csw")

        EXB, EXA = 112, 116
        c = math.log2(math.e) / math.sqrt(32)
        fill = []
        O_, LA_, SUMA = 128, 160, 188
        fill += [(0, f"v_mov_b32 {v(O_+i)}, 0") for i in range(32)]
        fill += [(4, f"v_mov_b32 {v(LA_+i)}, 0") for i in range(8)]
        fill += [(22, f"v_mov_b32 {v(224+i)}, 0") for i in range(16)]
        fill += [(22, f"v_mov_b32 {v(240+i)}, {f32(-1e30)}") for i in range(16)]
        st = self.stat_sum_list(ST)
        st += [f"v_add_f32 {v(ST+1)}, {f32(1e-5)}, {v(ST+1)}", f"v_rsq_f32 {v(ST+1)}, {v(ST+1)}"]
        st += self.stat_frag_list(EXB, ST, None, ST + 2)
        st += [f"v_mul_f32 {v(ST+1)}, {f32(c)}, {v(ST+1)}"]
        fill += [(44, t) for t in st]
        hooks = {3: lambda: P.wait(vm="wq1"), 5: lambda: self.two_level_finish(0), 13: h_bar, 19: h_cs, 26: h_stats,
                 44: lambda: P.wait(vm="st")}
        P.wait(vm="wq0")
        self.gemm_a(QA, True, 8, fill, hooks, csacc=CSA, ones=ONES)
        self.stamp(4)
        skip = P.newlabel("kvp")
        P.wait_all(vm=False)
        P(f"s_cmp_lg_u32 {s(sW)}, 0")
        P(f"s_cbranch_scc1 {skip}")
        self.poll_issue(sCT, CT_REP)
        self.poll_check(sCT, CT_REP, 16)
        P(f"{skip}:")
        P("s_barrier")
        self.stamp(5)
        KF = 168
        P(f"s_lshl_b32 {s(sKS)}, {s(sTAU)}, 14")
        P(f"s_add_u32 {s(T[0])}, {s(sLB)}, {KV}")
        P(f"v_add_u32 {v(A[0])}, {s(T[0])}, {v(vL16)}")
        for m in range(2):
            P.vm(f"buffer_load_dwordx4 {v(KF+4*m,4)}, {v(A[0])}, {srd(WS)}, {s(sKS)} offen offset:{1024*m} sc1", "k0")
        P(f"s_lshr_b32 {s(T[0])}, {s(sW4K)}, 1")
        P(f"s_add_u32 {s(sKS)}, {s(sKS)}, {s(T[0])}")
        P(f"s_add_u32 {s(sKS)}, {s(sKS)}, 2048")
        P(f"s_and_b32 {s(sKS)}, {s(sKS)}, 0x3ffff")
        P(f"s_add_u32 {s(sXK)}, {s(T[0])}, {RING}")
        for c_ in range(2):
            P(f"s_add_u32 m0, {s(sXK)}, {8192*c_}")
            for i in range(2):
                P.vm(f"buffer_load_dwordx4 {v(A[0])}, {srd(WS)}, {s(sKS)} offen offset:{1024*i} sc1 lds", "kv")
            P(f"s_add_u32 {s(sKS)}, {s(sKS)}, 8192")
            P(f"s_and_b32 {s(sKS)}, {s(sKS)}, 0x3ffff")
        P(f"v_and_b32 {v(vTMP)}, 31, {l}")
        P(f"v_lshlrev_b32 {v(vTMP)}, 2, {v(vTMP)}")
        P(f"v_lshrrev_b32 {v(A[1])}, 5, {l}")
        P(f"v_lshl_or_b32 {v(vTMP)}, {v(A[1])}, 9, {v(vTMP)}")
        P(f"v_add_u32 {v(vTMP)}, {CSQ}, {v(vTMP)}")
        for t in range(2):
            for e in range(2):
                P.lg(f"ds_read_b32 {v(ST+4+2*t+e)}, {v(vTMP)} offset:{128*t+256*e}", "csr")
        P.wait(lg="csr")
        for t in range(2):
            P(f"v_add_f32 {v(ST+4+2*t)}, {v(ST+4+2*t)}, {v(ST+5+2*t)}")
        for t in range(2):
            for x in self.cs_frag_list(EXA + 4 * t, ST + 4 + 2 * t, None, ST + 5 + 2 * t):
                P(x)
            P(f"v_mfma_f32_32x32x16_bf16 {v(QA+16*t,16)}, {v(EXA+4*t,4)}, {v(EXB,4)}, {v(QA+16*t,16)}")
        P(f"v_mov_b32 {v(A[2])}, 0xdddd")
        P(f"v_add_u32 {v(A[1])}, {RING}, {v(vL16)}")
        P(f"v_and_b32 {v(vTMP)}, 7, {l}")
        P(f"v_cmp_eq_u32 vcc, 0, {v(vTMP)}")
        P(f"v_cndmask_b32 {v(SUMA)}, 0, {v(ONES)}, vcc")
        P(f"v_cndmask_b32 {v(SUMA+1)}, 0, {v(ONES)}, vcc")
        P(f"v_cmp_eq_u32 vcc, 4, {v(vTMP)}")
        P(f"v_cndmask_b32 {v(SUMA+2)}, 0, {v(ONES)}, vcc")
        P(f"v_cndmask_b32 {v(SUMA+3)}, 0, {v(ONES)}, vcc")
        for i in range(8):
            P(f"v_mov_b32 {v(120+i)}, 0")
        for t in range(2):
            for i in range(16):
                P(f"v_mul_f32 {v(QA+16*t+i)}, {v(ST+1)}, {v(QA+16*t+i)}")
            for i in range(8):
                P(f"v_cvt_pk_bf16_f32 {v(PK+8*t+i)}, {v(QA+16*t+2*i)}, {v(QA+16*t+2*i+1)}")

    QF, SB, VF, O_, LA_, KF, ONES, SUMA = 48, (64, 80, 224, 240), 112, 128, 160, 168, 184, 188

    def qk(self, i, m, c=None):
        n, hd = i >> 1, i & 1
        d = v(self.SB[i & 3], 16)
        c = c or ("0" if m == 0 else d)
        return f"v_mfma_f32_32x32x16_bf16 {d}, {v(self.KF+8*(n&1)+4*m,4)}, {v(self.QF+8*hd+4*m,4)}, {c}"

    def pv(self, i, m):
        n, hd = i >> 1, i & 1
        return f"v_smfmac_f32_32x32x32_bf16 {v(self.O_+16*hd,16)}, {v(self.VF+8*(n&1)+4*m,4)}, {v(self.SB[i&3]+8*m,8)}, {v(A[2])}"

    def sm(self, i, m):
        return f"v_smfmac_f32_16x16x64_bf16 {v(self.LA_+4*(i&1),4)}, {v(self.SUMA,4)}, {v(self.SB[i&3]+8*m,8)}, {v(A[2])}"

    def ex(self, i, r):
        return f"v_exp_f32 {v(self.SB[i&3]+r)}, {v(self.SB[i&3]+r)}"

    def att_loop(self, trips_sgpr_setup, extra):
        P = self.P
        top = P.newlabel("att")
        trips_sgpr_setup()
        P(".p2align 3")
        P(f"{top}:")
        for it in range(4):
            for u in range(4):
                i = 4 * it + u + 3
                if u & 1 == 0:
                    n = (i + 1) // 2 + 1
                    rdst, roff = self.KF + 8 * (n & 1), 2048 + 2048 * u
                else:
                    n = i // 2
                    rdst, roff = self.VF + 8 * (n & 1), 2048 * (u - 1)
                rd = [f"ds_read_b128 {v(rdst+4*m,4)}, {v(A[1])} offset:{8192*it+roff+1024*m}" for m in range(2)]
                P(self.qk(i + 1, 0))
                if u == 0:
                    P("s_barrier")
                elif u == 1:
                    P(f"s_add_u32 {s(sKS)}, {s(sKS)}, 8192")
                elif extra:
                    extra[0]()
                for r in range(0, 3):
                    P(self.ex(i, r))
                P(self.sm(i - 1, 0))
                P(rd[0])
                for r in range(3, 5):
                    P(self.ex(i, r))
                P(self.qk(i + 1, 1))
                P("s_waitcnt lgkmcnt(1)")
                for r in range(5, 8):
                    P(self.ex(i, r))
                P(self.pv(i - 1, 0))
                if u == 0:
                    P(f"buffer_load_dwordx4 {v(A[0])}, {srd(WS)}, {s(sKS)} offen sc1 lds")
                elif u == 1:
                    P(f"s_and_b32 {s(sKS)}, {s(sKS)}, 0x3ffff")
                    if it == 3:
                        P(f"s_sub_u32 {s(sTRIP)}, {s(sTRIP)}, 1")
                elif extra:
                    extra[1]()
                for r in range(8, 11):
                    P(self.ex(i, r))
                P(self.sm(i - 1, 1))
                P(rd[1])
                for r in range(11, 13):
                    P(self.ex(i, r))
                P(self.pv(i - 1, 1))
                if u == 0:
                    P(f"buffer_load_dwordx4 {v(A[0])}, {srd(WS)}, {s(sKS)} offen offset:1024 sc1 lds")
                elif u == 1:
                    if extra:
                        extra[2](1)
                elif u == 2:
                    if extra:
                        extra[2](0)
                else:
                    P(f"s_waitcnt vmcnt({6 if extra else 2})")
                    P(f"s_add_u32 m0, {s(sXK)}, {8192*((it+3)&3)}")
                for r in range(13, 16):
                    P(self.ex(i, r))
        P(f"s_cmp_lg_u32 {s(sTRIP)}, 0")
        P(f"s_cbranch_scc1 {top}")

    def pack_setup(self):
        P = self.P
        l = v(vLANE)
        gw = T[7]
        P(f"s_lshl2_add_u32 {s(gw)}, s2, {s(sW)}")
        P(f"s_lshl_b32 {s(sDL)}, {s(sW)}, 15")
        P(f"s_cmp_ge_u32 {s(gw)}, 448")
        P("s_cbranch_scc1 L_pk2")
        P(f"v_lshrrev_b32 {v(vTMP)}, 3, {l}")
        P(f"v_mul_u32_u24 {v(vTMP)}, 5120, {v(vTMP)}")
        P(f"v_add_u32 {v(A[3])}, {v(vTMP)}, {v(vDS2K)}")
        P(f"s_lshr_b32 {s(T[0])}, {s(gw)}, 3")
        P(f"s_and_b32 {s(T[1])}, {s(gw)}, 7")
        P(f"s_mul_i32 {s(sDS)}, {s(T[1])}, {128*7168}")
        P(f"s_lshl_b32 {s(T[2])}, {s(T[0])}, 7")
        P(f"s_add_u32 {s(sDS)}, {s(sDS)}, {s(T[2])}")
        P(f"s_mov_b32 {s(sSA)}, {8*7168}")
        P(f"s_mov_b32 {s(sSB)}, {8*7168}")
        P(f"s_mul_i32 {s(sCSO)}, {s(T[1])}, 14336")
        P(f"s_lshl1_add_u32 {s(sCSO)}, {s(T[2])}, {s(sCSO)}")
        P(f"s_add_u32 {s(sCSO)}, {s(sCSO)}, {CS}")
        for t in range(2):
            P(f"s_lshl1_add_u32 {s(T[2])}, {s(T[0])}, {t}")
            P(f"s_mul_i32 {s(T[3])}, {s(T[2])}, 9363")
            P(f"s_lshr_b32 {s(T[3])}, {s(T[3])}, 16")
            P(f"s_mul_i32 {s(T[4])}, {s(T[3])}, 7")
            P(f"s_sub_u32 {s(T[2])}, {s(T[2])}, {s(T[4])}")
            P(f"s_sub_u32 {s(T[4])}, {s(T[1])}, {s(T[3])}")
            P(f"s_and_b32 {s(T[4])}, {s(T[4])}, 7")
            P(f"s_mul_i32 {s(T[3])}, {s(T[3])}, {896*1024}")
            P(f"s_cmp_lt_u32 {s(T[2])}, 2")
            P(f"s_cselect_b32 {s(T[5])}, 11, 10")
            P(f"s_cselect_b32 {s(T[6])}, 10, 16")
            P(f"s_lshl_b32 {s(T[5])}, 1, {s(T[5])}")
            P(f"s_lshl_b32 {s(T[2])}, {s(T[2])}, {s(T[6])}")
            P(f"s_mul_i32 {s(T[4])}, {s(T[4])}, {s(T[5])}")
            P(f"s_lshl3_add_u32 {s(T[2])}, {s(T[4])}, {s(T[2])}")
            P(f"s_add_u32 {s(T[2])}, {s(T[2])}, {s(T[3])}")
            P(f"s_add_u32 {s(ARR+8*t)}, {s(T[2])}, {WP}")
            for i in range(1, 8):
                P(f"s_add_u32 {s(ARR+8*t+i)}, {s(ARR+8*t+i-1)}, {s(T[5])}")
        P("s_branch L_pkdone")
        P("L_pk2:")
        NB = self.o["NB"]
        NT1 = (112 - NB) // 16
        P(f"v_mov_b32 {v(A[3])}, {v(vDS2K)}")
        P(f"s_sub_u32 {s(gw)}, {s(gw)}, 448")
        P(f"s_and_b32 {s(T[0])}, {s(gw)}, 15")
        P(f"s_bfe_u32 {s(T[1])}, {s(gw)}, 0x10004")
        P(f"s_lshr_b32 {s(T[2])}, {s(gw)}, 5")
        P(f"s_mul_i32 {s(sDS)}, {s(T[2])}, 14")
        P(f"s_add_u32 {s(sDS)}, {s(sDS)}, {s(T[1])}")
        P(f"s_lshl_b32 {s(sDS)}, {s(sDS)}, 15")
        P(f"s_lshl_b32 {s(T[3])}, {s(T[0])}, 7")
        P(f"s_add_u32 {s(sDS)}, {s(sDS)}, {s(T[3])}")
        P(f"s_mov_b32 {s(sSA)}, 16384")
        P(f"s_mov_b32 {s(sSB)}, 49152")
        P(f"s_mov_b32 {s(sCSO)}, {OOB}")
        P(f"s_lshr_b32 {s(T[3])}, {s(T[0])}, 1")
        P(f"s_sub_u32 {s(T[4])}, {s(T[2])}, {s(T[3])}")
        P(f"s_and_b32 {s(T[4])}, {s(T[4])}, 7")
        P(f"s_lshl1_add_u32 {s(T[4])}, {s(T[4])}, {s(T[1])}")
        P(f"s_lshr_b32 {s(T[2])}, {s(T[2])}, 3")
        P(f"s_xor_b32 {s(T[0])}, {s(T[0])}, {s(T[2])}")
        P(f"s_andn2_b32 {s(T[0])}, 1, {s(T[0])}")
        P(f"s_lshl3_add_u32 {s(T[3])}, {s(T[2])}, {s(T[3])}")
        P(f"s_mul_i32 {s(T[3])}, {s(T[3])}, {896*1024}")
        P(f"s_add_u32 {s(T[3])}, {s(T[3])}, {WP + 448*1024}")
        P(f"s_cmp_ge_u32 {s(gw)}, 512")
        P(f"s_cselect_b32 {s(T[3])}, {OOB}, {s(T[3])}")
        P(f"s_lshl1_add_u32 {s(T[5])}, {s(T[4])}, {s(T[0])}")
        P(f"s_lshl_b32 {s(T[5])}, {s(T[5])}, 11")
        P(f"s_add_u32 {s(T[5])}, {s(T[5])}, {s(T[3])}")
        P(f"s_mul_i32 {s(T[6])}, {s(T[0])}, {NB}")
        P(f"s_add_u32 {s(T[6])}, {s(T[6])}, {s(T[4])}")
        P(f"s_lshl_b32 {s(T[6])}, {s(T[6])}, 11")
        P(f"s_add_u32 {s(T[6])}, {s(T[6])}, {s(T[3])}")
        for i in range(8):
            for t in range(2):
                if i == 7:
                    P(f"s_mov_b32 {s(ARR+8*t+i)}, {OOB}")
                elif i < NT1:
                    P(f"s_add_u32 {s(ARR+8*t+i)}, {s(T[5])}, {65536*i + 1024*t}")
                else:
                    P(f"s_add_u32 {s(ARR+8*t+i)}, {s(T[6])}, {65536*NT1 + 32768*(i-NT1) + 1024*t}")
        P("L_pkdone:")
        P(f"s_sub_u32 {s(sDS)}, {s(sDS)}, {s(sSB)}")
        P(f"s_sub_u32 {s(sDL)}, {s(sDL)}, 1024")

    def pack_block(self):
        P = self.P
        CSA = 192
        for i in range(8):
            for t in range(2):
                for e in range(2):
                    P.lg(f"ds_read_b64_tr_b16 {a(8*i+4*t+2*e,2)}, {v((vTRA,vTRB)[t])} offset:{i*2048+e*512}", ("pk", i))
            if i >= 2:
                self.pack_out(i - 2)
        self.pack_out(6)
        self.pack_out(7)
        P(f"v_permlane32_swap_b32 {v(CSA)}, {v(CSA+16)}")
        P(f"buffer_store_dword {v(CSA)}, {v(vL4)}, {srd(WS)}, {s(sCSO)} offen sc1")

    def pack_out(self, i):
        P = self.P
        CSA = 192
        P.wait(lg=("pk", i))
        for t in range(2):
            c = "0" if i == 0 else v(CSA + 16 * t, 16)
            P(f"v_mfma_f32_32x32x16_bf16 {v(CSA+16*t,16)}, {v(self.ONES,4)}, {a(8*i+4*t,4)}, {c}")
            P(f"buffer_store_dwordx4 {a(8*i+4*t,4)}, {v(vL16)}, {srd(WS)}, {s(ARR+8*t+i)} offen sc1")

    def fallback(self):
        P = self.P
        M = A[4]
        P("s_waitcnt vmcnt(0) lgkmcnt(0)")
        for hd in range(2):
            i = hd
            S, CB = self.SB[i & 3], self.SB[2]
            l1, l2 = P.newlabel("fb"), P.newlabel("fb")
            P(f"v_mov_b32 {v(M)}, 0xff800000")
            P(f"s_mov_b32 {s(T[0])}, 0")
            P(f"{l1}:")
            for m in range(2):
                P(f"buffer_load_dwordx4 {v(self.KF+4*m,4)}, {v(A[0])}, {srd(WS)}, {s(T[0])} offen offset:{1024*m} sc1")
            P("s_waitcnt vmcnt(0)")
            P(self.qk(i, 0))
            P(self.qk(i, 1))
            for r in range(8):
                P(f"v_max3_f32 {v(M)}, {v(S+2*r)}, {v(S+2*r+1)}, {v(M)}")
            P(f"s_add_u32 {s(T[0])}, {s(T[0])}, 4096")
            P(f"s_cmp_lt_u32 {s(T[0])}, 0x40000")
            P(f"s_cbranch_scc1 {l1}")
            P(f"v_mov_b32 {v(vTMP)}, {v(M)}")
            P(f"v_permlane32_swap_b32 {v(M)}, {v(vTMP)}")
            P(f"v_max_f32 {v(M)}, {v(M)}, {v(vTMP)}")
            for r in range(16):
                P(f"v_sub_f32 {v(CB+r)}, 0, {v(M)}")
                P(f"v_mov_b32 {v(self.O_+16*hd+r)}, 0")
            for r in range(4):
                P(f"v_mov_b32 {v(self.LA_+4*hd+r)}, 0")
            P(f"s_mov_b32 {s(T[0])}, 0")
            P(f"{l2}:")
            for m in range(2):
                P(f"buffer_load_dwordx4 {v(self.KF+4*m,4)}, {v(A[0])}, {srd(WS)}, {s(T[0])} offen offset:{1024*m} sc1")
                P(f"buffer_load_dwordx4 {v(self.VF+4*m,4)}, {v(A[0])}, {srd(WS)}, {s(T[0])} offen offset:{2048+1024*m} sc1")
            P("s_waitcnt vmcnt(0)")
            P(self.qk(i, 0, v(CB, 16)))
            P(self.qk(i, 1))
            for r in range(16):
                P(self.ex(i, r))
            for m in range(2):
                P(self.pv(i, m))
                P(self.sm(i, m))
            P(f"s_add_u32 {s(T[0])}, {s(T[0])}, 4096")
            P(f"s_cmp_lt_u32 {s(T[0])}, 0x40000")
            P(f"s_cbranch_scc1 {l2}")
            P("s_nop 11")

    def p2(self):
        P = self.P
        P(f"s_mov_b32 {s(sTRIP)}, 4")
        P(f"s_cmp_lg_u32 {s(sL)}, 0")
        P("s_cbranch_scc1 L_att_pre2")
        self.pack_setup()
        P("L_att_pre2:")
        P.wait_all()
        self.stamp(6)
        P(f"s_add_u32 m0, {s(sXK)}, 16384")
        P(f"s_cmp_lg_u32 {s(sL)}, 0")
        P("s_cbranch_scc1 L_att_n")

        def pk_post(first):
            P(f"s_add_u32 {s(sDS)}, {s(sDS)}, {s(sSB if first else sSA)}")
            P(f"s_add_u32 {s(sDL)}, {s(sDL)}, 1024")
        pk = (lambda: P(f"s_mov_b32 m0, {s(sDL)}"),
              lambda: P(f"buffer_load_dwordx4 {v(A[3])}, {srd(PKS)}, {s(sDS)} offen lds"), pk_post)
        self.att_loop(lambda: P(f"s_mov_b32 {s(sTRIP)}, 2"), pk)
        P(f"s_mov_b32 {s(sTRIP)}, 2")
        P("L_att_n:")
        self.att_loop(lambda: None, None)
        P("s_waitcnt vmcnt(0)")
        P(f"s_cmp_lg_u32 {s(sL)}, 0")
        P("s_cbranch_scc1 L_att_c")
        P.wait_all()
        self.pack_block()
        P("L_att_c:")
        P(f"s_lshl1_add_u32 {s(sSA)}, {s(sW)}, {s(sJJ)}")
        P(f"s_lshl_b32 {s(sSA)}, {s(sSA)}, 18")
        P(f"s_sub_u32 {s(sSA)}, {s(sSA)}, 16384")
        P(f"s_lshl_b32 {s(T[0])}, {s(sFS)}, 7")
        P(f"v_add_u32 {v(A[3])}, {s(T[0])}, {v(vDS2K)}")
        P(f"s_lshl_b32 {s(sDL)}, {s(sW)}, 15")
        P(f"s_sub_u32 {s(sDL)}, {s(sDL)}, 1024")

        def wo_post(first):
            P(f"s_add_u32 {s(sSA)}, {s(sSA)}, 16384")
            P(f"s_add_u32 {s(sDL)}, {s(sDL)}, 1024")

        def wo_dma():
            P(f"s_and_b32 {s(sDS)}, {s(sSA)}, 0x1fffff")
            P(f"buffer_load_dwordx4 {v(A[3])}, {srd(WO)}, {s(sDS)} offen lds")
        wo = (lambda: P(f"s_mov_b32 m0, {s(sDL)}"), wo_dma, wo_post)
        self.att_loop(lambda: P(f"s_mov_b32 {s(sTRIP)}, 4"), wo)
        i = 127
        P(self.sm(i - 1, 0))
        P("s_waitcnt lgkmcnt(0)")
        for r in range(0, 3):
            P(self.ex(i, r))
        P(self.pv(i - 1, 0))
        for r in range(3, 6):
            P(self.ex(i, r))
        P(self.pv(i - 1, 1))
        for r in range(6, 9):
            P(self.ex(i, r))
        P(self.sm(i - 1, 1))
        for r in range(9, 11):
            P(self.ex(i, r))
        P(self.pv(i, 0))
        for r in range(11, 14):
            P(self.ex(i, r))
        P(self.sm(i, 0))
        for r in range(14, 16):
            P(self.ex(i, r))
        P("s_nop 1")
        P(self.sm(i, 1))
        P(self.pv(i, 1))
        self.pub_offsets(OP, None)
        self.stamp(7)
        lo, hi = (2.0 ** -60, 2.0 ** 60) if not self.force_fallback else (1.0, 0.5)
        P(f"v_min_f32 {v(A[4])}, {v(self.LA_)}, {v(self.LA_+4)}")
        P(f"v_add_f32 {v(A[5])}, {v(self.LA_)}, {v(self.LA_+4)}")
        P(f"v_cmp_nle_f32 vcc, {f32(lo)}, {v(A[4])}")
        P(f"s_mov_b64 {s(T[2],2)}, vcc")
        P(f"v_cmp_nge_f32 vcc, {f32(hi)}, {v(A[5])}")
        P(f"s_or_b64 {s(T[2],2)}, {s(T[2],2)}, vcc")
        P("s_cbranch_scc1 L_fallback")
        P("L_att_fin:")
        for hd in range(2):
            P(f"v_rcp_f32 {v(A[4+hd])}, {v(self.LA_+4*hd)}")
        for hd in range(2):
            for r in range(16):
                P(f"v_mul_f32 {v(self.O_+16*hd+r)}, {v(A[4+hd])}, {v(self.O_+16*hd+r)}")
            for r in range(8):
                P(f"v_cvt_pk_bf16_f32 {v(PK+8*hd+r)}, {v(self.O_+16*hd+2*r)}, {v(self.O_+16*hd+2*r+1)}")
            for m in range(2):
                P(f"buffer_store_dwordx4 {v(PK+8*hd+4*m,4)}, {v(vL16)}, {srd(WS)}, {s(sPUB)} offen offset:{2048*hd+1024*m} sc1")
        self.gemm_a_addr(OP)
        P.wait_all()
        self.arrive(sCO, 8)
        P("s_barrier")

    def wp_chunk(self, c, i):
        P = self.P
        if i == 0:
            P(f"s_add_u32 m0, {s(sW4K)}, {((c+8)%10)*16384}")
            P(f"s_add_u32 {s(sKS)}, {s(sKS)}, 16384")
        P.vm(f"buffer_load_dwordx4 {v(vL16)}, {srd(WS)}, {s(sKS)} offen offset:{1024*i} sc1 lds", ("C", c))

    EXA, EXB, B2P = 160, 188, 192

    def p3(self):
        P = self.P
        l = v(vLANE)
        skip = P.newlabel("pkw")
        P(f"s_cmp_lg_u32 {s(sL)}, 0")
        P(f"s_cbranch_scc1 {skip}")
        self.two_level_issue(8)
        self.two_level_finish(8)
        P(f"{skip}:")
        self.poll_issue(sCO, 8)
        P(f"v_lshrrev_b32 {v(A[4])}, 5, {l}")
        P(f"v_lshlrev_b32 {v(A[5])}, 4, {v(A[4])}")
        P(f"s_lshl_b32 {s(T[0])}, {s(sFS)}, 7")
        for i in range(4):
            P.vm(f"buffer_load_dwordx4 {v(self.B2P+4*i,4)}, {v(A[5])}, {srd(B2)}, {s(T[0])} offen offset:{32*i}", "b2")
        P(f"v_and_b32 {v(A[5])}, 0x13, {l}")
        P(f"v_bfe_u32 {v(vTMP)}, {l}, 2, 1")
        P(f"v_lshl_or_b32 {v(A[5])}, {v(vTMP)}, 3, {v(A[5])}")
        P(f"v_bfe_u32 {v(vTMP)}, {l}, 3, 1")
        P(f"v_lshl_or_b32 {v(A[5])}, {v(vTMP)}, 2, {v(A[5])}")
        P(f"v_lshlrev_b32 {v(A[5])}, 1, {v(A[5])}")
        P(f"v_lshl_or_b32 {v(A[5])}, {v(A[4])}, 30, {v(A[5])}")
        P(f"s_mul_i32 {s(T[0])}, {s(sJ)}, 448")
        CT, BT = 96, 124
        for t in range(7):
            P.vm(f"buffer_load_ushort {v(BT+t)}, {v(A[5])}, {srd(B1)}, {s(T[0])} offen offset:{64*t}", "b1")
        P(f"v_and_b32 {v(vTMP)}, 31, {l}")
        P(f"v_lshlrev_b32 {v(vTMP)}, 2, {v(vTMP)}")
        P(f"v_mul_u32_u24 {v(A[4])}, {4*14336}, {v(A[4])}")
        P(f"v_add_u32 {v(A[4])}, {v(A[4])}, {v(vTMP)}")
        P(f"s_mul_i32 {s(sKS)}, {s(sJ)}, {896*1024}")
        P(f"s_add_u32 {s(sKS)}, {s(sKS)}, {s(sW4K)}")
        P(f"s_add_u32 {s(sKS)}, {s(sKS)}, {WP - 16384}")
        P(f"s_mul_i32 {s(T[1])}, {s(sJ)}, 896")
        P(f"s_add_u32 {s(T[1])}, {s(T[1])}, {CS}")
        self.stamp(8)
        self.poll_check(sCO, 8, 16)
        self.stamp(9)
        for p in range(self.o["LA"]):
            self.xload(p)

        def h_pk_issue():
            P(f"s_lshl_b32 {s(T[2])}, {s(sTAU)}, 7")
            self.poll_issue(T[2], CT_REP + 8)

        def h_pk_check():
            self.poll_check(T[2], CT_REP + 8, 16)

        def h_cs(e):
            def f():
                for t in range(7):
                    P.vm(f"buffer_load_dword {v(CT+4*t+e)}, {v(A[4])}, {srd(WS)}, {s(T[1])} offen offset:{128*t} sc1", "cs")
                P(f"s_add_u32 {s(T[1])}, {s(T[1])}, 14336")
            return f

        def h_w(c):
            def f():
                for i in range(4):
                    self.wp_chunk(c, i)
            return f
        hooks = {30: h_pk_issue, 50: h_pk_check, 55: h_cs(0), 56: h_cs(1), 57: h_cs(2), 58: h_cs(3), 60: h_w(0), 62: h_w(1)}
        self.gemm_a(R, False, self.o["LA"], [], hooks)
        self.pub_offsets(X1P, ST1)
        self.stamp(10)
        self.pack_R()
        self.stats_and_store(sPUB, sSTO)
        P("s_barrier")
        for c in range(2, 4):
            for i in range(4):
                self.wp_chunk(c, i)
        P.wait(vm="pub")
        self.arrive(sCO, 16)
        fl = []
        for t in range(7):
            fl.append(f"v_add_f32 {v(CT+4*t)}, {v(CT+4*t)}, {v(CT+4*t+1)}")
            fl.append(f"v_add_f32 {v(CT+4*t+2)}, {v(CT+4*t+2)}, {v(CT+4*t+3)}")
            fl.append(f"v_lshlrev_b32 {v(BT+t)}, 16, {v(BT+t)}")
            fl.append(f"v_add_f32 {v(CT+4*t)}, {v(CT+4*t)}, {v(CT+4*t+2)}")
            fl += self.cs_frag_list(self.EXA + 4 * t, CT + 4 * t, BT + t, CT + 4 * t + 1)
        fl += self.unpack_list(R, PK, 16)
        npre = self.o["npre"]
        nd = (npre - 4) * 4
        k = 0
        for c in range(4, npre):
            for i in range(4):
                self.wp_chunk(c, i)
                k += 1
                while fl and len(fl) > (nd - k) * 8:
                    P(fl.pop(0))
                if k == nd - 4:
                    self.poll_issue(sCO, 16)
        for t in fl:
            P(t)
        P(f"s_lshl_b32 {s(T[0])}, {s(sTT)}, 16")
        P(f"s_add_u32 {s(T[0])}, {s(T[0])}, {s(sLB)}")
        P(f"s_add_u32 {s(T[0])}, {s(T[0])}, {X1P}")
        P(f"v_add_u32 {v(A[0])}, {s(T[0])}, {v(vL16)}")
        P(f"s_lshl_b32 {s(sXK)}, {s(sJJ)}, 13")
        P(f"s_lshl_b32 {s(T[0])}, {s(sTT)}, 12")
        P(f"s_add_u32 {s(T[0])}, {s(T[0])}, {s(sLB)}")
        P(f"s_add_u32 {s(T[0])}, {s(T[0])}, {ST1}")
        self.stamp(11)
        self.poll_check(sCO, 16, 16)
        self.stamp(12)

    def mlp(self):
        P = self.P
        o = self.o
        NB, DSL = o["NB"], o["DSL"]
        NQ1 = 112 - NB
        BLK = [64, 80, 96, 112]
        WF, ST, C1, C2, SD, TM = 128, 208, 224, 225, 226, 228
        SEND = [BLK[3], BLK[0]]
        PIN = BLK[1]
        steps = []
        tile_end = {}
        for p in range(64):
            for t in range(2):
                steps.append(dict(f=2 * p + t, x=("X", p), slot=p, acc=BLK[t], z=p == 0))
        for t in range(2):
            steps.append(dict(ex=t, acc=BLK[t]))
            tile_end[t] = len(steps) - 1
        x_dead = {}
        for t in range(2, 7):
            for p in range(64):
                steps.append(dict(f=128 + (t - 2) * 64 + p, x=None, slot=p, acc=BLK[t & 3], z=p == 0))
                if t == 6:
                    x_dead[p] = len(steps) - 1
            steps.append(dict(ex=t, acc=BLK[t & 3]))
            tile_end[t] = len(steps) - 1
        mlp2_start = len(steps)
        h_use = {}
        f = 448
        for q in range(NQ1):
            h_use[q] = len(steps)
            for k in range(4):
                steps.append(dict(f=f, x=("H", q), slot=q & 63, acc=SEND[k] if k < 2 else R + 16 * (k - 2), z=(q == 0 and k < 2)))
                f += 1
            if q + 64 < 112:
                x_dead[q + 64] = len(steps) - 1
        for q in range(NQ1, 112):
            h_use[q] = len(steps)
            for k in range(2):
                steps.append(dict(f=f, x=("H", q), slot=q & 63, acc=SEND[k], z=False))
                f += 1
        passb = len(steps)
        for q in range(NQ1, 112):
            for k in range(2):
                steps.append(dict(f=f, x=None, slot=q & 63, acc=R + 16 * k, z=False))
                f += 1
        N = len(steps)
        fstep = {st["f"]: i for i, st in enumerate(steps) if "f" in st}
        bar_step = {c: (fstep[16 * c - DSL] if c else -1) for c in range(56)}
        bar_at = {st: c for c, st in bar_step.items()}

        P(f"v_mov_b32 {v(A[1])}, {v(vL16)}")
        P(f"v_add_u32 {v(A[2])}, 0x10000, {v(vL16)}")
        P(f"v_add_u32 {v(A[3])}, 0x20000, {v(vL16)}")
        nx0 = o["LA"]
        for i in range(16):
            P.vm(f"buffer_load_dword {v(ST+i)}, {v(vL4)}, {srd(WS)}, {s(T[0])} offen offset:{256*i} sc1", "st")
            if i == 7:
                for p in range(4):
                    self.xload(p)
        for p in range(4, nx0):
            self.xload(p)
        P(f"s_mul_i32 {s(T[0])}, {s(sTT)}, {224*1024}")
        P(f"s_add_u32 {s(T[0])}, {s(T[0])}, {s(sLB)}")
        P(f"s_add_u32 {s(T[0])}, {s(T[0])}, {HP}")
        P(f"s_mul_i32 {s(T[1])}, {s(sJ)}, 14336")
        P(f"s_add_u32 {s(sPUB)}, {s(T[0])}, {s(T[1])}")
        P(f"s_mul_i32 {s(T[1])}, {s(sKH)}, {112*1024}")
        P(f"s_add_u32 {s(T[0])}, {s(T[0])}, {s(T[1])}")
        P(f"v_add_u32 {v(A[4])}, {s(T[0])}, {v(vL16)}")
        for r in range(8):
            P(f"s_add_u32 {s(T[0])}, {s(sJJ)}, {r}")
            P(f"s_and_b32 {s(T[0])}, {s(T[0])}, 7")
            P(f"s_mul_i32 {s(ARR+r)}, {s(T[0])}, 14336")
        sHC, sPF, sPM, sPO, sPI = ARR + 8, ARR + 9, ARR + 10, ARR + 11, ARR + 12
        P(f"s_lshl_b32 {s(T[0])}, {s(sKH)}, 7")
        P(f"s_add_u32 {s(sHC)}, {s(sCO)}, {s(T[0])}")
        P(f"s_lshl_b32 {s(T[0])}, {s(sTT)}, 9")
        P(f"s_lshl_b32 {s(T[1])}, {s(sL)}, 6")
        P(f"s_add_u32 {s(T[0])}, {s(T[0])}, {s(T[1])}")
        P(f"s_lshl2_add_u32 {s(sPM)}, {s(sJ)}, {s(T[0])}")
        P(f"s_xor_b32 {s(sPF)}, {s(sPM)}, 32")
        P(f"s_lshl4_add_u32 {s(T[0])}, {s(sTT)}, {s(sJ)}")
        P(f"s_lshl_b32 {s(T[0])}, {s(T[0])}, 13")
        P(f"s_add_u32 {s(T[0])}, {s(T[0])}, {s(sLB)}")
        P(f"s_add_u32 {s(sPI)}, {s(T[0])}, {PART}")
        P(f"s_xor_b32 {s(sPO)}, {s(sPI)}, {8 << 13}")

        def dsread(f):
            c, i = f >> 4, f & 15
            addr = ((c + 8) % 10) * 16384 + i * 1024
            P.lg(f"ds_read_b128 {v(WF+4*(f&7),4)}, {v(A[1+(addr>>16)])} offset:{addr & 0xffff}", ("F", f))

        def hload(q):
            t, r = q >> 4, q & 15
            if r == 0 and t and t & 1 == 0:
                P(f"v_add_u32 {v(A[4])}, 4096, {v(A[4])}")
            P.vm(f"buffer_load_dwordx4 {a(4*(q&63),4)}, {v(A[4])}, {srd(WS)}, {s(ARR+(r>>1))} offen offset:{2048*(t&1)+1024*(r&1)} sc1", ("H", q))

        polA_issue, polA_check = tile_end[5] - 20, tile_end[5] - 2
        polB_check = mlp2_start + o.get("bchk", 125)
        polB_issue = polB_check - 20
        polP_check = N - o.get("pchk", 26)
        polP_issue = polP_check - 18

        ops = []
        for p in range(nx0, 64):
            ops.append(dict(dl=2 * p, av=0, fn=(lambda p=p: self.xload(p)), k="x"))
        for c in range(o["npre"], 56):
            for i in range(4):
                av = bar_step[c - 8] + 1 if c >= 10 else 0
                ops.append(dict(dl=bar_step[c], av=av, fn=(lambda c=c, i=i: self.wp_chunk(c, i)), k="w"))
        for q in range(112):
            av = max(x_dead[q] + 1, polA_check + 1 if q < 64 else polB_check + 1)
            ops.append(dict(dl=h_use[q], av=av, fn=(lambda q=q: hload(q)), k="h"))
        queues = {k: [x for x in ops if x["k"] == k] for k in "xwh"}

        fill = []
        k1 = -2 * math.sqrt(2 / math.pi) * math.log2(math.e)
        sl = self.stat_sum_list(ST)
        sl += [f"v_add_f32 {v(ST+2)}, {f32(1e-5)}, {v(ST+1)}", f"v_rsq_f32 {v(ST+2)}, {v(ST+2)}",
               f"v_mul_f32 {v(ST+3)}, {v(ST+1)}, {v(ST+2)}", f"v_fmaak_f32 {v(ST+3)}, {v(ST+3)}, {v(ST+2)}, {f32(1e-5)}",
               f"v_rsq_f32 {v(ST+3)}, {v(ST+3)}", f"v_mul_f32 {v(ST+2)}, {v(ST+2)}, {v(ST+3)}",
               f"v_rcp_f32 {v(SD)}, {v(ST+2)}", f"v_mul_f32 {v(C1)}, {f32(k1)}, {v(ST+2)}",
               f"v_mul_f32 {v(C2)}, {v(ST+2)}, {v(ST+2)}", f"v_mul_f32 {v(C2)}, {v(C2)}, {v(C1)}",
               f"v_mul_f32 {v(C2)}, {f32(0.044715)}, {v(C2)}"]
        sl += self.stat_frag_list(self.EXB, ST, SD, ST + 4)
        fill += [(12, 8, t) for t in sl]
        for half in range(2):
            fill += [(12, 4, t) for t in self.unpack_list(TM, self.B2P + 8 * half, 8)]
            fill += [(12, 4, f"v_add_f32 {v(R+16*half+i)}, {v(R+16*half+i)}, {v(TM+i)}") for i in range(16)]

        def hstore(t, m):
            def f():
                if m == 0 and t and t & 1 == 0:
                    P(f"s_add_u32 {s(sPUB)}, {s(sPUB)}, 4096")
                P.vm(f"buffer_store_dwordx4 {v(PK+8*(t&1)+4*m,4)}, {v(vL16)}, {srd(WS)}, {s(sPUB)} offen offset:{2048*(t&1)+1024*m} sc1", ("hs", t))
            return f
        for t in range(7):
            st0 = tile_end[t] + 5
            b = BLK[t & 3]
            for g in range(4):
                e = [b + 4 * g + i for i in range(4)]
                tm = [TM + 4 * (g & 1) + i for i in range(4)]
                fill += [(st0, 4, f"v_mul_f32 {v(tm[i])}, {v(e[i])}, {v(e[i])}") for i in range(4)]
                fill += [(st0, 4, f"v_fma_f32 {v(tm[i])}, {v(tm[i])}, {v(C2)}, {v(C1)}") for i in range(4)]
                fill += [(st0, 4, f"v_mul_f32 {v(tm[i])}, {v(tm[i])}, {v(e[i])}") for i in range(4)]
                fill += [(st0, 8, f"v_exp_f32 {v(tm[i])}, {v(tm[i])}") for i in range(4)]
                fill += [(st0, 4, f"v_fma_f32 {v(tm[i])}, {v(tm[i])}, {v(SD)}, {v(SD)}") for i in range(4)]
                fill += [(st0, 8, f"v_rcp_f32 {v(tm[i])}, {v(tm[i])}") for i in range(4)]
                fill += [(st0, 4, f"v_mul_f32 {v(tm[i])}, {v(tm[i])}, {v(e[i])}") for i in range(4)]
                fill += [(st0, 4, f"v_cvt_pk_bf16_f32 {v(PK+8*(t&1)+2*g+i)}, {v(tm[2*i])}, {v(tm[2*i+1])}") for i in range(2)]
                if g & 1:
                    fill.append((st0, -1, hstore(t, g >> 1)))
            fill.append((st0, 0, ("done", t)))

        def pstore(i):
            def f():
                if i == 4:
                    P(f"s_add_u32 {s(sPO)}, {s(sPO)}, 4096")
                P.vm(f"buffer_store_dwordx4 {v(SEND[i>>2]+4*(i&3),4)}, {v(vL16)}, {srd(WS)}, {s(sPO)} offen offset:{1024*(i&3)} sc1", "ps")
            return f

        def pload(i):
            def f():
                if i == 4:
                    P(f"s_add_u32 {s(sPI)}, {s(sPI)}, 4096")
                P.vm(f"buffer_load_dwordx4 {v(PIN+4*i,4)}, {v(vL16)}, {srd(WS)}, {s(sPI)} offen offset:{1024*(i&3)} sc1", "pl")
            return f
        fill += [(passb + 5, -1, pstore(i)) for i in range(8)]
        fill.append((passb + 5, 0, ("done", "p")))
        fill += [(polP_check + 1, -1, pload(i)) for i in range(8)]

        pending = {}
        arrivals = {3: (("hs", 3), sHC, 128), 6: (("hs", 6), sHC, 136), "p": ("ps", sPF, 384)}
        epi_done = {}
        P.wait(vm=("C", 0))
        P("s_barrier")
        for f in range(DSL):
            dsread(f)
        credit = 0.0
        for i, st in enumerate(steps):
            if i == mlp2_start:
                self.stamp(13)
            if i == passb:
                self.stamp(14)
            if "f" in st:
                want_l = ("F", st["f"])
                if want_l in P.lgq and st["f"] + 1 < 896 and ("F", st["f"] + 1) in P.lgq and DSL >= 4:
                    want_l = ("F", st["f"] + 1)
                elif want_l not in P.lgq:
                    want_l = None
                P.wait(vm=st["x"], lg=want_l)
                if st["z"]:
                    for t, b in enumerate(BLK):
                        if b == st["acc"] and i > 130:
                            prev = [tt for tt in range(7) if BLK[tt & 3] == b and tile_end[tt] < i]
                            assert not prev or prev[-1] in epi_done, ("accumulator reused before its epilogue", i)
                c = "0" if st["z"] else v(st["acc"], 16)
                P(f"v_mfma_f32_32x32x16_bf16 {v(st['acc'],16)}, {v(WF+4*(st['f']&7),4)}, {a(4*st['slot'],4)}, {c}")
            else:
                assert not any(x[0] == 12 for x in fill)
                P(f"v_mfma_f32_32x32x16_bf16 {v(st['acc'],16)}, {v(self.EXA+4*st['ex'],4)}, {v(self.EXB,4)}, {v(st['acc'],16)}")
            budget = o["budget"]
            if i in bar_at:
                assert not any(x["dl"] <= i for x in queues["w"])
                P.wait(vm=("C", bar_at[i]))
                P("s_barrier")
                budget -= 8
            if i == 11:
                P.wait(vm="st")
            if i == polA_issue:
                self.poll_issue(sHC, 128)
            if i == polB_issue:
                self.poll_issue(sHC, 136)
            if i == polP_issue:
                self.poll_issue(sPM, 384)
            if i == polA_check:
                assert 3 in epi_done and 3 not in pending
                self.poll_check(sHC, 128, 8)
            if i == polB_check:
                assert 6 in epi_done and 6 not in pending
                self.poll_check(sHC, 136, 8)
            if i == polP_check:
                assert "p" in epi_done and "p" not in pending
                self.poll_check(sPM, 384, 1)
            if "f" in st and st["f"] + DSL < 896:
                dsread(st["f"] + DSL)
            credit = min(credit + o["rate"], 2.0)
            did_vm = False
            if fill and fill[0][0] <= i and fill[0][1] == -1:
                fill.pop(0)[2]()
                did_vm = True
            else:
                cand = [q[0] for q in queues.values() if q and q[0]["av"] <= i]
                if cand:
                    best = min(cand, key=lambda x: x["dl"])
                    if credit >= 1.0 or best["dl"] - i <= o["D"]:
                        queues[best["k"]].pop(0)
                        best["fn"]()
                        did_vm = True
            if did_vm:
                credit -= 1.0
                credit = max(credit, -1.0)
                budget -= 8
            for k in list(pending):
                tag, reg, imm = arrivals[k]
                if tag not in P.vmq or i - pending[k] >= o.get("arrw", 30):
                    P.wait(vm=tag)
                    self.arrive(reg, imm)
                    del pending[k]
            while fill and fill[0][0] <= i and 0 <= fill[0][1] <= budget:
                _, cost, t = fill.pop(0)
                if isinstance(t, tuple):
                    epi_done[t[1]] = i
                    if t[1] in arrivals:
                        pending[t[1]] = i
                else:
                    P(t)
                    budget -= cost
        assert not fill and not pending and not any(queues.values())
        self.info = dict(epi_done=epi_done, tile_end=tile_end, mlp2_start=mlp2_start, passb=passb, N=N)
        P(f"s_add_u32 {s(T[7])}, {s(sLB)}, {LSTRIDE}")
        self.pub_offsets(XP, STX, T[7])
        P.wait(vm="pl")
        self.stamp(15)
        P("s_nop 3")
        for i in range(32):
            P(f"v_add_f32 {v(R+i)}, {v(R+i)}, {v(PIN+i)}")
        self.pack_R()

    def build(self):
        P = self.P
        self.prologue()
        P("L_layer:")
        self.maybe_stop("p0")
        self.p1()
        self.maybe_stop("p1")
        self.p2()
        self.maybe_stop("p2")
        self.p3()
        self.maybe_stop("p3")
        self.mlp()
        P(f"s_cmp_lg_u32 {s(sL)}, 0")
        P("s_cbranch_scc1 L_out")
        self.stats_and_store(sPUB, sSTO)
        P("s_barrier")
        self.wkv_dma(0, 8)
        P(f"s_mov_b32 {s(sL)}, 1")
        P(f"s_add_u32 {s(sLB)}, {s(sLB)}, {LSTRIDE}")
        P(f"s_add_u32 {s(sCO)}, {s(sCO)}, 4")
        P(f"s_add_u32 {s(sCT)}, {s(sCT)}, 4")
        P.wait(vm="pub")
        self.arrive(sCO, 0)
        self.stamp(0)
        self.wkv_dma(8, 16)
        P("s_branch L_layer")
        P("L_fallback:")
        self.fallback()
        P("s_branch L_att_fin")
        P("L_out:")
        P(f"v_and_b32 {v(A[0])}, 31, {v(vLANE)}")
        P(f"v_lshlrev_b32 {v(A[0])}, 11, {v(A[0])}")
        P(f"v_lshrrev_b32 {v(vTMP)}, 5, {v(vLANE)}")
        P(f"v_lshl_or_b32 {v(A[0])}, {v(vTMP)}, 4, {v(A[0])}")
        P(f"s_lshl_b32 {s(sDS)}, {s(sTT)}, 16")
        P(f"s_lshl_b32 {s(sDL)}, {s(sFS)}, 7")
        P(f"s_add_u32 {s(sDS)}, {s(sDS)}, {s(sDL)}")
        for i in range(4):
            P(f"buffer_store_dwordx4 {v(PK+4*i,4)}, {v(A[0])}, {srd(OUT)}, {s(sDS)} offen offset:{32*i}")
        P("L_fin:")
        if self.stamps:
            P(f"s_mov_b32 {s(sL)}, 2")
            P("s_waitcnt vmcnt(0)")
            self.stamp(0)
            P(f"s_lshl2_add_u32 {s(T[0])}, s2, {s(sW)}")
            P(f"s_lshl_b32 {s(T[0])}, {s(T[0])}, 8")
            P(f"s_add_u32 {s(T[0])}, {s(T[0])}, {STAMP}")
            P(f"buffer_store_dword {v(vSTAMP)}, {v(vL4)}, {srd(WS)}, {s(T[0])} offen")
            if self.o.get("dbgstamp") is not None:
                sel = [1, 3, 4, 6, 7, 10, 13, 15, 20, 22, 23, 26, 29, 31, 32]
                P(f"s_lshl2_add_u32 {s(T[0])}, s2, {s(sW)}")
                P(f"s_cmp_lg_u32 {s(T[0])}, {self.o['dbgstamp']}")
                P("s_cbranch_scc1 L_end")
                P(f"v_readlane_b32 {s(T[1])}, {v(vSTAMP)}, 0")
                P(f"v_mov_b32 {v(A[1])}, 0")
                for n, lane in enumerate(sel):
                    P(f"v_readlane_b32 {s(T[2])}, {v(vSTAMP)}, {lane}")
                    P(f"s_sub_u32 {s(T[2])}, {s(T[2])}, {s(T[1])}")
                    P(f"v_mov_b32 {v(A[2])}, {s(T[2])}")
                    P(f"buffer_store_dword {v(A[2])}, {v(A[1])}, {srd(DBG)}, 0 offen offset:{4+4*n}")
        if self.stop and len(self.stop) > 2:
            P(f"s_lshl2_add_u32 {s(T[0])}, s2, {s(sW)}")
            P(f"s_lshl_b32 {s(T[0])}, {s(T[0])}, 12")
            for i in range(4):
                P(f"buffer_store_dwordx4 {v(self.stop[2]+4*i,4)}, {v(vL16)}, {srd(OUT)}, {s(T[0])} offen offset:{1024*i}")
        P("L_end:")
        P("s_endpgm")
        body, nops = P.finish()
        self.nops = nops
        ref = open(REF).read().split("\n")
        head = [x for x in ref if x.startswith(";") and "@launch" not in x and "Override" not in x and "grid=ceil" not in x]
        txt = "\n".join(head) + "\n; @launch grid=(256,1,1) block=(256,1,1) lds=163840\n"
        txt += f""".amdgcn_target "amdgcn-amd-amdhsa--gfx950"
.text
.globl {NAME}
.p2align 8
.type {NAME},@function
{NAME}:
{body}.section .rodata,"a"
.p2align 6
.amdhsa_kernel {NAME}
  .amdhsa_next_free_vgpr 512
  .amdhsa_next_free_sgpr 102
  .amdhsa_accum_offset 256
  .amdhsa_group_segment_fixed_size 0
  .amdhsa_kernarg_size 104
  .amdhsa_user_sgpr_count 2
  .amdhsa_user_sgpr_kernarg_segment_ptr 1
  .amdhsa_system_sgpr_workgroup_id_x 1
.end_amdhsa_kernel
"""
        return txt


if __name__ == "__main__":
    import json
    g = Gen(**(json.loads(sys.argv[2]) if len(sys.argv) > 2 else {}))
    txt = g.build()
    out = sys.argv[1] if len(sys.argv) > 1 else "k.s"
    open(out, "w").write(txt)
    print("nops", g.nops, "bytes", len(txt), g.info)
```

```python
import math, struct, sys
from dsl import Prog, v, a, s

NAME = "interleave_layers__grouped_kv_mqa__mixer_channel_mlp__prompt_kernel"
REF = "interleave_layers__grouped_kv_mqa__mixer_channel_mlp__prompt.s.ref"

MB = 1 << 20
CTR = 0
CTR_BYTES = 36864
CT_TEAM = 32768
CT_REP = 32768 + 2048
CS = 0x10000
STAMP = 0x40000
WP = 1 * MB
LAYER0 = 16 * MB
LSTRIDE = 48 * MB
XP = 0
OP = 4 * MB
X1P = 8 * MB
PART = 12 * MB
HP = 28 * MB
KV = 44 * MB
STX = 45 * MB
ST1 = 46 * MB
WS_BYTES = 256 * MB
OOB = 0x40000000

RING = 131072
KVR = RING + 16384
CSQ = RING + 25600

WS, X0, WQ, WKV, WO, PKS, B1, B2, OUT, DBG, CODE = 4, 8, 12, 16, 20, 24, 28, 32, 36, 40, 44
sW, sTAU, sJJ, sKH, sJ, sFS, sTT, sL, sLB, sPD, sTO, sCO = range(48, 60)
T = list(range(60, 68))
ARR = 68
sTRIP, sXK, sDS, sDL, sSA, sSB, sKS, sCT, sONE, sPUB, sSTO, sCSO, sW4K, sPD2 = range(84, 98)
sTM = 98

vLANE, vL16, vL4, vTR, vROW, vDS2K, vSTAMP, vTMP = range(8)
A = list(range(8, 16))
R = 16
PK = 48
EXA, EXQ = 192, 96


def f32(x):
    return "0x%08x" % struct.unpack("<I", struct.pack("<f", x))[0]


def srd(n):
    return s(n, 4)


class Gen:
    def __init__(self, stop=None, stamps=False, force_fallback=False, **kw):
        self.P = Prog()
        self.stop = stop
        self.slow = []
        self.xnames = []
        self.stamps = stamps
        self.force_fallback = force_fallback
        self.o = dict(LA=12, LO=14, rate=0.42, D=22, DSL=5, npre=8, BG=2, b1=4, b2=8, vmcost=4, span=2)
        self.o.update(kw)

    def stamp(self, i):
        if not self.stamps or self.o.get("fine"):
            return
        P = self.P
        P(f"{'s_memtime' if self.stamps == 2 else 's_memrealtime'} {s(sTM,2)}")
        P(f"s_mov_b32 {s(sTM+3)}, m0")
        P(f"s_lshl_b32 {s(sTM+2)}, {s(sL)}, 4")
        P(f"s_add_u32 m0, {s(sTM+2)}, {i}")
        P.wait_all(vm=False)
        P(f"v_writelane_b32 {v(vSTAMP)}, {s(sTM)}, m0")
        P(f"s_mov_b32 m0, {s(sTM+3)}")

    def xstamp(self, name):
        if not self.stamps or not self.o.get("xs"):
            return
        P = self.P
        lane = 33 + len(self.xnames)
        self.xnames.append(name)
        skip = P.newlabel("xs")
        if self.o.get("xl0"):
            P(f"s_cmp_lg_u32 {s(sL)}, 0")
            P(f"s_cbranch_scc1 {skip}")
        P(f"s_memrealtime {s(sTM,2)}")
        P("s_waitcnt lgkmcnt(0)")
        P(f"v_writelane_b32 {v(vSTAMP)}, {s(sTM)}, {lane}")
        P(f"{skip}:")

    def maybe_stop(self, name):
        if self.stop and self.stop[0] == name:
            self.P(f"s_cmp_eq_u32 {s(sL)}, {self.stop[1]}")
            self.P("s_cbranch_scc1 L_fin")

    def arrive(self, off_sgpr, imm):
        self.P(f"s_atomic_add {s(sONE)}, {s(WS,2)}, {s(off_sgpr)} offset:{imm}")

    def arrive_wait(self, off_sgpr, imm, target, between=None):
        P = self.P
        P(f"s_mov_b32 {s(sPD)}, 1")
        P(f"s_atomic_add {s(sPD)}, {s(WS,2)}, {s(off_sgpr)} offset:{imm} glc")
        if between:
            between()
        P.wait_all(vm=False)
        P(f"s_add_u32 {s(sPD)}, {s(sPD)}, 1")
        if between:
            P(f"s_max_u32 {s(sPD)}, {s(sPD)}, {s(sPD2)}")
        self.poll_check(off_sgpr, imm, target)

    def poll_issue(self, off_sgpr, imm, dst=sPD):
        self.P(f"s_mov_b32 {s(dst)}, 0")
        self.P(f"s_atomic_add {s(dst)}, {s(WS,2)}, {s(off_sgpr)} offset:{imm} glc")

    def poll_check(self, off_sgpr, imm, target, dst=sPD):
        P = self.P
        top, done = P.newlabel("poll"), P.newlabel("polled")
        P(f"s_mov_b32 {s(sTO)}, 0")
        P(f"{top}:")
        P.wait_all(vm=False)
        P(f"s_cmp_ge_u32 {s(dst)}, {target}")
        P(f"s_cbranch_scc1 {done}")
        P(f"s_add_u32 {s(sTO)}, {s(sTO)}, 1")
        P(f"s_cmp_ge_u32 {s(sTO)}, 0x20000")
        P(f"s_cbranch_scc1 {done}")
        self.poll_issue(off_sgpr, imm, dst)
        P(f"s_branch {top}")
        P(f"{done}:")

    def poll_fast(self, off_sgpr, imm, target, dst=sPD):
        P = self.P
        slow, back = P.newlabel("slow"), P.newlabel("back")
        P(f"s_cmp_lt_u32 {s(dst)}, {target}")
        P(f"s_cbranch_scc1 {slow}")
        P(f"{back}:")
        self.slow.append((slow, back, lambda: self.poll_check(off_sgpr, imm, target, dst)))

    def slow_polls(self):
        P = self.P
        for slow, back, fn in self.slow:
            P(f"{slow}:")
            fn()
            P(f"s_branch {back}")

    def two_level_issue(self, word):
        P = self.P
        skip = P.newlabel("tl")
        P(f"s_mov_b32 {s(sPD2)}, 1")
        P(f"s_cmp_lg_u32 {s(sW)}, 0")
        P(f"s_cbranch_scc1 {skip}")
        P(f"s_atomic_add {s(sPD2)}, {s(WS,2)}, {s(sCT)} offset:{CT_TEAM + word} glc")
        P(f"{skip}:")

    def two_level_finish(self, word, got=sPD2):
        P = self.P
        skip = P.newlabel("tl")
        P.wait_all(vm=False)
        P(f"s_cmp_lg_u32 {s(got)}, 15")
        P(f"s_cbranch_scc1 {skip}")
        P(f"s_lshl2_add_u32 {s(T[7])}, {s(sL)}, {CT_REP + word}")
        P(f"v_lshrrev_b32 {v(126)}, 4, {v(vLANE)}")
        P(f"v_lshlrev_b32 {v(125)}, 7, {v(vLANE)}")
        P(f"v_lshl_or_b32 {v(125)}, {v(126)}, 29, {v(125)}")
        P(f"v_mov_b32 {v(126)}, 1")
        P(f"buffer_atomic_add {v(126)}, {v(125)}, {srd(WS)}, {s(T[7])} offen sc1")
        P(f"{skip}:")

    def stats_and_store(self, so_pk, so_st):
        P = self.P
        for i in range(4):
            P.vm(f"buffer_store_dwordx4 {v(PK+4*i,4)}, {v(vL16)}, {srd(WS)}, {s(so_pk)} offen offset:{1024*i} sc1", "pub")
        t0 = 108
        P(f"s_mov_b32 {s(T[6])}, 0x3f803f80")
        P(f"v_and_b32 {v(t0-1)}, 0xf0, {v(vL16)}")
        P(f"v_lshrrev_b32 {v(t0-2)}, 4, {v(vLANE)}")
        P(f"v_lshl_or_b32 {v(t0-1)}, {v(t0-2)}, 2, {v(t0-1)}")
        for k in range(8):
            for th in range(2):
                r = PK + 8 * (k >> 2) + 4 * th + (k & 3)
                P(f"v_dot2_f32_bf16 {v(t0+th)}, {v(r)}, {s(T[6])}, {v(t0+th) if k else 0}")
                P(f"v_dot2_f32_bf16 {v(t0+2+th)}, {v(r)}, {v(r)}, {v(t0+2+th) if k else 0}")
        for th in range(2):
            P(f"v_permlane32_swap_b32 {v(t0+th)}, {v(t0+2+th)}")
        for th in range(2):
            P(f"v_add_f32 {v(t0+th)}, {v(t0+th)}, {v(t0+2+th)}")
        P(f"v_permlane16_swap_b32 {v(t0)}, {v(t0+1)}")
        P(f"v_add_f32 {v(t0)}, {v(t0)}, {v(t0+1)}")
        P.vm(f"buffer_store_dword {v(t0)}, {v(t0-1)}, {srd(WS)}, {s(so_st)} offen sc1", "pub")

    def rowswap_list(self, base, nfrag):
        return [f"v_permlane16_swap_b32 {v(base+4*i+k)}, {v(base+4*i+2+k)}" for i in range(nfrag) for k in range(2)]

    def split_list(self, r0, r1):
        return [f"v_mov_b32 {v(r1)}, {v(r0)}", f"v_permlane16_swap_b32 {v(r0)}, {v(r1)}"]

    def gather4(self, c):
        P = self.P
        P(f"v_permlane16_swap_b32 {v(c[0])}, {v(c[1])}")
        P(f"v_permlane16_swap_b32 {v(c[2])}, {v(c[3])}")
        P(f"v_permlane32_swap_b32 {v(c[0])}, {v(c[2])}")

    def unpack_list(self, dst, src, n):
        out = []
        for i in range(n):
            out.append(f"v_lshlrev_b32 {v(dst+2*i)}, 16, {v(src+i)}")
            out.append(f"v_and_b32 {v(dst+2*i+1)}, 0xffff0000, {v(src+i)}")
        return out

    def pack_R(self):
        for i in range(16):
            self.P(f"v_cvt_pk_bf16_f32 {v(PK+i)}, {v(R+2*i)}, {v(R+2*i+1)}")

    def pub_offsets(self, xbuf, stbuf, lb=sLB):
        P = self.P
        P(f"s_lshl_b32 {s(sPUB)}, {s(sTT)}, 16")
        P(f"s_lshl_b32 {s(T[0])}, {s(sFS)}, 12")
        P(f"s_add_u32 {s(sPUB)}, {s(sPUB)}, {s(T[0])}")
        P(f"s_lshr_b32 {s(sSTO)}, {s(sPUB)}, 4")
        P(f"s_add_u32 {s(sPUB)}, {s(sPUB)}, {s(lb)}")
        P(f"s_add_u32 {s(sSTO)}, {s(sSTO)}, {s(lb)}")
        if xbuf:
            P(f"s_add_u32 {s(sPUB)}, {s(sPUB)}, {xbuf}")
        if stbuf is not None:
            P(f"s_add_u32 {s(sSTO)}, {s(sSTO)}, {stbuf}")

    def stat_load(self, st, so, i, tag):
        self.P.vm(f"buffer_load_dwordx4 {v(st+4*i,4)}, {v(vL16)}, {srd(WS)}, {s(so)} offen offset:{1024*i} sc1", tag)

    def stat_sum_list(self, st):
        o = []
        for step in (8, 4):
            for i in range(step):
                o.append(f"v_add_f32 {v(st+i)}, {v(st+i)}, {v(st+i+step)}")
        o.append(f"v_permlane32_swap_b32 {v(st)}, {v(st+2)}")
        o.append(f"v_permlane32_swap_b32 {v(st+1)}, {v(st+3)}")
        o.append(f"v_add_f32 {v(st)}, {v(st)}, {v(st+2)}")
        o.append(f"v_add_f32 {v(st+1)}, {v(st+1)}, {v(st+3)}")
        o.append(f"v_permlane16_swap_b32 {v(st)}, {v(st+1)}")
        o.append(f"v_add_f32 {v(st)}, {v(st)}, {v(st+1)}")
        o.append(f"v_mul_f32 {v(st)}, {f32(1/1024)}, {v(st)}")
        o.append(f"v_mov_b32 {v(st+1)}, {v(st)}")
        o.append(f"v_permlane32_swap_b32 {v(st)}, {v(st+1)}")
        o.append(f"v_fma_f32 {v(st+1)}, -{v(st)}, {v(st)}, {v(st+1)}")
        o.append(f"v_max_f32 {v(st+1)}, 0, {v(st+1)}")
        return o

    def stat_frag_list(self, ex, mean, sd, tmp):
        o = []
        if sd is not None:
            o.append(f"v_cvt_pk_bf16_f32 {v(tmp)}, 0, {v(sd)}")
            o.append(f"v_sub_f32 {v(tmp+1)}, {v(sd)}, {v(tmp)}")
            o.append(f"v_permlane32_swap_b32 {v(tmp)}, {v(tmp+1)}")
        o.append(f"v_cvt_pk_bf16_f32 {v(ex+1)}, -{v(mean)}, {v(tmp) if sd is not None else 0}")
        o.append(f"v_lshlrev_b32 {v(tmp)}, 16, {v(ex+1)}")
        o.append(f"v_add_f32 {v(tmp)}, {v(tmp)}, {v(mean)}")
        o.append(f"v_cvt_pk_bf16_f32 {v(ex)}, -{v(mean)}, -{v(tmp)}")
        o += self.split_list(ex + 1, ex + 3)
        o += self.split_list(ex, ex + 2)
        return o

    def cs_frag_list(self, ex, cs, b, tmp):
        return [f"v_cvt_pk_bf16_f32 {v(ex)}, {v(cs)}, {v(cs)}",
                f"v_and_b32 {v(tmp)}, 0xffff0000, {v(ex)}",
                f"v_sub_f32 {v(tmp)}, {v(cs)}, {v(tmp)}",
                f"v_cvt_pk_bf16_f32 {v(ex+1)}, {v(tmp)}, {v(b) if b is not None else 0}"]

    def wq_setup(self):
        P = self.P
        P(f"s_lshl_b32 {s(sSA)}, {s(sW)}, 16")
        P(f"s_lshl_b32 {s(T[0])}, {s(sFS)}, 7")
        P(f"s_add_u32 {s(sSA)}, {s(sSA)}, {s(T[0])}")

    def wq_slot(self, e, rot, i0=0, i1=4, tag="wq"):
        P = self.P
        if i0 == 0:
            if rot:
                P(f"s_add_u32 {s(sDL)}, {s(sTAU)}, {e & 3}")
                P(f"s_and_b32 {s(sDL)}, {s(sDL)}, 3")
                if e & 4:
                    P(f"s_or_b32 {s(sDL)}, {s(sDL)}, 4")
                P(f"s_add_u32 {s(sDS)}, {s(sDL)}, {s(sJJ)}")
                P(f"s_lshl_b32 {s(sDL)}, {s(sDL)}, 14")
                P(f"s_add_u32 {s(sDL)}, {s(sDL)}, {s(sW4K)}")
            else:
                P(f"s_add_u32 {s(sDS)}, {s(sJJ)}, {e}")
                P(f"s_add_u32 {s(sDL)}, {s(sW4K)}, {e * 16384}")
            P(f"s_and_b32 {s(sDS)}, {s(sDS)}, 7")
            P(f"s_lshl_b32 {s(sDS)}, {s(sDS)}, 18")
            P(f"s_add_u32 {s(sDS)}, {s(sDS)}, {s(sSA)}")
        for i in range(i0, i1):
            if i == i0:
                P(f"s_mov_b32 m0, {s(sDL)}")
            if i:
                P(f"s_add_u32 {s(sDS)}, {s(sDS)}, {16384 - 1024}")
            P.vm(f"buffer_load_dwordx4 {v(vDS2K)}, {srd(WQ)}, {s(sDS)} offen offset:{1024*i} lds", tag)

    def grp_wq(self, e):
        pre = [f"s_add_u32 {s(sDS)}, {s(sJJ)}, {e}", f"s_and_b32 {s(sDS)}, {s(sDS)}, 7", f"s_lshl_b32 {s(sDS)}, {s(sDS)}, 18",
               f"s_add_u32 {s(sDS)}, {s(sDS)}, {s(sSA)}", f"s_add_u32 m0, {s(sW4K)}, {e * 16384}"]
        nxt = [f"s_add_u32 {s(sDS)}, {s(sDS)}, {16384 - 1024}"]
        return [(list(nxt if i else pre), f"buffer_load_dwordx4 {v(vDS2K)}, {srd(WQ)}, {s(sDS)} offen offset:{1024*i} lds", "wq") for i in range(4)]

    def grp_wkv(self, g):
        pre = [f"s_lshl2_add_u32 {s(sDS)}, {s(sW4K)}, {g * 4096}", f"s_add_u32 m0, {s(sW4K)}, {g * 16384}"]
        return [([] if i else pre, f"buffer_load_dwordx4 {v(vL16)}, {srd(WKV)}, {s(sDS)} offen offset:{1024*i} lds", ("wkv", g >> 1)) for i in range(4)]

    def grp_wp(self, c):
        pre = [f"s_add_u32 m0, {s(sW4K)}, {self.slot_of(c)*16384}", f"s_add_u32 {s(sKS)}, {s(sCSO)}, {c*16384}"]
        return [([] if i else pre, f"buffer_load_dwordx4 {v(vL16)}, {srd(WS)}, {s(sKS)} offen offset:{1024*i} sc1 lds", ("C", c)) for i in range(4)]

    def emit_dma(self, x):
        for t in x[0]:
            self.P(t)
        self.P.vm(x[1], x[2])

    def wkv_slot(self, g, rot, i0=0, i1=4):
        P = self.P
        if i0 == 0:
            if rot:
                P(f"s_add_u32 {s(sDL)}, {s(sTAU)}, {g}")
                P(f"s_and_b32 {s(sDL)}, {s(sDL)}, 3")
                P(f"s_lshl_b32 {s(sDL)}, {s(sDL)}, 12")
                P(f"s_lshl2_add_u32 {s(sDS)}, {s(sW4K)}, {s(sDL)}")
                P(f"s_lshl2_add_u32 {s(sDL)}, {s(sDL)}, {s(sW4K)}")
            else:
                P(f"s_lshl2_add_u32 {s(sDS)}, {s(sW4K)}, {g * 4096}")
                P(f"s_add_u32 {s(sDL)}, {s(sW4K)}, {g * 16384}")
        for i in range(i0, i1):
            if i == i0:
                P(f"s_mov_b32 m0, {s(sDL)}")
            P.vm(f"buffer_load_dwordx4 {v(vL16)}, {srd(WKV)}, {s(sDS)} offen offset:{1024*i} lds", "wkv")

    def prologue(self):
        P = self.P
        P("s_cmp_ge_u32 s2, 256")
        P("s_cbranch_scc1 L_end")
        if self.stamps and self.o.get("xs"):
            P(f"s_memrealtime {s(ARR,2)}")
        for reg, off in ((WS, 96), (X0, 0), (WQ, 8), (WO, 32), (T[4], 48), (B1, 56), (T[6], 64), (B2, 72), (OUT, 80), (DBG, 88)):
            P(f"s_load_dwordx2 {s(reg,2)}, s[0:1], {off}")
        P(f"s_load_dwordx4 {s(T[0],4)}, s[0:1], 16")
        P(f"s_getpc_b64 {s(CODE,2)}")
        P("L_pc:")
        P(f"s_mov_b32 {s(CODE+2)}, L_end-L_pc")
        P(f"s_mov_b32 {s(CODE+3)}, 0x00020000")
        P(f"s_lshr_b32 {s(sTO)}, s2, 3")
        P(f"s_mul_i32 {s(sTO)}, {s(sTO)}, 3072")
        P(f"v_mul_u32_u24 {v(vL4)}, 12, v0")
        P.vm(f"buffer_load_dwordx3 {v(72,3)}, {v(vL4)}, {srd(CODE)}, {s(sTO)} offen", "code")
        P(f"v_lshrrev_b32 {v(vTMP)}, 6, v0")
        P(f"v_and_b32 {v(vLANE)}, 63, v0")
        P(f"v_readfirstlane_b32 {s(sW)}, {v(vTMP)}")
        for reg, n in ((WS, WS_BYTES), (X0, 4 * MB), (WQ, 2 * MB), (WKV, 65536), (WO, 2 * MB), (PKS, 7 * MB), (B1, 7168), (B2, 2048), (OUT, 4 * MB), (DBG, 256)):
            P(f"s_mov_b32 {s(reg+2)}, {n}")
            P(f"s_mov_b32 {s(reg+3)}, 0x00020000")
        sp = self.o["span"]
        if sp == 2:
            P(f"s_and_b32 {s(sKH)}, s2, 1")
            P(f"s_bfe_u32 {s(sJJ)}, s2, 0x30003")
            P(f"s_bfe_u32 {s(sTAU)}, s2, 0x20001")
            P(f"s_lshl_b32 {s(sTAU)}, {s(sTAU)}, 2")
            P(f"s_lshr_b32 {s(sJ)}, s2, 6")
            P(f"s_add_u32 {s(sTAU)}, {s(sTAU)}, {s(sJ)}")
        elif sp == 4:
            P(f"s_bfe_u32 {s(sKH)}, s2, 0x10001")
            P(f"s_bfe_u32 {s(sJJ)}, s2, 0x20003")
            P(f"s_and_b32 {s(sJ)}, s2, 1")
            P(f"s_lshl2_add_u32 {s(sJJ)}, {s(sJ)}, {s(sJJ)}")
            P(f"s_bfe_u32 {s(sTAU)}, s2, 0x10002")
            P(f"s_lshr_b32 {s(sJ)}, s2, 5")
            P(f"s_lshl3_add_u32 {s(sTAU)}, {s(sTAU)}, {s(sJ)}")
        else:
            P(f"s_bfe_u32 {s(sKH)}, s2, 0x10006")
            P(f"s_bfe_u32 {s(sJJ)}, s2, 0x30003")
            P(f"s_and_b32 {s(sTAU)}, s2, 7")
            P(f"s_lshl_b32 {s(sTAU)}, {s(sTAU)}, 1")
            P(f"s_lshr_b32 {s(sJ)}, s2, 7")
            P(f"s_add_u32 {s(sTAU)}, {s(sTAU)}, {s(sJ)}")
        P(f"s_lshl3_add_u32 {s(sJ)}, {s(sKH)}, {s(sJJ)}")
        P(f"s_and_b32 {s(sFS)}, {s(sJ)}, 3")
        P(f"s_lshr_b32 {s(sJJ)}, {s(sJJ)}, 2")
        P(f"s_lshl1_add_u32 {s(sJJ)}, {s(sFS)}, {s(sJJ)}")
        P(f"s_lshr_b32 {s(sTT)}, {s(sJ)}, 2")
        P(f"s_lshl2_add_u32 {s(sFS)}, {s(sFS)}, {s(sTT)}")
        P(f"s_lshl2_add_u32 {s(sTT)}, {s(sTAU)}, {s(sW)}")
        P(f"s_mov_b32 {s(sL)}, 0")
        P(f"s_mov_b32 {s(sLB)}, {LAYER0}")
        P(f"s_mov_b32 {s(sONE)}, 1")
        P(f"s_lshl_b32 {s(sCO)}, {s(sTT)}, 9")
        P(f"s_lshl_b32 {s(sCT)}, {s(sTAU)}, 7")
        P(f"s_lshl_b32 {s(sW4K)}, {s(sW)}, 12")
        P(f"v_lshlrev_b32 {v(vL16)}, 4, {v(vLANE)}")
        P(f"v_lshlrev_b32 {v(vL4)}, 2, {v(vLANE)}")
        P(f"v_mov_b32 {v(vSTAMP)}, 0")
        l = v(vLANE)
        P(f"v_and_b32 {v(vROW)}, 15, {l}")
        P(f"v_lshlrev_b32 {v(vROW)}, 11, {v(vROW)}")
        P(f"v_bfe_u32 {v(vTMP)}, {l}, 4, 1")
        P(f"v_lshl_or_b32 {v(vROW)}, {v(vTMP)}, 5, {v(vROW)}")
        P(f"v_lshrrev_b32 {v(vTMP)}, 5, {l}")
        P(f"v_lshl_or_b32 {v(vROW)}, {v(vTMP)}, 4, {v(vROW)}")
        self.row_offsets()
        P(f"v_lshrrev_b32 {v(A[1])}, 2, {l}")
        P(f"v_lshlrev_b32 {v(vTR)}, 7, {v(A[1])}")
        P(f"v_bfe_u32 {v(A[1])}, {l}, 3, 2")
        P(f"v_lshl_or_b32 {v(vTR)}, {v(A[1])}, 5, {v(vTR)}")
        P(f"v_and_b32 {v(A[1])}, 3, {l}")
        P(f"v_lshl_or_b32 {v(vTR)}, {v(A[1])}, 3, {v(vTR)}")
        P(f"s_lshl_b32 {s(sTO)}, {s(sW)}, 15")
        P(f"v_add_u32 {v(vTR)}, {s(sTO)}, {v(vTR)}")
        P(f"v_lshrrev_b32 {v(A[1])}, 1, {l}")
        P(f"v_lshrrev_b32 {v(A[2])}, 4, {l}")
        P(f"v_xor_b32 {v(A[1])}, {v(A[1])}, {v(A[2])}")
        P(f"v_and_b32 {v(A[1])}, 3, {v(A[1])}")
        P(f"v_and_b32 {v(A[2])}, 1, {l}")
        P(f"v_lshlrev_b32 {v(A[2])}, 4, {v(A[2])}")
        P(f"v_lshl_or_b32 {v(A[2])}, {v(A[1])}, 5, {v(A[2])}")
        P(f"v_lshrrev_b32 {v(A[1])}, 3, {l}")
        P(f"v_lshl_or_b32 {v(vDS2K)}, {v(A[1])}, 11, {v(A[2])}")
        for i in range(4):
            P(f"v_mov_b32 {v(64+i)}, 0")
        P(f"v_lshlrev_b32 {v(A[1])}, 9, {l}")
        P(f"v_lshlrev_b32 {v(A[2])}, 7, {l}")
        P(f"v_lshl_or_b32 {v(A[2])}, {v(vTMP)}, 30, {v(A[2])}")
        P(f"v_cmp_gt_u32 vcc, 24, {l}")
        P(f"v_mov_b32 {v(A[3])}, {OOB}")
        P(f"v_cndmask_b32 {v(A[3])}, {v(A[3])}, {v(vL16)}, vcc")
        P(f"s_lshl2_add_u32 {s(sPD)}, s2, {s(sW)}")
        P.wait_all(vm=False)
        self.stamp(0)
        if self.stamps and self.o.get("xs"):
            P(f"v_writelane_b32 {v(vSTAMP)}, {s(ARR)}, 33")
            self.xnames.append("entry")
        P(f"s_cmp_eq_u32 {s(sKH)}, 0")
        P(f"s_cselect_b32 {s(WKV)}, {s(T[0])}, {s(T[2])}")
        P(f"s_cselect_b32 {s(WKV+1)}, {s(T[1])}, {s(T[3])}")
        P("s_cmp_lt_u32 s2, 112")
        P(f"s_cselect_b32 {s(PKS)}, {s(T[4])}, {s(T[6])}")
        P(f"s_cselect_b32 {s(PKS+1)}, {s(T[5])}, {s(T[7])}")
        P(f"s_cmp_lg_u32 {s(sJ)}, 0")
        P("s_cbranch_scc1 L_nozero")
        P(f"buffer_store_dwordx4 {v(64,4)}, {v(A[3])}, {srd(WS)}, {s(sCO)} offen offset:128 sc1")
        P("L_nozero:")
        P(f"s_cmp_lg_u32 {s(sPD)}, 0")
        P("s_cbranch_scc1 L_nozero2")
        P(f"s_load_dword {s(sTO)}, {s(DBG,2)}, 128")
        P(f"s_mov_b32 {s(T[0])}, {CT_TEAM}")
        P(f"buffer_store_dwordx4 {v(64,4)}, {v(A[1])}, {srd(WS)}, 0 offen sc1")
        P(f"buffer_store_dwordx4 {v(64,4)}, {v(A[1])}, {srd(WS)}, 0 offen offset:16 sc1")
        P(f"buffer_store_dwordx4 {v(64,4)}, {v(A[2])}, {srd(WS)}, {s(T[0])} offen sc1")
        P("L_nozero2:")
        for i in range(4):
            P.vm(f"buffer_load_dwordx4 {v(PK+4*i,4)}, {v(vROW)}, {srd(X0)}, {s((sPUB,sSTO)[i&1])} offen offset:{64*(i>>1)}", "x0")
        P("s_barrier")
        P(f"s_cmp_lg_u32 {s(sPD)}, 0")
        P("s_cbranch_scc1 L_noflag")
        P("s_waitcnt vmcnt(4) lgkmcnt(0)")
        P(f"s_atomic_add {s(sONE)}, {s(DBG,2)}, 0")
        P("L_noflag:")
        if self.o.get("l2pre", 0):
            P(f"v_lshrrev_b32 {v(A[1])}, 4, {l}")
            P(f"v_and_b32 {v(A[2])}, 0xf0, {v(vL16)}")
            P(f"v_lshl_or_b32 {v(A[1])}, {v(A[1])}, 9, {v(A[2])}")
            P(f"s_lshr_b32 {s(T[0])}, s2, 3")
            P(f"s_lshl2_add_u32 {s(T[0])}, {s(T[0])}, {s(sW)}")
            P(f"s_lshl_b32 {s(T[1])}, {s(T[0])}, 9")
            P(f"v_lshlrev_b32 {v(A[2])}, 1, {v(vL4)}")
            P.vm(f"buffer_load_dwordx2 {v(76,2)}, {v(A[2])}, {srd(WKV)}, {s(T[1])} offen", "pre")
            P(f"s_lshl_b32 {s(T[0])}, {s(T[0])}, 14")
            P(f"s_lshl_b32 {s(T[1])}, {s(sKH)}, 8")
            P(f"s_add_u32 {s(T[0])}, {s(T[0])}, {s(T[1])}")
            for i in range(8):
                P.vm(f"buffer_load_dwordx4 {v(128+4*i,4)}, {v(A[1])}, {srd(WQ)}, {s(T[0])} offen offset:{2048*(i&1)}", "pre")
                if i & 1:
                    P(f"s_add_u32 {s(T[0])}, {s(T[0])}, 4096")
        self.wq_setup()
        seq = [lambda g=g: self.wkv_slot(g, True) for g in range(4)] + [lambda e=e: self.wq_slot(e, True) for e in range(4, 8)]
        n0, n1 = self.o.get("pro", [2, 4])
        for f in seq[:n0]:
            f()
        self.pub_offsets(XP, STX)
        P(f"v_mov_b32 {v(A[1])}, 0")
        self.xstamp("pre x0 wait")
        P.wait(vm="x0")
        self.xstamp("x0 landed")
        for t in self.rowswap_list(PK, 4):
            P(t)
        self.stats_and_store(sPUB, sSTO)
        P.vm(f"buffer_load_dword {v(68)}, {v(A[1])}, {srd(DBG)}, 0 offen sc1", "pub")
        self.xstamp("pub issued")
        for f in seq[n0:n1]:
            f()
        self.xstamp("w issued")
        P.wait(vm="pub")
        self.xstamp("pub drained")
        P(f"s_mov_b32 {s(sTO)}, 0")
        P("L_dbg:")
        P(f"v_readfirstlane_b32 {s(T[0])}, {v(68)}")
        P(f"s_cmp_lg_u32 {s(T[0])}, 0")
        P("s_cbranch_scc1 L_dbgok")
        P(f"s_add_u32 {s(sTO)}, {s(sTO)}, 1")
        P(f"s_cmp_ge_u32 {s(sTO)}, 0x20000")
        P("s_cbranch_scc1 L_dbgok")
        P(f"buffer_load_dword {v(68)}, {v(A[1])}, {srd(DBG)}, 0 offen sc1")
        P("s_waitcnt vmcnt(0)")
        P("s_branch L_dbg")
        P("L_dbgok:")
        self.arrive(sCO, 0)
        self.xstamp("arrived")
        for f in seq[n1:]:
            f()
        self.xstamp("wq hi issued")
        P.wait(vm="wkv")
        self.kv_weights()
        self.xstamp("kw read")
        for e in range(4):
            self.wq_slot(e, True)
        self.xstamp("wq lo issued")
        self.p1_setup("a")

    def row_offsets(self):
        P = self.P
        P(f"s_lshl_b32 {s(sPUB)}, {s(sTT)}, 16")
        P(f"s_lshl_b32 {s(sSTO)}, {s(sFS)}, 7")
        P(f"s_add_u32 {s(sPUB)}, {s(sPUB)}, {s(sSTO)}")
        P(f"s_add_u32 {s(sSTO)}, {s(sPUB)}, 32768")

    KX = 128

    @staticmethod
    def kw(sx, off, n):
        return a(224 + 8 * sx + off, n) if sx < 4 else v(32 + 8 * sx + off, n)

    def kw_addr(self):
        l = v(vLANE)
        return [f"v_lshrrev_b32 {v(A[5])}, 2, {l}", f"v_lshlrev_b32 {v(A[5])}, 6, {v(A[5])}", f"v_and_b32 {v(vTMP)}, 3, {l}",
                f"v_lshl_or_b32 {v(A[5])}, {v(vTMP)}, 3, {v(A[5])}", f"v_add_u32 {v(A[5])}, {s(sW4K)}, {v(A[5])}"]

    def kw_read(self, sx, m, e):
        self.P.lg(f"ds_read_b64_tr_b16 {self.kw(sx,4*m+2*e,2)}, {v(A[5])} offset:{(sx>>1)*16384+(sx&1)*2048+e*1024+m*32}", ("kw", sx))

    def kv_weights(self):
        P = self.P
        for t in self.kw_addr():
            P(t)
        for sx in range(8):
            for m in range(2):
                for e in range(2):
                    self.kw_read(sx, m, e)
            if sx >= 2:
                P.wait(lg=("kw", sx - 2))
        P.wait_all(vm=False)

    XA2 = 124

    def x_addr(self, xbuf, tab, by_wave):
        P = self.P
        P(f"s_lshl_b32 {s(sXK)}, {s(sTT)}, 16")
        P(f"s_add_u32 {s(sXK)}, {s(sXK)}, {s(sLB)}")
        if xbuf:
            P(f"s_add_u32 {s(sXK)}, {s(sXK)}, {xbuf}")
        P(f"v_add_u32 {v(A[0])}, {s(sXK)}, {v(vL16)}")
        P(f"v_add_u32 {v(self.XA2)}, 4096, {v(A[0])}")
        for n in range(4):
            if by_wave:
                P(f"s_xor_b32 {s(sXK)}, {s(sW)}, {(0, 1, 3, 2)[n]}")
                P(f"s_lshl1_add_u32 {s(sXK)}, {s(sXK)}, {s(sJJ)}")
            else:
                P(f"s_add_u32 {s(sXK)}, {s(sJJ)}, {2*n}")
            P(f"s_lshl_b32 {s(sXK)}, {s(sXK)}, 13")
            P(f"s_and_b32 {s(tab+2*n)}, {s(sXK)}, 0xffff")
            P(f"s_add_u32 {s(sXK)}, {s(sXK)}, 8192")
            P(f"s_and_b32 {s(tab+2*n+1)}, {s(sXK)}, 0xffff")
        self.xtab = tab

    def gemm_a_addr(self, xbuf):
        self.x_addr(xbuf, ARR, True)
        for t in range(4):
            self.P(f"v_xor_b32 {v(A[1+t])}, {32*t}, {v(vTR)}")

    def xload(self, x, mask=63):
        self.P.vm(f"buffer_load_dwordx4 {a(4*(x&mask),4)}, {v((A[0], self.XA2)[(x>>2)&1])}, {srd(WS)}, {s(self.xtab+(x>>3))} offen offset:{1024*(x&3)} sc1", ("X", x))

    WB = 64

    def ga_read(self, f, e):
        p, t = f >> 2, f & 3
        self.P.lg(f"ds_read_b64_tr_b16 {v(self.WB+4*(f&7)+2*e,2)}, {v(A[1+t])} offset:{(p&7)*4096+e*2048}", ("W", f))

    def gemm_a(self, acc, zero_init, nx, fill, f0=0, f1=128, cs=None, LA=None):
        P = self.P
        LA, DL = LA or self.o["LA"], 5
        if f0 == 0:
            for f in range(DL):
                self.ga_read(f, 0)
                self.ga_read(f, 1)

        def one(f, mem_ok):
            if fill and fill[0][0] <= f and (mem_ok or not fill[0][1]):
                x = fill.pop(0)[2]
                x() if callable(x) else P(x)
        for f in range(f0, f1):
            p, t = f >> 2, f & 3
            if self.o.get("fine") == [-1, 4]:
                if f & 3 == 0:
                    P(f"s_memtime {s(sTM,2)}")
                if f & 3 == 3:
                    P(f"v_writelane_b32 {v(vSTAMP)}, {s(sTM)}, {(f >> 2) + (0 if zero_init else 32)}")
            if f == 0:
                P.wait(vm=("X", 1), lg=("W", 1))
            w = v(self.WB + 4 * (f & 7), 4)
            for k in range(2):
                th = k ^ (t & 1)
                d = v(acc + 16 * (t >> 1) + 8 * th + 4 * (t & 1), 4)
                P(f"v_mfma_f32_16x16x32_bf16 {d}, {w}, {a(4*((2*p+th)&31),4)}, {0 if zero_init and p == 0 else d}")
                if k == 1 and f & 1:
                    P.wait(vm=("X", 2 * p + 3) if t == 3 else None, lg=("W", min(f + 2, 127)))
                g = f + DL
                if g < 128:
                    self.ga_read(g, k)
                if k == 0:
                    if 32 <= g + 1 < 128 and (g + 1) & 31 < 4:
                        P(f"v_xor_b32 {v(A[1+((g+1)&3)])}, {0x10000 if (g+1)>>5 == 2 else 0x8000}, {v(A[1+((g+1)&3)])}")
                    else:
                        one(f, False)
            if cs is not None:
                d = v(cs[0] + 4 * t, 4)
                P(f"v_mfma_f32_16x16x32_bf16 {d}, {v(cs[1],4)}, {w}, {0 if p == 0 else d}")
            if f & 1 == 0 and nx < min(64, (f >> 1) + LA + 1):
                self.xload(nx, 31)
                nx += 1
            else:
                one(f, True)
        return nx

    def p1_setup(self, sfx):
        P = self.P
        KA, KC, ONES = 160, 168, 184
        l = v(vLANE)
        P(f"s_lshr_b32 {s(T[4])}, {s(sJJ)}, 1")
        P(f"s_lshl2_add_u32 {s(T[4])}, {s(sTAU)}, {s(T[4])}")
        P(f"s_and_b32 {s(T[5])}, {s(sJJ)}, 1")
        P(f"s_lshl_b32 {s(T[3])}, {s(T[4])}, 9")
        P(f"s_lshl2_add_u32 {s(T[3])}, {s(sL)}, {s(T[3])}")
        for i in range(4):
            P(f"v_mov_b32 {v(ONES+i)}, 0x3f803f80")
        un = self.unpack_list(R, PK, 16)
        for sx in range(8):
            for m in range(2):
                d = v(KC + 4 * m, 4)
                P(f"v_mfma_f32_16x16x32_bf16 {d}, {self.kw(sx,4*m,4)}, {v(ONES,4)}, {d if sx else 0}")
                P(un.pop(0))
                P(un.pop(0))
        self.gemm_a_addr(XP)
        P(f"s_lshl_b32 {s(T[0])}, {s(T[4])}, 16")
        P(f"s_lshl_b32 {s(T[1])}, {s(T[5])}, 10")
        P(f"s_add_u32 {s(T[0])}, {s(T[0])}, {s(T[1])}")
        P(f"s_lshl2_add_u32 {s(T[0])}, {s(sW4K)}, {s(T[0])}")
        P(f"s_add_u32 {s(T[0])}, {s(T[0])}, {s(sLB)}")
        P(f"s_lshl_b32 {s(T[1])}, {s(T[4])}, 12")
        P(f"s_add_u32 {s(T[1])}, {s(T[1])}, {s(sLB)}")
        P(f"s_add_u32 {s(T[2])}, {s(T[1])}, {STX}")
        P(f"s_cmp_lg_u32 {s(T[5])}, 0")
        P("s_cselect_b64 vcc, -1, 0")
        P(f"v_and_b32 {v(KA)}, 15, {l}")
        P(f"v_bfe_u32 {v(KA+1)}, {l}, 4, 1")
        P(f"v_lshrrev_b32 {v(KA+2)}, 5, {l}")
        P(f"s_mul_i32 {s(T[6])}, {s(sW)}, 2112")
        P(f"s_add_u32 {s(T[6])}, {s(T[6])}, {KVR}")
        P(f"v_mul_u32_u24 {v(KA+3)}, 1056, {v(KA+2)}")
        P(f"s_add_u32 {s(T[1])}, {s(T[1])}, {KV}")
        P(f"s_cmp_lg_u32 {s(sKH)}, 0")
        P("s_cbranch_scc1 L_vaddr" + sfx)
        P(f"v_and_b32 {v(A[5])}, 0x1f0, {v(vL16)}")
        P(f"v_add_u32 {v(A[5])}, {v(A[5])}, {v(KA+3)}")
        P(f"v_mov_b32 {v(A[6])}, {v(A[5])}")
        P(f"v_lshlrev_b32 {v(A[7])}, 4, {v(KA)}")
        P(f"v_lshl_or_b32 {v(A[7])}, {v(KA+1)}, 10, {v(A[7])}")
        P(f"v_lshl_or_b32 {v(A[7])}, {v(KA+2)}, 9, {v(A[7])}")
        P(f"s_lshl_b32 {s(T[5])}, {s(T[5])}, 8")
        P("s_branch L_kvaddr" + sfx)
        P("L_vaddr" + sfx + ":")
        P(f"v_bfe_u32 {v(A[5])}, {l}, 2, 2")
        P(f"v_mul_u32_u24 {v(A[5])}, 528, {v(A[5])}")
        P(f"v_and_b32 {v(A[6])}, 0xcc, {v(vL4)}")
        P(f"v_add_u32 {v(A[5])}, {v(A[5])}, {v(A[6])}")
        P(f"v_and_b32 {v(A[6])}, 7, {l}")
        P(f"v_lshl_or_b32 {v(A[6])}, {v(KA+1)}, 3, {v(A[6])}")
        P(f"v_bfe_u32 {v(A[7])}, {l}, 3, 1")
        P(f"v_lshl_or_b32 {v(A[6])}, {v(A[7])}, 4, {v(A[6])}")
        P(f"v_lshl_add_u32 {v(A[6])}, {v(A[6])}, 4, {v(KA+3)}")
        P(f"v_mov_b32 {v(A[7])}, {v(vL16)}")
        P(f"s_lshl_b32 {s(T[5])}, {s(T[5])}, 10")
        P(f"s_add_u32 {s(T[5])}, {s(T[5])}, 2048")
        P("L_kvaddr" + sfx + ":")
        P(f"s_add_u32 {s(T[1])}, {s(T[1])}, {s(T[5])}")
        P(f"s_cmp_eq_u32 {s(sW)}, 0")
        P(f"s_cselect_b32 {s(T[1])}, {s(T[1])}, {OOB}")
        P(f"s_add_u32 {s(ARR+8)}, {s(sCT)}, {CT_TEAM}")
        P(f"s_add_u32 {s(ARR+9)}, {s(sCT)}, {CT_REP}")
        P(f"s_add_u32 {s(ARR+10)}, {s(sCO)}, 24")
        P(f"s_cmp_eq_u32 {s(sW)}, 0")
        P(f"s_cselect_b32 {s(ARR+8)}, {s(ARR+8)}, {s(ARR+10)}")
        P(f"s_cselect_b32 {s(ARR+9)}, {s(ARR+9)}, {s(ARR+10)}")
        P(f"s_cselect_b32 {s(ARR+10)}, 16, 0")
        P(f"s_cselect_b32 {s(ARR+11)}, 1, 0")
        P(f"s_lshl_b32 {s(ARR+12)}, {s(sTT)}, 12")
        P(f"s_add_u32 {s(ARR+12)}, {s(ARR+12)}, {s(sLB)}")
        P(f"s_add_u32 {s(ARR+12)}, {s(ARR+12)}, {STX}")
        P(f"s_lshl_b32 {s(ARR+13)}, {s(sTAU)}, 14")
        P(f"s_lshr_b32 {s(sSB)}, {s(sW4K)}, 1")
        P(f"s_add_u32 {s(sKS)}, {s(ARR+13)}, {s(sSB)}")
        P(f"s_add_u32 {s(sKS)}, {s(sKS)}, 2048")
        P(f"s_add_u32 {s(sSB)}, {s(sSB)}, {RING}")
        P(f"s_add_u32 {s(ARR+14)}, {s(sLB)}, {KV}")
        P(f"v_add_u32 {v(A[5])}, {s(T[6])}, {v(A[5])}")
        P(f"v_add_u32 {v(A[6])}, {KVR}, {v(A[6])}")

    def p1(self):
        P = self.P
        KX = self.KX
        KA, KC, KS, KR, ONES, QA, CSA, ST, EXB = 160, 168, 104, 128, 184, 224, 168, 104, 120
        l = v(vLANE)
        P.vmq = []
        self.poll_issue(T[3], 0)
        self.poll_issue(sCO, 0, sPD2)
        self.stamp(1)
        self.poll_check(T[3], 0, 16)
        self.stamp(2)
        for i in range(4):
            self.stat_load(KS, T[2], i, "ks")
        for sx in range(8):
            P.vm(f"buffer_load_dwordx4 {a(KX+4*sx,4)}, {v(vL16)}, {srd(WS)}, {s(T[0])} offen offset:{2048*(sx&1)} sc1", ("kx", sx))
            if sx & 1:
                P(f"s_add_u32 {s(T[0])}, {s(T[0])}, 4096")
        self.poll_check(sCO, 0, 16, sPD2)
        nxs = self.o.get("nxs", [4, 4, 4, 4])
        nx = nxs[0]
        for x in range(nx):
            self.xload(x, 31)
        self.xstamp("kv loads issued")
        P.wait(vm="ks")
        self.xstamp("ks landed")
        for t in self.stat_sum_list(KS):
            P(t)
        P(f"v_add_f32 {v(KS+1)}, {f32(1e-5)}, {v(KS+1)}")
        P(f"v_mov_b32 {v(KS+2)}, {v(KS)}")
        P(f"v_mov_b32 {v(KS+3)}, {v(KS+1)}")
        P(f"v_permlane16_swap_b32 {v(KS)}, {v(KS+2)}")
        P(f"v_permlane16_swap_b32 {v(KS+1)}, {v(KS+3)}")
        P(f"v_cndmask_b32 {v(KS)}, {v(KS)}, {v(KS+2)}, vcc")
        P(f"v_cndmask_b32 {v(KS+1)}, {v(KS+1)}, {v(KS+3)}, vcc")
        P(f"v_rsq_f32 {v(KS+1)}, {v(KS+1)}")
        for i in range(8):
            P(f"v_mul_f32 {v(KC+i)}, -{v(KS)}, {v(KC+i)}")
        for sx in range(8):
            P.wait(vm=("kx", sx))
            for m in range(2):
                P(f"v_mfma_f32_16x16x32_bf16 {v(KC+4*m,4)}, {self.kw(sx,4*m,4)}, {a(KX+4*sx,4)}, {v(KC+4*m,4)}")
        self.xstamp("kv mfma done")
        for x in range(nx, nx + nxs[1]):
            self.xload(x, 31)
        nx += nxs[1]
        for i in range(8):
            P(f"v_mul_f32 {v(KA+i)}, {v(KS+1)}, {v(KC+i)}")
        P(f"s_cmp_lg_u32 {s(sKH)}, 0")
        P("s_cbranch_scc1 L_vwr")
        for m in range(2):
            P(f"ds_write_b128 {v(A[5])}, {v(KA+4*m,4)} offset:{528*m}")
        P("s_branch L_kvwr")
        P("L_vwr:")
        for m in range(2):
            for r in range(4):
                P(f"ds_write_b32 {v(A[5])}, {v(KA+4*m+r)} offset:{256*m+16*r}")
        P("L_kvwr:")
        P.wait_all(vm=False)
        self.xstamp("kv written")
        P("s_barrier")
        self.xstamp("kv barrier")
        for w in range(4):
            for e in range(2):
                P.lg(f"ds_read_b128 {v(KR+8*w+4*e,4)}, {v(A[6])} offset:{2112*w+528*e}", ("kr", w))
        for x in range(nx, nx + nxs[2]):
            self.xload(x, 31)
        nx += nxs[2]
        P.wait(lg=("kr", 1))
        for i in range(8):
            P(f"v_add_f32 {v(KR+i)}, {v(KR+i)}, {v(KR+8+i)}")
        P.wait(lg=("kr", 3))
        for i in range(8):
            P(f"v_add_f32 {v(KR+16+i)}, {v(KR+16+i)}, {v(KR+24+i)}")
        for i in range(8):
            P(f"v_add_f32 {v(KR+i)}, {v(KR+i)}, {v(KR+16+i)}")
        for i in range(4):
            P(f"v_cvt_pk_bf16_f32 {v(KA+i)}, {v(KR+2*i)}, {v(KR+2*i+1)}")
        P.vm(f"buffer_store_dwordx4 {v(KA,4)}, {v(A[7])}, {srd(WS)}, {s(T[1])} offen sc1", "kvst")
        self.stamp(3)
        for x in range(nx, nx + nxs[3]):
            self.xload(x, 31)
        nx += nxs[3]

        def h_arr():
            P.wait(vm="kvst")
            P(f"s_atomic_add {s(ARR+11)}, {s(WS,2)}, {s(ARR+8)} glc")

        def h_fin():
            slow, back = P.newlabel("slow"), P.newlabel("back")
            P(f"s_bitcmp1_b32 0x8002, {s(ARR+11)}")
            P(f"s_cbranch_scc1 {slow}")
            P(f"{back}:")
            self.slow.append((slow, back, lambda: self.two_level_finish(0, ARR + 11)))

        def h_kv():
            self.poll_fast(ARR + 9, 0, s(ARR + 10))
            P("s_barrier")
            self.stamp(5)

        def k0(m):
            return lambda: P.vm(f"buffer_load_dwordx4 {v(self.KF+4*m,4)}, {v(A[5])}, {srd(WS)}, {s(ARR+13)} offen offset:{1024*m} sc1", "k0")

        def kvd(i):
            return lambda: P.vm(f"buffer_load_dwordx4 {v(A[5])}, {srd(WS)}, {s(sKS)} offen offset:{1024*i} sc1 lds", "kv")

        c = math.log2(math.e) / math.sqrt(32)
        SUMA = self.SUMA
        alu = [f"v_mov_b32 {v(self.O_+i)}, 0" for i in range(32)] + [f"v_mov_b32 {v(self.LA_+i)}, 0" for i in range(8)]
        alu += [f"v_and_b32 {v(vTMP)}, 7, {l}", f"v_cmp_eq_u32 vcc, 0, {v(vTMP)}", f"v_mov_b32 {v(A[7])}, 0xdddd",
                f"v_cndmask_b32 {v(SUMA)}, 0, {v(ONES)}, vcc", f"v_cndmask_b32 {v(SUMA+1)}, 0, {v(ONES)}, vcc",
                f"v_cmp_eq_u32 vcc, 4, {v(vTMP)}", f"v_add_u32 {v(A[6])}, {RING}, {v(vL16)}",
                f"v_cndmask_b32 {v(SUMA+2)}, 0, {v(ONES)}, vcc", f"v_cndmask_b32 {v(SUMA+3)}, 0, {v(ONES)}, vcc",
                f"v_add_u32 {v(A[5])}, {s(ARR+14)}, {v(vL16)}"]
        harr, hfin, hpoll, hkv = self.o.get("hq", [8, 30, 80, 102])
        fill = [(0, True, (lambda i=i: self.stat_load(ST, ARR + 12, i, "st"))) for i in range(4)]
        fill += [(0, False, t) for t in alu[:6]] + [(harr, False, h_arr)] + [(0, False, t) for t in alu[6:30]]
        fill += [(hfin, False, h_fin)] + [(0, False, t) for t in alu[30:]]
        st = self.stat_sum_list(ST)
        st += [f"v_add_f32 {v(ST+1)}, {f32(1e-5)}, {v(ST+1)}", f"v_rsq_f32 {v(ST+1)}, {v(ST+1)}"]
        st += self.stat_frag_list(EXB, ST, None, ST + 2)
        st += [f"v_mul_f32 {v(ST+1)}, {f32(c)}, {v(ST+1)}"] + self.split_list(ST + 1, ST + 2)
        fill += [(0, False, lambda: P.wait(vm="st"))] + [(0, False, t) for t in st]
        fill += [(hpoll - 1, False, f"s_mov_b32 {s(sPD)}, 0"), (hpoll, False, f"s_atomic_add {s(sPD)}, {s(WS,2)}, {s(ARR+9)} glc")]
        fill += [(0, False, f"s_mov_b32 m0, {s(sSB)}"), (hkv, True, h_kv), (0, True, k0(0)), (0, True, k0(1)), (0, True, kvd(0)), (0, True, kvd(1))]
        fill += [(0, False, f"s_add_u32 {s(sKS)}, {s(sKS)}, 8192"), (0, False, f"s_add_u32 m0, {s(sSB)}, 8192"),
                 (0, False, f"s_and_b32 {s(sKS)}, {s(sKS)}, 0x3ffff"), (0, True, kvd(0)), (0, True, kvd(1)),
                 (0, False, f"s_add_u32 {s(sKS)}, {s(sKS)}, 8192")]
        LQ = self.o.get("LQ", 16)
        P(f"s_cmp_lg_u32 {s(sL)}, 0")
        P("s_cbranch_scc1 L_q_nocs")
        q0 = (list(P.vmq), list(P.lgq))
        self.gemm_a(QA, True, nx, list(fill), 0, 32, cs=(CSA, ONES), LA=LQ)
        q1 = (list(P.vmq), list(P.lgq))
        self.gather4([CSA + 4 * t for t in range(4)])
        P(f"s_lshr_b32 {s(T[1])}, {s(sW4K)}, 4")
        P(f"s_add_u32 {s(T[1])}, {s(T[1])}, {CSQ}")
        P(f"v_add_u32 {v(CSA+1)}, {s(T[1])}, {v(vL4)}")
        P(f"ds_write_b32 {v(CSA+1)}, {v(CSA)}")
        P("s_waitcnt lgkmcnt(0)")
        P("s_branch L_q_rest")
        P("L_q_nocs:")
        P.vmq, P.lgq = q0
        nx = self.gemm_a(QA, True, nx, fill, 0, 32, LA=LQ)
        assert (P.vmq, P.lgq) == q1
        P("L_q_rest:")
        self.gemm_a(QA, True, nx, fill, 32, 128, LA=LQ)
        assert not fill
        self.stamp(4)
        P(f"s_cmp_lg_u32 {s(sL)}, 0")
        P("s_cbranch_scc1 L_q_fin")
        P(f"v_and_b32 {v(vTMP)}, 15, {l}")
        P(f"v_lshlrev_b32 {v(vTMP)}, 2, {v(vTMP)}")
        P(f"v_lshrrev_b32 {v(A[1])}, 4, {l}")
        P(f"v_lshl_or_b32 {v(vTMP)}, {v(A[1])}, 8, {v(vTMP)}")
        P(f"v_add_u32 {v(vTMP)}, {CSQ}, {v(vTMP)}")
        for t in range(4):
            P(f"ds_read_b32 {v(ST+4+t)}, {v(vTMP)} offset:{64*t}")
        P("s_waitcnt lgkmcnt(0)")
        for t in range(4):
            for x in self.cs_frag_list(EXQ + 2 * t, ST + 4 + t, None, ST + 8 + t):
                P(x)
        self.pack_setup()
        P("L_q_fin:")
        ini = [f"v_mov_b32 {v(self.SB[3]+i)}, {f32(-1e30)}" for i in range(16)]
        for t in range(4):
            for th in range(2):
                d = v(QA + 16 * (t >> 1) + 8 * th + 4 * (t & 1), 4)
                P(f"v_mfma_f32_16x16x16_bf16 {d}, {v(EXQ+2*t,2)}, {v(EXB+2*th,2)}, {d}")
                P(ini.pop(0))
                P(ini.pop(0))
        for i in range(16):
            P(f"v_mov_b32 {v(self.SB[2]+i)}, 0")
        for i in range(32):
            P(f"v_mul_f32 {v(QA+i)}, {v(ST+1+((i>>3)&1))}, {v(QA+i)}")
        for i in range(16):
            P(f"v_cvt_pk_bf16_f32 {v(PK+i)}, {v(QA+2*i)}, {v(QA+2*i+1)}")
        for i in range(8):
            P(f"v_mov_b32 {v(self.VF+8+i)}, 0")
        for hd in range(2):
            for k in range(4):
                P(f"v_permlane16_swap_b32 {v(PK+8*hd+k)}, {v(PK+8*hd+4+k)}")

    QF, SB, VF, O_, LA_, KF, ONES, SUMA = 48, (224, 240, 64, 80), 104, 128, 160, 168, 184, 188

    def qk(self, i, m, c=None):
        n, hd = i >> 1, i & 1
        d = v(self.SB[i & 3], 16)
        c = c or ("0" if m == 0 else d)
        return f"v_mfma_f32_32x32x16_bf16 {d}, {v(self.KF+8*(n&1)+4*m,4)}, {v(self.QF+8*hd+4*m,4)}, {c}"

    def pv(self, i, m):
        n, hd = i >> 1, i & 1
        if self.o.get("aabl") == "pvconst" and m == 0:
            return f"v_smfmac_f32_16x16x64_bf16 {v(EXA+24,4)}, {v(self.SUMA,4)}, {v(self.SB[i&3]+8*m,8)}, {v(A[7])}"
        return f"v_smfmac_f32_32x32x32_bf16 {v(self.O_+16*hd,16)}, {v(self.VF+8*(n&1)+4*m,4)}, {v(self.SB[i&3]+8*m,8)}, {v(A[7])}"

    def sm(self, i, m):
        ab = self.o.get("aabl")
        if ab == "sumzero":
            return f"v_smfmac_f32_16x16x64_bf16 {v(self.LA_+4*(i&1),4)}, {v(EXA+20,4)}, {v(EXA+16,8)}, {v(A[7])}"
        if ab == "addnop":
            return f"s_nop 2\nv_smfmac_f32_16x16x64_bf16 {v(self.LA_+4*(i&1),4)}, {v(self.SUMA,4)}, {v(self.SB[i&3]+8*m,8)}, {v(A[7])}"
        return f"v_smfmac_f32_16x16x64_bf16 {v(self.LA_+4*(i&1),4)}, {v(self.SUMA,4)}, {v(self.SB[i&3]+8*m,8)}, {v(A[7])}"

    def ex(self, i, r):
        return f"v_exp_f32 {v(self.SB[i&3]+r)}, {v(self.SB[i&3]+r)}"

    def att_body(self, rs, nextra, mask):
        P = self.P
        kv = lambda off: P(f"buffer_load_dwordx4 {v(A[5])}, {srd(WS)}, {s(sKS)} offen offset:{off} sc1 lds")
        for it in range(4):
            for u in range(4):
                i = 4 * it + u + 3
                if u & 1 == 0:
                    n = (i + 1) // 2 + 1
                    rdst, roff = self.KF + 8 * (n & 1), 2048 + 2048 * u
                else:
                    n = i // 2
                    rdst, roff = self.VF + 8 * (n & 1), 2048 * (u - 1)
                rd = [f"ds_read_b128 {v(rdst+4*m,4)}, {v(A[6])} offset:{8192*it+roff+1024*m}" for m in range(2)]
                even = it & 1 == 0
                kvslot = even and u < 2
                exslot = (even and u >= 2 or (not even and u < 2 and nextra == 2))
                P(self.qk(i + 1, 0))
                if even and u == 0:
                    P("s_waitcnt lgkmcnt(0)")
                    P("s_barrier")
                elif kvslot:
                    P(f"s_add_u32 m0, {s(sSB)}, {8192*((it+3)&3)}")
                elif exslot:
                    P(f"s_mov_b32 m0, {s(sDL)}")
                for r in range(0, 3):
                    P(self.ex(i, r))
                P(self.sm(i - 1, 0))
                P(rd[0])
                for r in range(3, 5):
                    P(self.ex(i, r))
                P(self.qk(i + 1, 1))
                if self.o.get("fine") == [-2, 1]:
                    P(f"v_writelane_b32 {v(vSTAMP)}, {s(sTM)}, {((4*it+u-1)&15) + 16*(nextra-1)}")
                    P(f"s_memtime {s(sTM,2)}")
                if not (even and u == 0):
                    P("s_waitcnt lgkmcnt(1)")
                for r in range(5, 8):
                    P(self.ex(i, r))
                P(self.pv(i - 1, 0))
                if kvslot:
                    P(f"s_and_b32 {s(sKS)}, {s(sKS)}, 0x3ffff")
                    kv(0)
                elif exslot:
                    if mask:
                        P(f"s_and_b32 {s(sDS)}, {s(sDS)}, {mask}")
                    P(f"buffer_load_dwordx4 {v(A[0])}, {srd(rs)}, {s(sDS)} offen lds")
                elif it == 3 and u == 2:
                    P(f"s_add_u32 {s(sTRIP)}, {s(sTRIP)}, 1")
                for r in range(8, 11):
                    P(self.ex(i, r))
                P(self.sm(i - 1, 1))
                P(rd[1])
                for r in range(11, 13):
                    P(self.ex(i, r))
                P(self.pv(i - 1, 1))
                if kvslot:
                    kv(1024)
                    P(f"s_add_u32 {s(sKS)}, {s(sKS)}, 8192")
                elif exslot:
                    P(f"s_add_u32 {s(sDS)}, {s(sDS)}, {s(sSA)}")
                    P(f"s_add_u32 {s(sDL)}, {s(sDL)}, 1024")
                elif u == 3:
                    P(f"s_waitcnt vmcnt({2*nextra})")
                    P(f"s_add_u32 m0, {s(sSB)}, {8192*((it+3)&3)}")
                for r in range(13, 16):
                    P(self.ex(i, r))

    def pack_setup(self):
        P = self.P
        l = v(vLANE)
        gw = T[7]
        P(f"s_lshl2_add_u32 {s(gw)}, s2, {s(sW)}")
        P(f"v_add_u32 {v(A[1])}, 16384, {v(vTR)}")
        for t in range(1, 4):
            P(f"v_xor_b32 {v(A[1+t])}, {32*t}, {v(A[1])}")
        for i in range(16):
            P(f"v_mov_b32 {v(EXA+i)}, 0")
        P(f"s_cmp_ge_u32 {s(gw)}, 448")
        P("s_cbranch_scc1 L_pk2")
        P(f"v_lshrrev_b32 {v(vTMP)}, 3, {l}")
        P(f"v_mul_u32_u24 {v(vTMP)}, 5120, {v(vTMP)}")
        P(f"v_add_u32 {v(A[0])}, {v(vTMP)}, {v(vDS2K)}")
        P(f"s_lshr_b32 {s(T[0])}, {s(gw)}, 3")
        P(f"s_and_b32 {s(T[1])}, {s(gw)}, 7")
        P(f"s_mul_i32 {s(sDS)}, {s(T[1])}, {128*7168}")
        P(f"s_lshl_b32 {s(T[2])}, {s(T[0])}, 7")
        P(f"s_add_u32 {s(sDS)}, {s(sDS)}, {s(T[2])}")
        P(f"s_mov_b32 {s(sSA)}, {8*7168}")
        P(f"s_lshl_b32 {s(sCSO)}, {s(T[1])}, 7")
        P(f"s_lshl4_add_u32 {s(sCSO)}, {s(T[2])}, {s(sCSO)}")
        P(f"s_add_u32 {s(sCSO)}, {s(sCSO)}, {CS}")
        P(f"s_bitcmp1_b32 {s(T[1])}, 0")
        P(f"s_cselect_b32 {s(sCSO)}, {OOB}, {s(sCSO)}")
        P(f"s_bitcmp1_b32 {s(T[1])}, 1")
        P(f"s_cselect_b32 {s(T[2])}, {OOB}, {s(T[2])}")
        P(f"v_lshrrev_b32 {v(vTMP)}, 1, {v(vL4)}")
        P(f"buffer_load_ushort {v(EXA+16)}, {v(vTMP)}, {srd(B1)}, {s(T[2])} offen")
        for t in range(2):
            P(f"s_lshl1_add_u32 {s(T[2])}, {s(T[0])}, {t}")
            P(f"s_mul_i32 {s(T[3])}, {s(T[2])}, 9363")
            P(f"s_lshr_b32 {s(T[3])}, {s(T[3])}, 16")
            P(f"s_mul_i32 {s(T[4])}, {s(T[3])}, 7")
            P(f"s_sub_u32 {s(T[2])}, {s(T[2])}, {s(T[4])}")
            P(f"s_bfe_u32 {s(T[4])}, {s(T[3])}, 0x10002")
            P(f"s_lshl1_add_u32 {s(T[4])}, {s(T[3])}, {s(T[4])}")
            P(f"s_sub_u32 {s(T[4])}, {s(T[1])}, {s(T[4])}")
            P(f"s_and_b32 {s(T[4])}, {s(T[4])}, 7")
            P(f"s_mul_i32 {s(T[3])}, {s(T[3])}, {896*1024}")
            P(f"s_cmp_lt_u32 {s(T[2])}, 2")
            P(f"s_cselect_b32 {s(T[5])}, 12, 11")
            P(f"s_cselect_b32 {s(T[6])}, 11, 16")
            P(f"s_lshl_b32 {s(T[5])}, 1, {s(T[5])}")
            P(f"s_lshl_b32 {s(T[2])}, {s(T[2])}, {s(T[6])}")
            P(f"s_mul_i32 {s(T[4])}, {s(T[4])}, {s(T[5])}")
            P(f"s_lshl2_add_u32 {s(T[2])}, {s(T[4])}, {s(T[2])}")
            P(f"s_add_u32 {s(T[2])}, {s(T[2])}, {s(T[3])}")
            P(f"s_add_u32 {s(ARR+t)}, {s(T[2])}, {WP}")
            for i in range(1, 4):
                P(f"s_add_u32 {s(ARR+2*i+t)}, {s(ARR+2*i+t-2)}, {s(T[5])}")
        P("s_branch L_pkdone")
        P("L_pk2:")
        P(f"v_mov_b32 {v(A[0])}, {v(vDS2K)}")
        P(f"s_sub_u32 {s(gw)}, {s(gw)}, 448")
        P(f"s_and_b32 {s(T[0])}, {s(gw)}, 15")
        P(f"s_bfe_u32 {s(T[1])}, {s(gw)}, 0x10004")
        P(f"s_lshr_b32 {s(T[2])}, {s(gw)}, 5")
        P(f"s_mul_i32 {s(sDS)}, {s(T[2])}, 7")
        P(f"s_lshl2_add_u32 {s(sDS)}, {s(T[1])}, {s(sDS)}")
        P(f"s_lshl_b32 {s(sDS)}, {s(sDS)}, 16")
        P(f"s_lshl_b32 {s(T[3])}, {s(T[0])}, 7")
        P(f"s_add_u32 {s(sDS)}, {s(sDS)}, {s(T[3])}")
        P(f"s_mov_b32 {s(sSA)}, 16384")
        P(f"s_mov_b32 {s(sCSO)}, {OOB}")
        P(f"s_lshr_b32 {s(T[3])}, {s(T[0])}, 2")
        P(f"s_sub_u32 {s(T[4])}, {s(T[2])}, {s(T[3])}")
        P(f"s_and_b32 {s(T[4])}, {s(T[4])}, 3")
        P(f"s_lshl4_add_u32 {s(T[4])}, {s(T[1])}, {s(T[4])}")
        P(f"s_lshr_b32 {s(T[2])}, {s(T[2])}, 2")
        P(f"s_sub_u32 {s(T[0])}, {s(T[0])}, {s(T[2])}")
        P(f"s_sub_u32 {s(T[0])}, {s(T[0])}, 1")
        P(f"s_and_b32 {s(T[0])}, {s(T[0])}, 3")
        P(f"s_lshl2_add_u32 {s(T[3])}, {s(T[2])}, {s(T[3])}")
        P(f"s_mul_i32 {s(T[3])}, {s(T[3])}, {896*1024}")
        P(f"s_add_u32 {s(T[3])}, {s(T[3])}, {WP + 448*1024}")
        P(f"s_cmp_ge_u32 {s(gw)}, 512")
        P(f"s_cselect_b32 {s(T[3])}, {OOB}, {s(T[3])}")
        P(f"s_lshl1_add_u32 {s(T[5])}, {s(T[4])}, {s(T[0])}")
        P(f"s_mul_i32 {s(T[6])}, {s(T[0])}, 28")
        P(f"s_add_u32 {s(T[6])}, {s(T[6])}, {s(T[4])}")
        P(f"s_cmp_lt_u32 {s(T[0])}, 2")
        P(f"s_cselect_b32 {s(T[5])}, {s(T[5])}, {s(T[6])}")
        P(f"s_lshl_b32 {s(T[5])}, {s(T[5])}, 12")
        P(f"s_add_u32 {s(ARR)}, {s(T[5])}, {s(T[3])}")
        P(f"s_lshr_b32 {s(T[0])}, {s(T[0])}, 1")
        P(f"s_lshr_b32 {s(T[5])}, 32768, {s(T[0])}")
        P(f"s_lshl_b32 {s(T[6])}, {s(T[1])}, 30")
        for i in range(1, 4):
            P(f"s_add_u32 {s(ARR+2*i)}, {s(ARR+2*i-2)}, {s(T[5])}")
        P(f"s_or_b32 {s(ARR+6)}, {s(ARR+6)}, {s(T[6])}")
        for i in range(4):
            P(f"s_add_u32 {s(ARR+2*i+1)}, {s(ARR+2*i)}, 2048")
        P("L_pkdone:")

    def pack_step(self):
        P = self.P
        for t in range(4):
            for e in range(2):
                P(f"ds_read_b64_tr_b16 {a(4*t+2*e,2)}, {v(A[1+t])} offset:{e*2048}")
        for t in range(4):
            P(f"v_add_u32 {v(A[1+t])}, 4096, {v(A[1+t])}")
        for t in range(4):
            P(f"s_waitcnt lgkmcnt({6-2*t})")
            P(f"v_mfma_f32_16x16x32_bf16 {v(EXA+4*t,4)}, {v(self.ONES,4)}, {a(4*t,4)}, {v(EXA+4*t,4)}")
            P(f"buffer_store_dwordx4 {a(4*t,4)}, {v(vL16)}, {srd(WS)}, {s(ARR+(t>>1))} offen offset:{1024*(t&1)} sc1")
        for i in range(3):
            P(f"s_mov_b64 {s(ARR+2*i,2)}, {s(ARR+2*i+2,2)}")

    def fallback(self):
        P = self.P
        M = 120
        P("s_waitcnt vmcnt(0) lgkmcnt(0)")
        for hd in range(2):
            i = hd
            S, CB = self.SB[i & 3], self.SB[2]
            l1, l2 = P.newlabel("fb"), P.newlabel("fb")
            P(f"v_mov_b32 {v(M)}, 0xff800000")
            P(f"s_mov_b32 {s(T[0])}, 0")
            P(f"{l1}:")
            for m in range(2):
                P(f"buffer_load_dwordx4 {v(self.KF+4*m,4)}, {v(A[5])}, {srd(WS)}, {s(T[0])} offen offset:{1024*m} sc1")
            P("s_waitcnt vmcnt(0)")
            P(self.qk(i, 0))
            P(self.qk(i, 1))
            for r in range(8):
                P(f"v_max3_f32 {v(M)}, {v(S+2*r)}, {v(S+2*r+1)}, {v(M)}")
            P(f"s_add_u32 {s(T[0])}, {s(T[0])}, 4096")
            P(f"s_cmp_lt_u32 {s(T[0])}, 0x40000")
            P(f"s_cbranch_scc1 {l1}")
            P(f"v_mov_b32 {v(vTMP)}, {v(M)}")
            P(f"v_permlane32_swap_b32 {v(M)}, {v(vTMP)}")
            P(f"v_max_f32 {v(M)}, {v(M)}, {v(vTMP)}")
            for r in range(16):
                P(f"v_sub_f32 {v(CB+r)}, 0, {v(M)}")
                P(f"v_mov_b32 {v(self.O_+16*hd+r)}, 0")
            for r in range(4):
                P(f"v_mov_b32 {v(self.LA_+4*hd+r)}, 0")
            P(f"s_mov_b32 {s(T[0])}, 0")
            P(f"{l2}:")
            for m in range(2):
                P(f"buffer_load_dwordx4 {v(self.KF+4*m,4)}, {v(A[5])}, {srd(WS)}, {s(T[0])} offen offset:{1024*m} sc1")
                P(f"buffer_load_dwordx4 {v(self.VF+4*m,4)}, {v(A[5])}, {srd(WS)}, {s(T[0])} offen offset:{2048+1024*m} sc1")
            P("s_waitcnt vmcnt(0)")
            P(self.qk(i, 0, v(CB, 16)))
            P(self.qk(i, 1))
            for r in range(16):
                P(self.ex(i, r))
            for m in range(2):
                P(self.pv(i, m))
                P(self.sm(i, m))
            P(f"s_add_u32 {s(T[0])}, {s(T[0])}, 4096")
            P(f"s_cmp_lt_u32 {s(T[0])}, 0x40000")
            P(f"s_cbranch_scc1 {l2}")
            P("s_nop 11")

    def p2(self):
        P = self.P
        P(f"s_mov_b32 {s(sTRIP)}, 0")
        P(f"s_lshl3_add_u32 {s(sDL)}, {s(sW4K)}, 16384")
        P.wait_all()
        self.stamp(6)
        P(f"s_add_u32 m0, {s(sSB)}, 16384")
        P(".p2align 3")
        P("L_att_a:")
        self.att_body(PKS, 1, None)
        P(f"s_lshl3_add_u32 {s(T[0])}, {s(sL)}, {s(sTRIP)}")
        P(f"s_sub_u32 {s(T[0])}, {s(T[0])}, 2")
        P(f"s_cmp_lt_u32 {s(T[0])}, 3")
        P("s_cbranch_scc1 L_pack_a")
        P("L_att_a_back:")
        P(f"s_cmp_lt_u32 {s(sTRIP)}, 4")
        P("s_cbranch_scc1 L_att_a")
        P(f"s_lshl1_add_u32 {s(sDS)}, {s(sW)}, {s(sJJ)}")
        P(f"s_lshl_b32 {s(sDS)}, {s(sDS)}, 18")
        P(f"s_mov_b32 {s(sSA)}, 16384")
        P(f"s_lshl_b32 {s(T[0])}, {s(sFS)}, 7")
        P(f"v_add_u32 {v(A[0])}, {s(T[0])}, {v(vDS2K)}")
        P(f"s_lshl_b32 {s(sDL)}, {s(sW)}, 15")
        P(".p2align 3")
        P("L_att_c:")
        self.att_body(WO, 2, 0x1fffff)
        P(f"s_cmp_eq_u32 {s(sL)}, 0")
        P("s_cbranch_scc1 L_pack_c")
        P("L_att_c_back:")
        P(f"s_cmp_lt_u32 {s(sTRIP)}, 8")
        P("s_cbranch_scc1 L_att_c")
        i = 127
        P(self.sm(i - 1, 0))
        P("s_waitcnt lgkmcnt(0)")
        for r in range(0, 3):
            P(self.ex(i, r))
        P(self.pv(i - 1, 0))
        for r in range(3, 6):
            P(self.ex(i, r))
        P(self.pv(i - 1, 1))
        for r in range(6, 9):
            P(self.ex(i, r))
        P(self.sm(i - 1, 1))
        for r in range(9, 11):
            P(self.ex(i, r))
        P(self.pv(i, 0))
        for r in range(11, 14):
            P(self.ex(i, r))
        P(self.sm(i, 0))
        for r in range(14, 16):
            P(self.ex(i, r))
        P("s_nop 1")
        P(self.sm(i, 1))
        P(self.pv(i, 1))
        self.pub_offsets(OP, None)
        l = v(vLANE)
        P(f"v_and_b32 {v(A[6])}, 15, {l}")
        P(f"v_lshlrev_b32 {v(A[6])}, 4, {v(A[6])}")
        P(f"v_bfe_u32 {v(vTMP)}, {l}, 4, 1")
        P(f"v_lshl_or_b32 {v(A[6])}, {v(vTMP)}, 10, {v(A[6])}")
        P(f"v_lshrrev_b32 {v(vTMP)}, 5, {l}")
        P(f"v_lshl_or_b32 {v(A[6])}, {v(vTMP)}, 8, {v(A[6])}")
        self.stamp(7)
        lo, hi = (2.0 ** -60, 2.0 ** 60) if not self.force_fallback else (1.0, 0.5)
        RC = 122
        P(f"v_min_f32 {v(RC)}, {v(self.LA_)}, {v(self.LA_+4)}")
        P(f"v_add_f32 {v(RC+1)}, {v(self.LA_)}, {v(self.LA_+4)}")
        P(f"v_cmp_nle_f32 vcc, {f32(lo)}, {v(RC)}")
        P(f"s_mov_b64 {s(T[2],2)}, vcc")
        P(f"v_cmp_nge_f32 vcc, {f32(hi)}, {v(RC+1)}")
        P(f"s_or_b64 {s(T[2],2)}, {s(T[2],2)}, vcc")
        if not self.o.get("aabl"):
            P("s_cbranch_scc1 L_fallback")
        P("L_att_fin:")
        for hd in range(2):
            P(f"v_rcp_f32 {v(RC+hd)}, {v(self.LA_+4*hd)}")
        for hd in range(2):
            for r in range(16):
                P(f"v_mul_f32 {v(self.O_+16*hd+r)}, {v(RC+hd)}, {v(self.O_+16*hd+r)}")
            for r in range(8):
                P(f"v_cvt_pk_bf16_f32 {v(PK+8*hd+r)}, {v(self.O_+16*hd+2*r)}, {v(self.O_+16*hd+2*r+1)}")
            for m in range(2):
                P(f"buffer_store_dwordx4 {v(PK+8*hd+4*m,4)}, {v(A[6])}, {srd(WS)}, {s(sPUB)} offen offset:{2048*hd+512*m} sc1")
        self.xstamp("O stores issued")
        self.gemm_a_addr(OP)
        P(f"v_and_b32 {v(A[5])}, 48, {v(vROW)}")
        P(f"s_lshl_b32 {s(T[0])}, {s(sFS)}, 7")
        P(f"s_mul_i32 {s(T[1])}, {s(sJ)}, 7168")
        P(f"s_add_u32 {s(T[1])}, {s(T[1])}, {CS}")
        P(f"s_add_u32 {s(T[3])}, {s(T[1])}, 4096")
        P(f"s_lshl_b32 {s(T[2])}, {s(sTAU)}, 7")
        P(f"s_mul_i32 {s(sCSO)}, {s(sJ)}, {896*1024}")
        P(f"s_add_u32 {s(sCSO)}, {s(sCSO)}, {s(sW4K)}")
        P(f"s_add_u32 {s(sCSO)}, {s(sCSO)}, {WP}")
        P.wait_all()
        self.xstamp("O drained")

    def pack_side(self):
        P = self.P
        P("L_pack_a:")
        self.pack_step()
        P("s_branch L_att_a_back")
        P("L_pack_c:")
        P(f"s_cmp_lg_u32 {s(sTRIP)}, 5")
        P("s_cbranch_scc1 L_pack_c6")
        self.pack_step()
        P("s_nop 3")
        self.gather4([EXA + 4 * t for t in range(4)])
        P(f"s_lshl3_add_u32 {s(T[0])}, {s(sW4K)}, 31744")
        P(f"v_add_u32 {v(EXA+17)}, {s(T[0])}, {v(vL4)}")
        P(f"ds_write_b32 {v(EXA+17)}, {v(EXA)}")
        P("s_branch L_att_c_back")
        P("L_pack_c6:")
        P(f"s_cmp_lg_u32 {s(sTRIP)}, 6")
        P("s_cbranch_scc1 L_pack_c7")
        l = v(vLANE)
        P(f"v_xor_b32 {v(EXA+17)}, 0x8000, {v(EXA+17)}")
        P(f"ds_read_b32 {v(EXA+1)}, {v(EXA+17)}")
        P(f"v_lshlrev_b32 {v(EXA+16)}, 16, {v(EXA+16)}")
        P(f"v_and_b32 {v(EXA+18)}, 0xf0, {v(vL16)}")
        P(f"v_bfe_u32 {v(EXA+19)}, {l}, 4, 1")
        P(f"v_lshl_or_b32 {v(EXA+18)}, {v(EXA+19)}, 3, {v(EXA+18)}")
        P(f"v_lshrrev_b32 {v(EXA+19)}, 5, {l}")
        P(f"v_lshl_or_b32 {v(EXA+18)}, {v(EXA+19)}, 10, {v(EXA+18)}")
        P("s_waitcnt lgkmcnt(0)")
        P(f"v_add_f32 {v(EXA)}, {v(EXA)}, {v(EXA+1)}")
        for x in self.cs_frag_list(EXA + 2, EXA, EXA + 16, EXA + 1):
            P(x)
        P(f"buffer_store_dwordx2 {v(EXA+2,2)}, {v(EXA+18)}, {srd(WS)}, {s(sCSO)} offen sc1")
        P("s_branch L_att_c_back")
        P("L_pack_c7:")
        P(f"s_cmp_lg_u32 {s(sTRIP)}, 7")
        P("s_cbranch_scc1 L_pack_c8")
        self.two_level_issue(8)
        P("s_branch L_att_c_back")
        P("L_pack_c8:")
        self.two_level_finish(8)
        P("s_branch L_att_c_back")

    def slot_of(self, c):
        if self.o.get("deep", 1):
            return (c + 4) % 10
        return (c + 6) % 10 if c < 44 else 4 + (c - 44) % 6

    def wp_chunk(self, c, i):
        self.emit_dma(self.grp_wp(c)[i])

    B2P = 176

    def p3(self):
        P = self.P
        self.stamp(8)
        self.arrive_wait(sCO, 8, 16)
        self.stamp(9)
        for x in range(self.o["LO"]):
            self.xload(x, 31)
        P("s_barrier")
        early = [c for c in range(10) if self.slot_of(c) >= 8]
        t0 = 2 * (64 - self.o["LO"])
        fill = [(40, True, (lambda i=i: P.vm(f"buffer_load_dwordx4 {v(self.B2P+4*i,4)}, {v(A[5])}, {srd(B2)}, {s(T[0])} offen offset:{64*i}", "b2")))
                for i in range(2)]
        fill += [(t0 - 26, False, f"s_mov_b32 {s(sPD2)}, 0"), (0, False, f"s_atomic_add {s(sPD2)}, {s(WS,2)}, {s(T[2])} offset:{CT_REP + 8} glc")]
        fill += [(t0 - 8, False, lambda: P.wait(vm="b2"))] + [(0, False, t) for t in self.rowswap_list(self.B2P, 2)]
        fill += [(t0 - 2, False, lambda: self.poll_fast(T[2], CT_REP + 8, 16, sPD2))]
        for c in early:
            for pre, txt, tag in self.grp_wp(c):
                fill += [(0, False, t) for t in pre] + [(0, True, (lambda txt=txt, tag=tag: P.vm(txt, tag)))]
        fill += [(0, True, (lambda u=u: P.vm(f"buffer_load_dwordx4 {v(EXA+4*u,4)}, {v(vL16)}, {srd(WS)}, {s(T[3] if u >= 4 else T[1])} offen offset:{1024*(u&3)} sc1", "exa")))
                 for u in range(7)]
        self.gemm_a(R, False, self.o["LO"], fill, LA=self.o["LO"])
        assert not fill
        self.pub_offsets(X1P, ST1)
        self.stamp(10)
        self.pack_R()
        self.stats_and_store(sPUB, sSTO)
        self.xstamp("x1 stores issued")
        P("s_barrier")
        pre = [c for c in range(self.o["npre"]) if c not in early]
        n0 = self.o.get("npre0", 2)
        for c in pre[:n0]:
            for i in range(4):
                self.wp_chunk(c, i)
        P(f"s_lshl_b32 {s(sSTO)}, {s(sTT)}, 12")
        P(f"s_add_u32 {s(sSTO)}, {s(sSTO)}, {s(sLB)}")
        P(f"s_add_u32 {s(sSTO)}, {s(sSTO)}, {ST1}")
        self.mlp_addr()
        self.x_addr(X1P, T[0], False)
        P.wait(vm="pub")
        self.xstamp("x1 drained")

        def rest():
            fl = self.unpack_list(R, PK, 16)
            for c in pre[n0:]:
                if c == pre[-self.o.get("npoll", 2)]:
                    self.poll_issue(sCO, 16, sPD2)
                for i in range(4):
                    self.wp_chunk(c, i)
                    for _ in range(2):
                        if fl:
                            P(fl.pop(0))
            for t in fl:
                P(t)
            self.stamp(11)
        self.arrive_wait(sCO, 16, 16, rest)
        self.stamp(12)

    sHC, sPM, sPI, sLO, sHI = range(ARR + 4, ARR + 9)
    sPF = [ARR + 9, ARR + 10, ARR + 11]
    sPO = [ARR + 12, ARR + 13, ARR + 14]

    def mlp_addr(self):
        P = self.P
        P(f"v_add_u32 {v(A[2])}, 0x10000, {v(vL16)}")
        P(f"v_add_u32 {v(A[3])}, 0x20000, {v(vL16)}")
        P(f"s_mul_i32 {s(T[0])}, {s(sTT)}, {224*1024}")
        P(f"s_add_u32 {s(T[0])}, {s(T[0])}, {s(sLB)}")
        P(f"s_add_u32 {s(T[0])}, {s(T[0])}, {HP}")
        P(f"s_mul_i32 {s(T[1])}, {s(sJ)}, 14336")
        P(f"s_add_u32 {s(sPUB)}, {s(T[0])}, {s(T[1])}")
        P(f"s_and_b32 {s(T[2])}, {s(sJ)}, 12")
        P(f"s_mul_i32 {s(T[1])}, {s(T[2])}, 14336")
        P(f"s_add_u32 {s(T[0])}, {s(T[0])}, {s(T[1])}")
        P(f"v_add_u32 {v(A[4])}, {s(T[0])}, {v(vL16)}")
        for r in range(4):
            P(f"s_add_u32 {s(T[0])}, {s(sJ)}, {r}")
            P(f"s_and_b32 {s(T[0])}, {s(T[0])}, 3")
            P(f"s_mul_i32 {s(ARR+r)}, {s(T[0])}, 14336")
        P(f"s_lshl2_add_u32 {s(self.sHC)}, {s(T[2])}, {s(sCO)}")
        P(f"s_lshl_b32 {s(T[0])}, {s(sTT)}, 9")
        P(f"s_lshl_b32 {s(T[1])}, {s(sL)}, 6")
        P(f"s_add_u32 {s(T[0])}, {s(T[0])}, {s(T[1])}")
        P(f"s_lshl2_add_u32 {s(self.sPM)}, {s(sJ)}, {s(T[0])}")
        P(f"s_lshl_b32 {s(T[1])}, {s(sTT)}, 16")
        P(f"s_add_u32 {s(T[1])}, {s(T[1])}, {s(sLB)}")
        P(f"s_add_u32 {s(T[1])}, {s(T[1])}, {PART}")
        P(f"s_lshl_b32 {s(T[2])}, {s(sJ)}, 12")
        P(f"s_add_u32 {s(self.sPI)}, {s(T[1])}, {s(T[2])}")
        for n in range(3):
            P(f"s_add_u32 {s(T[2])}, {s(sJ)}, {4*(n+1)}")
            P(f"s_and_b32 {s(T[2])}, {s(T[2])}, 15")
            P(f"s_lshl2_add_u32 {s(self.sPF[n])}, {s(T[2])}, {s(T[0])}")
            P(f"s_add_u32 {s(T[2])}, {s(T[2])}, {n * 1024}")
            P(f"s_lshl_b32 {s(T[2])}, {s(T[2])}, 12")
            P(f"s_add_u32 {s(self.sPO[n])}, {s(T[1])}, {s(T[2])}")
        P(f"s_mov_b32 {s(self.sLO)}, 0x00003f80")
        P(f"s_mov_b32 {s(self.sHI)}, 0x3f800000")
        self.wq_setup()
        for t in self.kw_addr():
            P(t)
        P(f"s_cmp_eq_u32 {s(sL)}, 0")
        P(f"s_cselect_b32 {s(WQ+2)}, {2*MB}, 0")
        P(f"s_cselect_b32 {s(WKV+2)}, 65536, 0")
        P(f"s_mov_b32 {s(PKS+2)}, 0")

    def mlp(self):
        P = self.P
        o = self.o
        DSL, BG = o["DSL"], o.get("BG", 1)
        abl = o.get("abl", "")
        sHC, sPF, sPM, sPO, sPI = self.sHC, self.sPF, self.sPM, self.sPO, self.sPI
        BLK = [64, 80, 160, 176]
        WF, ST, EXB, C1, C2, SD, TM = 128, 160, 104, 108, 110, 220, 224
        ACC = [[112, 240], [BLK[3], BLK[0]], [BLK[1], BLK[2]], [R, R + 16]]
        PBUF = [PK, TM, PK]
        PIN = [BLK[3], TM, BLK[2]]
        SUMP = [112 + k if k < 16 else 224 + k for k in range(32)]
        steps = []
        tile_end = {}

        def slot(f, xt, xs, blk, half, z):
            steps.append(dict(f=f, x=xt, xs=xs, acc=blk + 4 * half, half=half, z=z, blk=blk))

        def extra(t):
            for half in range(2):
                steps.append(dict(ex=2 * t + half, acc=BLK[t & 3] + 4 * half))
            tile_end[t] = len(steps) - 1
        for p in range(32):
            for k in range(4):
                slot(4 * p + k, ("X", 2 * p + 1), 2 * p, BLK[k >> 1], k & 1, p == 0)
        extra(0)
        extra(1)
        x_dead = {}
        for t in range(2, 7):
            for p in range(32):
                for half in range(2):
                    slot(64 * t + 2 * p + half, None, 2 * p, BLK[t & 3], half, p == 0)
                if t == 6:
                    x_dead[p] = len(steps) - 1
            extra(t)
        mlp2_start = len(steps)
        h_use = {}
        f = 448
        for q in range(28):
            h_use[q] = len(steps)
            for k in range(8):
                slot(f, ("H", 2 * q + 1), 2 * q, ACC[k >> 2][(k >> 1) & 1], k & 1, q == 0)
                f += 1
        pass_start = {}
        for n in (2, 3):
            pass_start[n] = len(steps)
            for q in range(28):
                for k in range(4):
                    slot(f, None, 2 * q, ACC[n][k >> 1], k & 1, q == 0 and n == 2)
                    f += 1
        N = len(steps)
        fstep = {st["f"]: i for i, st in enumerate(steps) if "f" in st}
        bars = [c for c in range(56) if c % BG == 0 or c >= 44]
        bar_own = {c: (fstep[16 * c - DSL] - 1 if c else -1) for c in bars}
        bar_at = {st: c for c, st in bar_own.items()}
        bar_pub = {c: bar_own[max(b for b in bars if b <= c)] for c in range(56)}
        bar_free = {c: bar_own[min(b for b in bars if b >= c + 2)] for c in range(54)}
        last_in = lambda sl, c: max([x for x in range(c) if self.slot_of(x) == sl], default=None)

        nx0 = o["LA"]
        for x in range(nx0):
            self.xload(x)

        def dsread(f):
            c, i = f >> 4, f & 15
            addr = self.slot_of(c) * 16384 + i * 1024
            P.lg(f"ds_read_b128 {v(WF+4*(f&7),4)}, {v((vL16, A[2], A[3])[addr>>16])} offset:{addr & 0xffff}", ("F", f))

        def hload(qq):
            t, r = qq >> 3, qq & 7
            if r == 0 and t and t & 1 == 0:
                P(f"v_add_u32 {v(A[4])}, 4096, {v(A[4])}")
            P.vm(f"buffer_load_dwordx4 {a(4*qq,4)}, {v(A[4])}, {srd(WS)}, {s(ARR+(r>>1))} offen offset:{2048*(t&1)+1024*(r&1)} sc1", ("H", qq))

        PG = o.get("PG", 22)

        def off_bar(x):
            while x in bar_at or x - PG in bar_at:
                x += 1
            return x
        flags = o.get("flags", [[2, -62], [4, 56], [5, 112], [6, 160]])
        polls = {t: (off_bar(mlp2_start + at), sHC, (128, 136, 192, 200)[n], 4) for n, (t, at) in enumerate(flags)}
        arrivals = {t: (("hs", t), sHC, polls[t][2]) for t in polls}
        polls["p1"] = (off_bar(pass_start[3] + o.get("p1chk", 10)), sPM, 256, 2)
        polls["p2"] = (off_bar(N - o.get("pchk", 36)), sPM, 384, 1)
        arrivals.update({"p0": (("ps", 0), sPF[0], 256), "p1": (("ps", 1), sPF[1], 256), "p2": (("ps", 2), sPF[2], 384)})
        arrived = {}
        ST_AT = o.get("stat", 64)
        KW_AT = [off_bar(pass_start[3] + x) for x in o.get("kw", [40, 66])]
        PA_AT = off_bar(polls["p1"][0] + o.get("plw", 52))
        P2_AT = off_bar(polls["p2"][0] + o.get("plw2", 24))

        ops = []
        for x in range(nx0, 64):
            ops.append(dict(dl=4 * (x >> 1) - 1, av=0, fn=(lambda x=x: self.xload(x)), k="x"))
        for i in range(4):
            ops.append(dict(dl=ST_AT - 8 + 2 * i, av=0, fn=(lambda i=i: self.stat_load(ST, sSTO, i, "st")), k="s"))
        groups = []
        for c in range(o["npre"], 56):
            prev = last_in(self.slot_of(c), c)
            if "w" not in abl:
                groups.append(dict(dl=bar_pub[c] - (o.get("g0lead", 16) if c < 10 else 0), av=bar_free[prev] + 1 if prev is not None else 0, d=self.grp_wp(c), k="w"))
        for qq in range(56):
            q = qq >> 1
            flag = min(t for t, _ in flags if t >= q >> 2)
            ops.append(dict(dl=h_use[q] - 1, av=max(x_dead[q], polls[flag][0]) + 1, fn=(lambda qq=qq: hload(qq)), k="h"))
        if "n" not in abl:
            for g in range(4):
                groups.append(dict(dl=KW_AT[g >> 1] - o.get("kwlead", 10), av=bar_free[last_in(g, 56)] + 1, d=self.grp_wkv(g), k="n"))
            for e in range(8):
                groups.append(dict(dl=N + 100 + (e ^ 4), av=bar_free[last_in(e, 56)] + 1, d=self.grp_wq(e), k="n",
                                   need=("kw", 2 * e + 1) if e < 4 else None))
        queues = {k: [x for x in ops if x["k"] == k and k not in abl] for k in "xsh"}
        cur = [None]

        def pick_group(i):
            if cur[0] is None:
                cand = [g for g in groups if g["av"] <= i + 2 and (not g.get("need") or (g["need"] in done and g["need"] not in P.lgq))]
                if cand:
                    cur[0] = min(cand, key=lambda g: g["dl"])
                    groups.remove(cur[0])
            return cur[0]

        items = []

        def item(text, first, deps=(), cost=None, vm=False, mark=None):
            if cost is None:
                cost = 8 if text.startswith(("v_exp", "v_rcp", "v_rsq")) else 4
            items.append(dict(t=text, first=first, deps=list(deps), cost=cost, vm=vm, mark=mark, at=None))
            return items[-1]

        def chain(texts, first, dep=None):
            for t in texts:
                dep = item(t, first, [dep] if dep else [])
            return dep

        def unp(dst, src, k):
            return f"v_and_b32 {v(dst)}, 0xffff0000, {v(src+(k>>1))}" if k & 1 else f"v_lshlrev_b32 {v(dst)}, 16, {v(src+(k>>1))}"
        k1 = -2 * math.sqrt(2 / math.pi) * math.log2(math.e)
        for k in range(16):
            u = item(unp(TM + k, self.B2P, k), 2)
            for th in range(2):
                r = v(R + 16 * (k >> 3) + 8 * th + (k & 7))
                item(f"v_add_f32 {r}, {r}, {v(TM+k)}", 2, [u])
        sl = self.stat_sum_list(ST)
        sl += [f"v_add_f32 {v(ST+2)}, {f32(1e-5)}, {v(ST+1)}", f"v_rsq_f32 {v(ST+2)}, {v(ST+2)}",
               f"v_mul_f32 {v(ST+3)}, {v(ST+1)}, {v(ST+2)}", f"v_fmaak_f32 {v(ST+3)}, {v(ST+3)}, {v(ST+2)}, {f32(1e-5)}",
               f"v_rsq_f32 {v(ST+3)}, {v(ST+3)}", f"v_mul_f32 {v(ST+2)}, {v(ST+2)}, {v(ST+3)}",
               f"v_rcp_f32 {v(SD)}, {v(ST+2)}", f"v_mul_f32 {v(C1)}, {f32(k1)}, {v(ST+2)}",
               f"v_mul_f32 {v(C2)}, {v(ST+2)}, {v(ST+2)}", f"v_mul_f32 {v(C2)}, {v(C2)}, {v(C1)}",
               f"v_mul_f32 {v(C2)}, {f32(0.044715)}, {v(C2)}"]
        sl += self.stat_frag_list(EXB, ST, SD, ST + 4)
        for r in (C1, C2, SD):
            sl += self.split_list(r, r + 1)
        chain(sl, ST_AT + 1)["mark"] = "st"

        def hstore(t, th):
            def f():
                if th == 0 and t and t & 1 == 0:
                    P(f"s_add_u32 {s(sPUB)}, {s(sPUB)}, 4096")
                P.vm(f"buffer_store_dwordx4 {v(PK+8*(t&1)+4*th,4)}, {v(vL16)}, {srd(WS)}, {s(sPUB)} offen offset:{2048*(t&1)+1024*th} sc1", ("hs", t))
            return f
        cvt_of = {}
        store_of = {}
        prev_store = None
        for t in range(7):
            st0 = tile_end[t] + 3
            b = BLK[t & 3]
            for th in range(2):
                cv = []
                for pr in range(4):
                    last = []
                    for k in range(2):
                        n = 8 * th + 2 * pr + k
                        e, tm = v(b + n), v(TM + n)
                        last.append(chain([f"v_mul_f32 {tm}, {e}, {e}", f"v_fma_f32 {tm}, {tm}, {v(C2+th)}, {v(C1+th)}",
                                           f"v_mul_f32 {tm}, {tm}, {e}", f"v_exp_f32 {tm}, {tm}",
                                           f"v_fma_f32 {tm}, {tm}, {v(SD+th)}, {v(SD+th)}", f"v_rcp_f32 {tm}, {tm}",
                                           f"v_mul_f32 {tm}, {tm}, {e}"], st0, cvt_of.get(n >> 1)))
                    n = 8 * th + 2 * pr
                    dep = last + ([store_of[(t - 2, th)]] if t >= 2 else [])
                    cvt_of[n >> 1] = item(f"v_cvt_pk_bf16_f32 {v(PK+8*(t&1)+4*th+pr)}, {v(TM+n)}, {v(TM+n+1)}", st0, dep)
                    cv.append(cvt_of[n >> 1])
                prev_store = store_of[(t, th)] = item(hstore(t, th), st0, cv + ([prev_store] if prev_store else []), cost=0, vm=True,
                                                      mark=t if th else None)

        def pstore(n, i):
            return lambda: P.vm(f"buffer_store_dwordx4 {v(PBUF[n]+4*i,4)}, {v(vL16)}, {srd(WS)}, {s(sPO[n])} offen offset:{1024*i} sc1", ("ps", n))

        def pload(n, i):
            def f():
                if i == 0 and n:
                    P(f"s_add_u32 {s(sPI)}, {s(sPI)}, {4 * MB}")
                P.vm(f"buffer_load_dwordx4 {v(PIN[n]+4*i,4)}, {v(vL16)}, {srd(WS)}, {s(sPI)} offen offset:{1024*i} sc1", ("pl", n))
            return f

        def send(n, first, gap):
            cvs = []
            for i in range(4):
                src = ACC[n][i >> 1] + 8 * (i & 1)
                cvs.append([item(f"v_cvt_pk_bf16_f32 {v(PBUF[n]+4*i+k)}, {v(src+2*k)}, {v(src+2*k+1)}", first[0],
                                 mark=("cv", n) if i == 3 and k == 3 else None) for k in range(4)])
            for i in range(4):
                item(pstore(n, i), first[1] + gap * i, cvs[i], cost=0, vm=True, mark=f"p{n}" if i == 3 else None)
        gap = o.get("sgap", 7)
        send(0, (pass_start[2] + 2, pass_start[2] + 4), gap)
        send(1, (pass_start[2] + 2, pass_start[2] + 4 + 4 * gap), gap)

        def kw_items(h):
            if "n" not in abl:
                for sx in range(4 * h, 4 * h + 4):
                    for m in range(2):
                        for e in range(2):
                            item((lambda sx=sx, m=m, e=e: self.kw_read(sx, m, e)), KW_AT[h] + 1, cost=5, mark=("kw", sx) if m and e else None)
        kw_items(0)
        send(2, (pass_start[3] + 2, pass_start[3] + 4), o.get("sgap2", 4))
        for n in range(2):
            for i in range(4):
                item(pload(n, i), polls["p1"][0] + 1 + o.get("lgap", 4) * (4 * n + i), cost=0, vm=True)
        kw_items(1)
        acc_of = [item(unp(SUMP[k], PIN[0], k), PA_AT + 1) for k in range(32)]
        tmp_of = {}

        def add_items(n, first):
            for k in range(32):
                u = item(unp(104 + (k & 7), PIN[n], k), first, [tmp_of[k & 7]] if k & 7 in tmp_of else [])
                acc_of[k] = tmp_of[k & 7] = item(f"v_add_f32 {v(SUMP[k])}, {v(SUMP[k])}, {v(104+(k&7))}", first, [u, acc_of[k]])
        add_items(1, PA_AT + 1)
        for i in range(4):
            item(pload(2, i), polls["p2"][0] + 1, cost=0, vm=True)
        add_items(2, P2_AT + 1)

        pending = {}
        done = {}

        def ready(x, i, pos):
            return x["first"] <= i and all(d["at"] is not None and d["at"] < pos for d in x["deps"])

        def emit(x, i, pos):
            x["at"] = pos
            items.remove(x)
            if callable(x["t"]):
                x["t"]()
            elif not ("g" in abl and i > 135):
                P(x["t"])
            if x["mark"] is not None:
                done[x["mark"]] = i
                if x["mark"] in arrivals:
                    pending[x["mark"]] = i

        def fill(i, pos, budget):
            g = pick_group(i)
            while budget >= 4:
                if g and g["d"][0][0]:
                    P(g["d"][0][0].pop(0))
                    g["set"] = pos
                    budget -= 4
                    continue
                cand = [x for x in items[:140] if not x["vm"] and x["cost"] <= budget and ready(x, i, pos)]
                if not cand:
                    break
                big = [x for x in cand[:40] if x["cost"] > 4]
                x = big[0] if big else cand[0]
                budget -= x["cost"] & ~3
                emit(x, i, pos)

        P.wait(vm=[("C", c) for c in range(BG)])
        P("s_barrier")
        for f in range(DSL):
            dsread(f)
        P.wait(vm=("X", 1), lg=("F", 1))
        self.xstamp("mlp first mfma")
        credit = 0.0
        for i, st in enumerate(steps):
            if i == mlp2_start:
                self.stamp(13)
            if i == pass_start[2]:
                self.stamp(14)
            if st.get("z") and i > 4:
                prev = [t for t in range(7) if BLK[t & 3] == st["blk"] and tile_end[t] < i]
                assert not prev or prev[-1] in done, ("accumulator reused before its epilogue", i)
            if "ex" in st:
                assert "st" in done

            def mf(k):
                th = k ^ st.get("half", 0)
                d = v(st["acc"] + 8 * th, 4)
                if "f" in st:
                    assert ("F", st["f"]) not in P.lgq and st["x"] not in P.vmq
                    P(f"v_mfma_f32_16x16x32_bf16 {d}, {v(WF+4*(st['f']&7),4)}, {a(4*(st['xs']+th),4)}, {0 if st['z'] else d}")
                else:
                    P(f"v_mfma_f32_16x16x16_bf16 {d}, {v(EXA+2*st['ex'],2)}, {v(EXB+2*th,2)}, {d}")
            mf(0)
            if o.get("fine") and o["fine"][0] >= 0:
                f0, fs_ = o["fine"]
                if i >= f0 and (i - f0) % fs_ == 0 and (i - f0) // fs_ < 64:
                    P(f"s_memtime {s(sTM,2)}")
                if i >= f0 and (i - f0) % fs_ == fs_ - 1 and (i - f0) // fs_ < 64:
                    P(f"v_writelane_b32 {v(vSTAMP)}, {s(sTM)}, {(i - f0) // fs_}")
            b1 = o["b1"] if 132 <= i < o.get("boost", 440) or 6 in done else 8
            if "f" in st and st["f"] + DSL < 896:
                dsread(st["f"] + DSL)
            else:
                b1 += 4
            fill(i, 2 * i, b1)
            mf(1)
            b2 = o["b2"]
            nxt = steps[i + 1] if i + 1 < N else {}
            want_l = ("F", nxt["f"] + 1) if ("F", nxt.get("f")) in P.lgq and ("F", nxt["f"] + 1) in P.lgq else ("F", nxt.get("f"))
            want_v = [nxt.get("x")]
            assert not any(x["dl"] <= i for x in queues["x"] + queues["h"] + groups + ([cur[0]] if cur[0] else [])), i
            if i in bar_at:
                want_v += [("C", c) for c in range(56) if bar_pub[c] == i]
            if i == ST_AT:
                assert not queues["s"]
                want_v.append("st")
            if i in KW_AT:
                assert i == KW_AT[0] or ("cv", 2) in done
                want_v.append(("wkv", KW_AT.index(i)))
            if i == PA_AT:
                want_v.append(("pl", 1))
            if i == P2_AT:
                want_v.append(("pl", 2))
            P.wait(vm=[x for x in want_v if x], lg=want_l)
            if i in bar_at:
                if "b" not in abl:
                    P("s_barrier")
                continue
            for key, (chk, reg, imm, tgt) in polls.items():
                if i == chk - PG:
                    self.poll_issue(reg, imm)
                if i == chk:
                    assert key in done and key not in pending and "p0" not in pending, (key, i)
                    self.poll_fast(reg, imm, tgt)
            credit = min(credit + o["rate"], 2.0)
            did_vm = False
            cand = [x for x in items if x["vm"] and ready(x, i, 2 * i + 1)]
            if cand:
                emit(cand[0], i, 2 * i + 1)
                did_vm = True
            else:
                cand = [q[0] for q in queues.values() if q and q[0]["av"] <= i]
                g = pick_group(i)
                if g and g["av"] <= i:
                    urgent = min([g["dl"]] + [x["dl"] - 8 for x in groups if x["av"] <= i])
                    if not g["d"][0][0] or urgent - i <= o["D"]:
                        cand.append(dict(dl=urgent, k="g"))
                if cand:
                    best = min(cand, key=lambda x: x["dl"])
                    if credit >= 1.0 or best["dl"] - i <= o["D"]:
                        if best["k"] == "g":
                            self.emit_dma(g["d"].pop(0))
                            if not g["d"]:
                                cur[0] = None
                        else:
                            queues[best["k"]].pop(0)
                            best["fn"]()
                        did_vm = True
            if did_vm:
                credit = max(credit - 1.0, -1.0)
                b2 -= o.get("vmcost", 8)
            for k in list(pending):
                tag, reg, imm = arrivals[k]
                if tag not in P.vmq or i - pending[k] >= o.get("arrw", 34):
                    P.wait(vm=tag)
                    self.arrive(reg, imm)
                    del pending[k]
                    arrived[k] = i
            fill(i, 2 * i + 1, b2)
        assert not pending and not any(queues.values()) and all(g["k"] == "n" for g in groups)
        self.left = (cur[0]["d"] if cur[0] else []) + [x for g in groups for x in g["d"]]
        self.info = dict(done={k: x for k, x in done.items() if not isinstance(k, tuple) or k[1] in (3, 7)}, tile_end=tile_end, rest=len(items), arrived=arrived,
                         mlp2_start=mlp2_start, passes=pass_start, N=N, left=len(self.left), polls={k: x[0] for k, x in polls.items()})
        P(f"s_add_u32 {s(T[7])}, {s(sLB)}, {LSTRIDE}")
        self.pub_offsets(XP, STX, T[7])
        for x in list(items):
            P(x["t"])
        P.wait(lg=[("kw", sx) for sx in range(8)])
        self.stamp(15)
        for i in range(32):
            P(f"v_add_f32 {v(R+i)}, {v(R+i)}, {v(SUMP[i])}")
        self.pack_R()

    def build(self):
        P = self.P
        self.prologue()
        P("L_layer:")
        self.maybe_stop("p0")
        self.p1()
        self.maybe_stop("p1")
        self.p2()
        self.maybe_stop("p2")
        self.p3()
        self.maybe_stop("p3")
        self.mlp()
        P(f"s_cmp_lg_u32 {s(sL)}, 0")
        P("s_cbranch_scc1 L_out")
        self.stats_and_store(sPUB, sSTO)
        self.xstamp("x2 stores issued")
        nl = self.o.get("nleft", 6)
        for x in self.left[:nl]:
            self.emit_dma(x)
        P(f"s_mov_b32 {s(sL)}, 1")
        P(f"s_add_u32 {s(sLB)}, {s(sLB)}, {LSTRIDE}")
        P(f"s_add_u32 {s(sCO)}, {s(sCO)}, 4")
        P(f"s_add_u32 {s(sCT)}, {s(sCT)}, 4")
        self.p1_setup("b")
        self.xstamp("x2 setup done")
        P.wait(vm="pub")
        self.xstamp("x2 drained")
        self.arrive(sCO, 0)
        for x in self.left[nl:]:
            self.emit_dma(x)
        self.stamp(0)
        P("s_barrier")
        P("s_branch L_layer")
        self.pack_side()
        self.slow_polls()
        P("L_fallback:")
        self.fallback()
        P("s_branch L_att_fin")
        P("L_out:")
        self.row_offsets()
        for t in self.rowswap_list(PK, 4):
            P(t)
        for i in range(4):
            P(f"buffer_store_dwordx4 {v(PK+4*i,4)}, {v(vROW)}, {srd(OUT)}, {s((sPUB,sSTO)[i&1])} offen offset:{64*(i>>1)}")
        P("L_fin:")
        if self.stamps:
            P(f"s_mov_b32 {s(sL)}, 2")
            P("s_waitcnt vmcnt(0)")
            self.stamp(0)
            P(f"s_lshl2_add_u32 {s(T[0])}, s2, {s(sW)}")
            P(f"s_lshl_b32 {s(T[0])}, {s(T[0])}, 8")
            P(f"s_add_u32 {s(T[0])}, {s(T[0])}, {STAMP}")
            P(f"buffer_store_dword {v(vSTAMP)}, {v(vL4)}, {srd(WS)}, {s(T[0])} offen")
            if self.o.get("probe") is not None:
                lane, thr, thr2 = self.o["probe"]
                P(f"s_lshl2_add_u32 {s(T[0])}, s2, {s(sW)}")
                P(f"s_cmp_lg_u32 {s(T[0])}, 0")
                P("s_cbranch_scc1 L_end")
                P(f"v_readlane_b32 {s(T[1])}, {v(vSTAMP)}, 0")
                P(f"v_readlane_b32 {s(T[2])}, {v(vSTAMP)}, {lane}")
                P(f"s_sub_u32 {s(T[2])}, {s(T[2])}, {s(T[1])}")
                P(f"s_cmp_lt_u32 {s(T[2])}, {thr}")
                P("s_cbranch_scc1 L_end")
                P(f"s_cmp_gt_u32 {s(T[2])}, {thr2}")
                P("s_cbranch_scc1 L_end")
                P(f"v_mov_b32 {v(A[1])}, 0")
                for n, ln in enumerate([1, 3, 6, 7, 13, 15, 23, 32]):
                    P(f"v_readlane_b32 {s(T[3])}, {v(vSTAMP)}, {ln}")
                    P(f"s_sub_u32 {s(T[3])}, {s(T[3])}, {s(T[1])}")
                    P(f"v_cvt_f32_u32 {v(A[2])}, {s(T[3])}")
                    P(f"buffer_store_short_d16_hi {v(A[2])}, {v(A[1])}, {srd(OUT)}, 0 offen offset:{2*n}")
            if self.o.get("dbgstamp") is not None:
                sel = [1, 3, 4, 6, 7, 10, 13, 15, 20, 22, 23, 26, 29, 31, 32]
                P(f"s_lshl2_add_u32 {s(T[0])}, s2, {s(sW)}")
                P(f"s_cmp_lg_u32 {s(T[0])}, {self.o['dbgstamp']}")
                P("s_cbranch_scc1 L_end")
                P(f"v_readlane_b32 {s(T[1])}, {v(vSTAMP)}, 0")
                P(f"v_mov_b32 {v(A[1])}, 0")
                for n, lane in enumerate(sel):
                    P(f"v_readlane_b32 {s(T[2])}, {v(vSTAMP)}, {lane}")
                    P(f"s_sub_u32 {s(T[2])}, {s(T[2])}, {s(T[1])}")
                    P(f"v_mov_b32 {v(A[2])}, {s(T[2])}")
                    P(f"buffer_store_dword {v(A[2])}, {v(A[1])}, {srd(DBG)}, 0 offen offset:{4+4*n}")
        if self.stop and len(self.stop) > 2:
            P(f"s_lshl2_add_u32 {s(T[0])}, s2, {s(sW)}")
            P(f"s_lshl_b32 {s(T[0])}, {s(T[0])}, 12")
            for i in range(4):
                P(f"buffer_store_dwordx4 {v(self.stop[2]+4*i,4)}, {v(vL16)}, {srd(OUT)}, {s(T[0])} offen offset:{1024*i}")
        P("L_end:")
        P("s_endpgm")
        body, nops = P.finish()
        self.nops = nops
        ref = open(REF).read().split("\n")
        head = [x for x in ref if x.startswith(";") and "@launch" not in x and "Override" not in x and "grid=ceil" not in x]
        txt = "\n".join(head) + "\n; @launch grid=(256,1,1) block=(256,1,1) lds=163840\n"
        txt += f""".amdgcn_target "amdgcn-amd-amdhsa--gfx950"
.text
.globl {NAME}
.p2align 8
.type {NAME},@function
{NAME}:
{body}.section .rodata,"a"
.p2align 6
.amdhsa_kernel {NAME}
  .amdhsa_next_free_vgpr 512
  .amdhsa_next_free_sgpr 102
  .amdhsa_accum_offset 256
  .amdhsa_group_segment_fixed_size 0
  .amdhsa_kernarg_size 104
  .amdhsa_user_sgpr_count 2
  .amdhsa_user_sgpr_kernarg_segment_ptr 1
  .amdhsa_system_sgpr_workgroup_id_x 1
.end_amdhsa_kernel
"""
        return txt


if __name__ == "__main__":
    import json
    g = Gen(**(json.loads(sys.argv[2]) if len(sys.argv) > 2 else {}))
    txt = g.build()
    out = sys.argv[1] if len(sys.argv) > 1 else "k.s"
    open(out, "w").write(txt)
    print("nops", g.nops, "bytes", len(txt), g.info)
```

```python
import math, struct, sys
from dsl import Prog, v, a, s

NAME = "interleave_layers__grouped_kv_mqa__mixer_channel_mlp__prompt_kernel"
REF = "interleave_layers__grouped_kv_mqa__mixer_channel_mlp__prompt.s.ref"

MB = 1 << 20
CTR = 0
CTR_BYTES = 36864
CT_TEAM = 32768
CT_REP = 32768 + 2048
CS = 0x10000
STAMP = 0x40000
WP = 1 * MB
LAYER0 = 16 * MB
LSTRIDE = 48 * MB
XP = 0
OP = 4 * MB
X1P = 8 * MB
PART = 12 * MB
HP = 28 * MB
KV = 44 * MB
STX = 45 * MB
ST1 = 46 * MB
WS_BYTES = 256 * MB
OOB = 0x40000000

RING = 131072
KVR = RING + 16384
CSQ = RING + 25600

WS, X0, WQ, WKV, WO, PKS, B1, B2, OUT, DBG, CODE = 4, 8, 12, 16, 20, 24, 28, 32, 36, 40, 44
sW, sTAU, sJJ, sKH, sJ, sFS, sTT, sL, sLB, sPD, sTO, sCO = range(48, 60)
T = list(range(60, 68))
ARR = 68
sTRIP, sXK, sDS, sDL, sSA, sSB, sKS, sCT, sONE, sPUB, sSTO, sCSO, sW4K, sPD2 = range(84, 98)
sTM = 98
sROT = 3

vLANE, vL16, vL4, vTR, vROW, vDS2K, vSTAMP, vTMP = range(8)
A = list(range(8, 16))
R = 16
PK = 48
EXA, EXQ = 192, 96


def f32(x):
    return "0x%08x" % struct.unpack("<I", struct.pack("<f", x))[0]


def srd(n):
    return s(n, 4)


class Gen:
    def __init__(self, stop=None, stamps=False, force_fallback=False, **kw):
        self.P = Prog()
        self.stop = stop
        self.slow = []
        self.xnames = []
        self.stamps = stamps
        self.force_fallback = force_fallback
        self.o = dict(LA=10, LO=10, rate=0.42, D=22, DSL=5, npre=9, BG=2, b1=4, b2=8, vmcost=4, span=2)
        self.o.update(kw)

    def stamp(self, i):
        if not self.stamps or self.o.get("fine"):
            return
        P = self.P
        P(f"{'s_memtime' if self.stamps == 2 else 's_memrealtime'} {s(sTM,2)}")
        P(f"s_mov_b32 {s(sTM+3)}, m0")
        P(f"s_lshl_b32 {s(sTM+2)}, {s(sL)}, 4")
        P(f"s_add_u32 m0, {s(sTM+2)}, {i}")
        P.wait_all(vm=False)
        P(f"v_writelane_b32 {v(vSTAMP)}, {s(sTM)}, m0")
        P(f"s_mov_b32 m0, {s(sTM+3)}")

    def xstamp(self, name):
        if not self.stamps or not self.o.get("xs"):
            return
        P = self.P
        lane = 33 + len(self.xnames)
        self.xnames.append(name)
        skip = P.newlabel("xs")
        if self.o.get("xl0"):
            P(f"s_cmp_lg_u32 {s(sL)}, 0")
            P(f"s_cbranch_scc1 {skip}")
        P(f"s_memrealtime {s(sTM,2)}")
        P("s_waitcnt lgkmcnt(0)")
        P(f"v_writelane_b32 {v(vSTAMP)}, {s(sTM)}, {lane}")
        P(f"{skip}:")

    def maybe_stop(self, name):
        if self.stop and self.stop[0] == name:
            self.P(f"s_cmp_eq_u32 {s(sL)}, {self.stop[1]}")
            self.P("s_cbranch_scc1 L_fin")

    def arrive(self, off_sgpr, imm, data=sONE):
        self.P(f"s_atomic_add {s(data)}, {s(WS,2)}, {s(off_sgpr)} offset:{imm}")

    def arrive_wait(self, off_sgpr, imm, target, between=None):
        P = self.P
        P(f"s_mov_b32 {s(sPD)}, 1")
        P(f"s_atomic_add {s(sPD)}, {s(WS,2)}, {s(off_sgpr)} offset:{imm} glc")
        if between:
            between()
        P.wait_all(vm=False)
        P(f"s_add_u32 {s(sPD)}, {s(sPD)}, 1")
        if between:
            P(f"s_max_u32 {s(sPD)}, {s(sPD)}, {s(sPD2)}")
        self.poll_check(off_sgpr, imm, target)

    def poll_issue(self, off_sgpr, imm, dst=sPD):
        self.P(f"s_mov_b32 {s(dst)}, 0")
        self.P(f"s_atomic_add {s(dst)}, {s(WS,2)}, {s(off_sgpr)} offset:{imm} glc")

    def poll_check(self, off_sgpr, imm, target, dst=sPD):
        P = self.P
        top, done = P.newlabel("poll"), P.newlabel("polled")
        P(f"s_mov_b32 {s(sTO)}, 0")
        P(f"{top}:")
        P.wait_all(vm=False)
        P(f"s_bitcmp1_b32 {s(dst)}, {target[1]}" if isinstance(target, tuple) else f"s_cmp_ge_u32 {s(dst)}, {target}")
        P(f"s_cbranch_scc1 {done}")
        P(f"s_add_u32 {s(sTO)}, {s(sTO)}, 1")
        P(f"s_cmp_ge_u32 {s(sTO)}, 0x20000")
        P(f"s_cbranch_scc1 {done}")
        self.poll_issue(off_sgpr, imm, dst)
        P(f"s_branch {top}")
        P(f"{done}:")

    def poll_fast(self, off_sgpr, imm, target, dst=sPD):
        P = self.P
        slow, back = P.newlabel("slow"), P.newlabel("back")
        P(f"s_bitcmp0_b32 {s(dst)}, {target[1]}" if isinstance(target, tuple) else f"s_cmp_lt_u32 {s(dst)}, {target}")
        P(f"s_cbranch_scc1 {slow}")
        P(f"{back}:")
        self.slow.append((slow, back, lambda: self.poll_check(off_sgpr, imm, target, dst)))

    def slow_polls(self):
        P = self.P
        for slow, back, fn in self.slow:
            P(f"{slow}:")
            fn()
            P(f"s_branch {back}")

    def two_level_issue(self, word):
        P = self.P
        skip = P.newlabel("tl")
        P(f"s_mov_b32 {s(sPD2)}, 1")
        P(f"s_cmp_lg_u32 {s(sW)}, 0")
        P(f"s_cbranch_scc1 {skip}")
        P(f"s_atomic_add {s(sPD2)}, {s(WS,2)}, {s(sCT)} offset:{CT_TEAM + word} glc")
        P(f"{skip}:")

    def two_level_finish(self, word, got=sPD2):
        P = self.P
        skip = P.newlabel("tl")
        P.wait_all(vm=False)
        P(f"s_cmp_lg_u32 {s(got)}, 15")
        P(f"s_cbranch_scc1 {skip}")
        P(f"s_lshl2_add_u32 {s(T[7])}, {s(sL)}, {CT_REP + word}")
        P(f"v_lshrrev_b32 {v(126)}, 4, {v(vLANE)}")
        P(f"v_lshlrev_b32 {v(125)}, 7, {v(vLANE)}")
        P(f"v_lshl_or_b32 {v(125)}, {v(126)}, 29, {v(125)}")
        P(f"v_mov_b32 {v(126)}, 1")
        P(f"buffer_atomic_add {v(126)}, {v(125)}, {srd(WS)}, {s(T[7])} offen sc1")
        P(f"{skip}:")

    def stats_and_store(self, so_pk, so_st):
        P = self.P
        for i in range(4):
            P.vm(f"buffer_store_dwordx4 {v(PK+4*i,4)}, {v(vL16)}, {srd(WS)}, {s(so_pk)} offen offset:{1024*i} sc1", "pub")
        t0 = 108
        P(f"s_mov_b32 {s(T[6])}, 0x3f803f80")
        P(f"v_and_b32 {v(t0-1)}, 0xf0, {v(vL16)}")
        P(f"v_lshrrev_b32 {v(t0-2)}, 4, {v(vLANE)}")
        P(f"v_lshl_or_b32 {v(t0-1)}, {v(t0-2)}, 2, {v(t0-1)}")
        for k in range(8):
            for th in range(2):
                r = PK + 8 * (k >> 2) + 4 * th + (k & 3)
                P(f"v_dot2_f32_bf16 {v(t0+th)}, {v(r)}, {s(T[6])}, {v(t0+th) if k else 0}")
                P(f"v_dot2_f32_bf16 {v(t0+2+th)}, {v(r)}, {v(r)}, {v(t0+2+th) if k else 0}")
        for th in range(2):
            P(f"v_permlane32_swap_b32 {v(t0+th)}, {v(t0+2+th)}")
        for th in range(2):
            P(f"v_add_f32 {v(t0+th)}, {v(t0+th)}, {v(t0+2+th)}")
        P(f"v_permlane16_swap_b32 {v(t0)}, {v(t0+1)}")
        P(f"v_add_f32 {v(t0)}, {v(t0)}, {v(t0+1)}")
        P.vm(f"buffer_store_dword {v(t0)}, {v(t0-1)}, {srd(WS)}, {s(so_st)} offen sc1", "pub")

    def rowswap_list(self, base, nfrag):
        return [f"v_permlane16_swap_b32 {v(base+4*i+k)}, {v(base+4*i+2+k)}" for i in range(nfrag) for k in range(2)]

    def split_list(self, r0, r1):
        return [f"v_mov_b32 {v(r1)}, {v(r0)}", f"v_permlane16_swap_b32 {v(r0)}, {v(r1)}"]

    def gather4(self, c):
        P = self.P
        P(f"v_permlane16_swap_b32 {v(c[0])}, {v(c[1])}")
        P(f"v_permlane16_swap_b32 {v(c[2])}, {v(c[3])}")
        P(f"v_permlane32_swap_b32 {v(c[0])}, {v(c[2])}")

    def unpack_list(self, dst, src, n):
        out = []
        for i in range(n):
            out.append(f"v_lshlrev_b32 {v(dst+2*i)}, 16, {v(src+i)}")
            out.append(f"v_and_b32 {v(dst+2*i+1)}, 0xffff0000, {v(src+i)}")
        return out

    def pack_R(self):
        for i in range(16):
            self.P(f"v_cvt_pk_bf16_f32 {v(PK+i)}, {v(R+2*i)}, {v(R+2*i+1)}")

    def pub_offsets(self, xbuf, stbuf, lb=sLB):
        P = self.P
        P(f"s_lshl_b32 {s(sPUB)}, {s(sTT)}, 16")
        P(f"s_lshl_b32 {s(T[0])}, {s(sFS)}, 12")
        P(f"s_add_u32 {s(sPUB)}, {s(sPUB)}, {s(T[0])}")
        P(f"s_lshr_b32 {s(sSTO)}, {s(sPUB)}, 4")
        P(f"s_add_u32 {s(sPUB)}, {s(sPUB)}, {s(lb)}")
        P(f"s_add_u32 {s(sSTO)}, {s(sSTO)}, {s(lb)}")
        if xbuf:
            P(f"s_add_u32 {s(sPUB)}, {s(sPUB)}, {xbuf}")
        if stbuf is not None:
            P(f"s_add_u32 {s(sSTO)}, {s(sSTO)}, {stbuf}")

    def stat_load(self, st, so, i, tag):
        self.P.vm(f"buffer_load_dwordx4 {v(st+4*i,4)}, {v(vL16)}, {srd(WS)}, {s(so)} offen offset:{1024*i} sc1", tag)

    def stat_sum_list(self, st):
        o = []
        for step in (8, 4):
            for i in range(step):
                o.append(f"v_add_f32 {v(st+i)}, {v(st+i)}, {v(st+i+step)}")
        o.append(f"v_permlane32_swap_b32 {v(st)}, {v(st+2)}")
        o.append(f"v_permlane32_swap_b32 {v(st+1)}, {v(st+3)}")
        o.append(f"v_add_f32 {v(st)}, {v(st)}, {v(st+2)}")
        o.append(f"v_add_f32 {v(st+1)}, {v(st+1)}, {v(st+3)}")
        o.append(f"v_permlane16_swap_b32 {v(st)}, {v(st+1)}")
        o.append(f"v_add_f32 {v(st)}, {v(st)}, {v(st+1)}")
        o.append(f"v_mul_f32 {v(st)}, {f32(1/1024)}, {v(st)}")
        o.append(f"v_mov_b32 {v(st+1)}, {v(st)}")
        o.append(f"v_permlane32_swap_b32 {v(st)}, {v(st+1)}")
        o.append(f"v_fma_f32 {v(st+1)}, -{v(st)}, {v(st)}, {v(st+1)}")
        o.append(f"v_max_f32 {v(st+1)}, 0, {v(st+1)}")
        return o

    def stat_frag_list(self, ex, mean, sd, tmp):
        o = []
        if sd is not None:
            o.append(f"v_cvt_pk_bf16_f32 {v(tmp)}, 0, {v(sd)}")
            o.append(f"v_sub_f32 {v(tmp+1)}, {v(sd)}, {v(tmp)}")
            o.append(f"v_permlane32_swap_b32 {v(tmp)}, {v(tmp+1)}")
        o.append(f"v_cvt_pk_bf16_f32 {v(ex+1)}, -{v(mean)}, {v(tmp) if sd is not None else 0}")
        o.append(f"v_lshlrev_b32 {v(tmp)}, 16, {v(ex+1)}")
        o.append(f"v_add_f32 {v(tmp)}, {v(tmp)}, {v(mean)}")
        o.append(f"v_cvt_pk_bf16_f32 {v(ex)}, -{v(mean)}, -{v(tmp)}")
        o += self.split_list(ex + 1, ex + 3)
        o += self.split_list(ex, ex + 2)
        return o

    def cs_frag_list(self, ex, cs, b, tmp):
        return [f"v_cvt_pk_bf16_f32 {v(ex)}, {v(cs)}, {v(cs)}",
                f"v_and_b32 {v(tmp)}, 0xffff0000, {v(ex)}",
                f"v_sub_f32 {v(tmp)}, {v(cs)}, {v(tmp)}",
                f"v_cvt_pk_bf16_f32 {v(ex+1)}, {v(tmp)}, {v(b) if b is not None else 0}"]

    def wq_setup(self):
        P = self.P
        P(f"s_lshl_b32 {s(sSA)}, {s(sW)}, 16")
        P(f"s_lshl_b32 {s(T[0])}, {s(sFS)}, 7")
        P(f"s_add_u32 {s(sSA)}, {s(sSA)}, {s(T[0])}")

    def wq_slot(self, e, rot, i0=0, i1=4, tag="wq"):
        P = self.P
        if i0 == 0:
            if rot:
                P(f"s_add_u32 {s(sDL)}, {s(sTAU)}, {e & 3}")
                P(f"s_and_b32 {s(sDL)}, {s(sDL)}, 3")
                if e & 4:
                    P(f"s_or_b32 {s(sDL)}, {s(sDL)}, 4")
                P(f"s_add_u32 {s(sDS)}, {s(sDL)}, {s(sROT)}")
                P(f"s_lshl_b32 {s(sDL)}, {s(sDL)}, 14")
                P(f"s_add_u32 {s(sDL)}, {s(sDL)}, {s(sW4K)}")
            else:
                P(f"s_add_u32 {s(sDS)}, {s(sROT)}, {e}")
                P(f"s_add_u32 {s(sDL)}, {s(sW4K)}, {e * 16384}")
            P(f"s_and_b32 {s(sDS)}, {s(sDS)}, 7")
            P(f"s_lshl_b32 {s(sDS)}, {s(sDS)}, 18")
            P(f"s_add_u32 {s(sDS)}, {s(sDS)}, {s(sSA)}")
        for i in range(i0, i1):
            if i == i0:
                P(f"s_mov_b32 m0, {s(sDL)}")
            if i:
                P(f"s_add_u32 {s(sDS)}, {s(sDS)}, {16384 - 1024}")
            P.vm(f"buffer_load_dwordx4 {v(vDS2K)}, {srd(WQ)}, {s(sDS)} offen offset:{1024*i} lds", tag)

    def wq_l2_setup(self, va, vt, so):
        l = v(vLANE)
        return [f"v_lshlrev_b32 {v(va)}, 10, {l}", f"v_lshrrev_b32 {v(vt)}, 4, {l}", f"v_lshl_or_b32 {v(va)}, {v(vt)}, 28, {v(va)}",
                f"s_lshr_b32 {s(so)}, s2, 3", f"s_lshl2_add_u32 {s(so)}, {s(so)}, {s(sW)}", f"s_lshl_b32 {s(so)}, {s(so)}, 14",
                f"s_andn2_b32 {s(so+1)}, 8, {s(sJ)}", f"s_lshl_b32 {s(so+1)}, {s(so+1)}, 27", f"s_or_b32 {s(so)}, {s(so)}, {s(so+1)}"]

    def wq_l2(self, dst, va, so):
        self.P.vm(f"buffer_load_dword {v(dst)}, {v(va)}, {srd(WQ)}, {s(so)} offen offset:384", "pre")

    def wp_l2_setup(self, va, so):
        return [f"v_lshlrev_b32 {v(va)}, 7, {v(vLANE)}", f"s_and_b32 {s(so)}, {s(sTT)}, 15", f"s_mul_i32 {s(so+1)}, {s(sJ)}, 112",
                f"s_add_u32 {s(so)}, {s(so)}, {s(so+1)}", f"s_lshl_b32 {s(so)}, {s(so)}, 13", f"s_add_u32 {s(so)}, {s(so)}, {WP}"]

    def grp_wq(self, e, rot=False):
        if rot:
            pre = [f"s_add_u32 {s(sDL)}, {s(sTAU)}, {e}", f"s_and_b32 {s(sDL)}, {s(sDL)}, 3", f"s_add_u32 {s(sDS)}, {s(sDL)}, {s(sROT)}",
                   f"s_lshl_b32 {s(sDL)}, {s(sDL)}, 14", f"s_add_u32 m0, {s(sDL)}, {s(sW4K)}", f"s_and_b32 {s(sDS)}, {s(sDS)}, 7",
                   f"s_lshl_b32 {s(sDS)}, {s(sDS)}, 18", f"s_add_u32 {s(sDS)}, {s(sDS)}, {s(sSA)}"]
        pre = pre if rot else [f"s_add_u32 {s(sDS)}, {s(sROT)}, {e}", f"s_and_b32 {s(sDS)}, {s(sDS)}, 7", f"s_lshl_b32 {s(sDS)}, {s(sDS)}, 18",
               f"s_add_u32 {s(sDS)}, {s(sDS)}, {s(sSA)}", f"s_add_u32 m0, {s(sW4K)}, {e * 16384}"]
        nxt = [f"s_add_u32 {s(sDS)}, {s(sDS)}, {16384 - 1024}"]
        return [(list(nxt if i else pre), f"buffer_load_dwordx4 {v(vDS2K)}, {srd(WQ)}, {s(sDS)} offen offset:{1024*i} lds", "wq") for i in range(4)]

    def grp_wkv(self, g):
        pre = [f"s_lshl2_add_u32 {s(sDS)}, {s(sW4K)}, {g * 4096}", f"s_add_u32 m0, {s(sW4K)}, {g * 16384}"]
        return [([] if i else pre, f"buffer_load_dwordx4 {v(vL16)}, {srd(WKV)}, {s(sDS)} offen offset:{1024*i} lds", ("wkv", g >> 1)) for i in range(4)]

    def grp_wp(self, c):
        pre = [f"s_add_u32 m0, {s(sW4K)}, {self.slot_of(c)*16384}", f"s_add_u32 {s(sKS)}, {s(sCSO)}, {c*16384}"]
        return [([] if i else pre, f"buffer_load_dwordx4 {v(vL16)}, {srd(WS)}, {s(sKS)} offen offset:{1024*i} sc1 lds", ("C", c)) for i in range(4)]

    def emit_dma(self, x):
        for t in x[0]:
            self.P(t)
        self.P.vm(x[1], x[2])

    def wkv_slot(self, g, rot, i0=0, i1=4):
        P = self.P
        if i0 == 0:
            if rot:
                P(f"s_add_u32 {s(sDL)}, {s(sTAU)}, {g}")
                P(f"s_and_b32 {s(sDL)}, {s(sDL)}, 3")
                P(f"s_lshl_b32 {s(sDL)}, {s(sDL)}, 12")
                P(f"s_lshl2_add_u32 {s(sDS)}, {s(sW4K)}, {s(sDL)}")
                P(f"s_lshl2_add_u32 {s(sDL)}, {s(sDL)}, {s(sW4K)}")
            else:
                P(f"s_lshl2_add_u32 {s(sDS)}, {s(sW4K)}, {g * 4096}")
                P(f"s_add_u32 {s(sDL)}, {s(sW4K)}, {g * 16384}")
        for i in range(i0, i1):
            if i == i0:
                P(f"s_mov_b32 m0, {s(sDL)}")
            P.vm(f"buffer_load_dwordx4 {v(vL16)}, {srd(WKV)}, {s(sDS)} offen offset:{1024*i} lds", "wkv")

    def prologue(self):
        P = self.P
        P("s_cmp_ge_u32 s2, 256")
        P("s_cbranch_scc1 L_end")
        if self.stamps and self.o.get("xs"):
            P(f"s_memrealtime {s(sDS,2)}")
        P(f"s_load_dwordx2 {s(X0,2)}, s[0:1], 0")
        P(f"s_load_dwordx2 {s(WS,2)}, s[0:1], 96")
        P(f"s_load_dwordx2 {s(DBG,2)}, s[0:1], 88")
        P(f"s_load_dwordx16 {s(ARR,16)}, s[0:1], 0")
        P(f"s_load_dwordx8 {s(T[0],8)}, s[0:1], 64")
        P(f"s_getpc_b64 {s(CODE,2)}")
        P("L_pc:")
        P(f"s_mov_b32 {s(CODE+2)}, L_end-L_pc")
        P(f"s_mov_b32 {s(CODE+3)}, 0x00020000")
        P(f"s_lshr_b32 {s(sTO)}, s2, 3")
        P(f"s_mul_i32 {s(sTO)}, {s(sTO)}, 3072")
        P(f"v_mul_u32_u24 {v(vL4)}, 12, v0")
        P.vm(f"buffer_load_dwordx3 {v(72,3)}, {v(vL4)}, {srd(CODE)}, {s(sTO)} offen", "code")
        P(f"v_lshrrev_b32 {v(vTMP)}, 6, v0")
        P(f"v_and_b32 {v(vLANE)}, 63, v0")
        P(f"v_readfirstlane_b32 {s(sW)}, {v(vTMP)}")
        for reg, n in ((WS, WS_BYTES), (X0, 4 * MB)):
            P(f"s_mov_b32 {s(reg+2)}, {n}")
            P(f"s_mov_b32 {s(reg+3)}, 0x00020000")
        sp = self.o["span"]
        if sp == 2:
            P(f"s_and_b32 {s(sKH)}, s2, 1")
            P(f"s_bfe_u32 {s(sJJ)}, s2, 0x30003")
            P(f"s_bfe_u32 {s(sTAU)}, s2, 0x20001")
            P(f"s_lshl_b32 {s(sTAU)}, {s(sTAU)}, 2")
            P(f"s_lshr_b32 {s(sJ)}, s2, 6")
            P(f"s_add_u32 {s(sTAU)}, {s(sTAU)}, {s(sJ)}")
        elif sp == 4:
            P(f"s_bfe_u32 {s(sKH)}, s2, 0x10001")
            P(f"s_bfe_u32 {s(sJJ)}, s2, 0x20003")
            P(f"s_and_b32 {s(sJ)}, s2, 1")
            P(f"s_lshl2_add_u32 {s(sJJ)}, {s(sJ)}, {s(sJJ)}")
            P(f"s_bfe_u32 {s(sTAU)}, s2, 0x10002")
            P(f"s_lshr_b32 {s(sJ)}, s2, 5")
            P(f"s_lshl3_add_u32 {s(sTAU)}, {s(sTAU)}, {s(sJ)}")
        else:
            P(f"s_bfe_u32 {s(sKH)}, s2, 0x10006")
            P(f"s_bfe_u32 {s(sJJ)}, s2, 0x30003")
            P(f"s_and_b32 {s(sTAU)}, s2, 7")
            P(f"s_lshl_b32 {s(sTAU)}, {s(sTAU)}, 1")
            P(f"s_lshr_b32 {s(sJ)}, s2, 7")
            P(f"s_add_u32 {s(sTAU)}, {s(sTAU)}, {s(sJ)}")
        P(f"s_lshl3_add_u32 {s(sJ)}, {s(sKH)}, {s(sJJ)}")
        P(f"s_and_b32 {s(sFS)}, {s(sJ)}, 3")
        P(f"s_lshr_b32 {s(sJJ)}, {s(sJJ)}, 2")
        P(f"s_lshl1_add_u32 {s(sJJ)}, {s(sFS)}, {s(sJJ)}")
        P(f"s_and_b32 {s(sROT)}, {s(sJJ)}, {self.o.get('rot', 1)}")
        if self.o.get("kvmap", 1):
            P(f"s_lshr_b32 {s(sJJ)}, {s(sJ)}, 1")
            P(f"s_and_b32 {s(sKH)}, {s(sJ)}, 1")
        P(f"s_lshr_b32 {s(sTT)}, {s(sJ)}, 2")
        P(f"s_lshl2_add_u32 {s(sFS)}, {s(sFS)}, {s(sTT)}")
        P(f"s_lshl2_add_u32 {s(sTT)}, {s(sTAU)}, {s(sW)}")
        P(f"s_mov_b32 {s(sL)}, 0")
        P(f"s_mov_b32 {s(sLB)}, {LAYER0}")
        P(f"s_mov_b32 {s(sONE)}, 1")
        P(f"s_lshl_b32 {s(sCO)}, {s(sTT)}, 9")
        P(f"s_lshl_b32 {s(sCT)}, {s(sTAU)}, 7")
        P(f"s_lshl_b32 {s(sW4K)}, {s(sW)}, 12")
        P(f"v_lshlrev_b32 {v(vL16)}, 4, {v(vLANE)}")
        P(f"v_lshlrev_b32 {v(vL4)}, 2, {v(vLANE)}")
        P(f"v_mov_b32 {v(vSTAMP)}, 0")
        l = v(vLANE)
        P(f"v_and_b32 {v(vROW)}, 15, {l}")
        P(f"v_lshlrev_b32 {v(vROW)}, 11, {v(vROW)}")
        P(f"v_bfe_u32 {v(vTMP)}, {l}, 4, 1")
        P(f"v_lshl_or_b32 {v(vROW)}, {v(vTMP)}, 5, {v(vROW)}")
        P(f"v_lshrrev_b32 {v(vTMP)}, 5, {l}")
        P(f"v_lshl_or_b32 {v(vROW)}, {v(vTMP)}, 4, {v(vROW)}")
        self.row_offsets()
        P(f"s_lshl2_add_u32 {s(sPD)}, s2, {s(sW)}")
        P.wait_all(vm=False)
        self.stamp(0)
        if self.stamps and self.o.get("xs"):
            P(f"v_writelane_b32 {v(vSTAMP)}, {s(sDS)}, 33")
            self.xnames.append("entry")
        P(f"s_cmp_lg_u32 {s(sJ)}, 0")
        P("s_cbranch_scc1 L_nozero2")
        for i in range(4):
            P(f"v_mov_b32 {v(64+i)}, 0")
        P(f"v_cmp_gt_u32 vcc, 24, {l}")
        P(f"v_mov_b32 {v(A[3])}, {OOB}")
        P(f"v_lshlrev_b32 {v(A[1])}, 9, {l}")
        P(f"v_cndmask_b32 {v(A[3])}, {v(A[3])}, {v(vL16)}, vcc")
        P(f"buffer_store_dwordx4 {v(64,4)}, {v(A[3])}, {srd(WS)}, {s(sCO)} offen offset:128 sc1")
        P(f"s_cmp_lg_u32 {s(sPD)}, 0")
        P("s_cbranch_scc1 L_nozero2")
        P(f"v_lshlrev_b32 {v(A[2])}, 7, {l}")
        P(f"v_lshl_or_b32 {v(A[2])}, {v(vTMP)}, 30, {v(A[2])}")
        P(f"s_load_dword {s(sTO)}, {s(DBG,2)}, 128")
        P(f"s_mov_b32 {s(sKS)}, {CT_TEAM}")
        P(f"buffer_store_dwordx4 {v(64,4)}, {v(A[1])}, {srd(WS)}, 0 offen sc1")
        P(f"buffer_store_dwordx4 {v(64,4)}, {v(A[1])}, {srd(WS)}, 0 offen offset:16 sc1")
        P(f"buffer_store_dwordx4 {v(64,4)}, {v(A[2])}, {srd(WS)}, {s(sKS)} offen sc1")
        P("L_nozero2:")
        for i in range(4):
            P.vm(f"buffer_load_dwordx4 {v(PK+4*i,4)}, {v(vROW)}, {srd(X0)}, {s((sPUB,sSTO)[i&1])} offen offset:{64*(i>>1)}", "x0")
        P(f"s_cmp_eq_u32 {s(sKH)}, 0")
        P(f"s_cselect_b64 {s(WKV,2)}, {s(ARR+4,2)}, {s(ARR+6,2)}")
        P("s_cmp_lt_u32 s2, 112")
        P(f"s_cselect_b64 {s(PKS,2)}, {s(ARR+12,2)}, {s(T[0],2)}")
        for reg, src in ((WQ, ARR + 2), (WO, ARR + 8), (B1, ARR + 14), (B2, T[2]), (OUT, T[4])):
            P(f"s_mov_b64 {s(reg,2)}, {s(src,2)}")
        for reg, n in ((WQ, 2 * MB), (WKV, 65536), (WO, 2 * MB), (PKS, 7 * MB), (B1, 7168), (B2, 2048), (OUT, 4 * MB), (DBG, 256)):
            P(f"s_mov_b32 {s(reg+2)}, {n}")
            P(f"s_mov_b32 {s(reg+3)}, 0x00020000")
        P("s_barrier")
        P(f"s_cmp_lg_u32 {s(sPD)}, 0")
        P("s_cbranch_scc1 L_noflag")
        P("s_waitcnt vmcnt(4) lgkmcnt(0)")
        P(f"s_atomic_add {s(sONE)}, {s(DBG,2)}, 0")
        P("L_noflag:")
        if self.o.get("l2pre", 1) == 1:
            for t in self.wq_l2_setup(A[2], A[3], T[0]):
                P(t)
            self.wq_l2(76, A[2], T[0])
        self.wq_setup()
        seq = [lambda g=g: self.wkv_slot(g, True) for g in range(4)] + [lambda e=e: self.wq_slot(e, True) for e in range(4, 8)]
        n0, n1 = self.o.get("pro", [2, 5])
        seq[0]()
        P(f"v_lshrrev_b32 {v(A[1])}, 2, {l}")
        P(f"v_lshlrev_b32 {v(vTR)}, 7, {v(A[1])}")
        P(f"v_bfe_u32 {v(A[1])}, {l}, 3, 2")
        P(f"v_lshl_or_b32 {v(vTR)}, {v(A[1])}, 5, {v(vTR)}")
        P(f"v_and_b32 {v(A[1])}, 3, {l}")
        P(f"v_lshl_or_b32 {v(vTR)}, {v(A[1])}, 3, {v(vTR)}")
        P(f"s_lshl_b32 {s(T[0])}, {s(sW)}, 15")
        P(f"v_add_u32 {v(vTR)}, {s(T[0])}, {v(vTR)}")
        P(f"v_lshrrev_b32 {v(A[1])}, 1, {l}")
        P(f"v_lshrrev_b32 {v(A[2])}, 4, {l}")
        P(f"v_xor_b32 {v(A[1])}, {v(A[1])}, {v(A[2])}")
        P(f"v_and_b32 {v(A[1])}, 3, {v(A[1])}")
        P(f"v_and_b32 {v(A[2])}, 1, {l}")
        P(f"v_lshlrev_b32 {v(A[2])}, 4, {v(A[2])}")
        P(f"v_lshl_or_b32 {v(A[2])}, {v(A[1])}, 5, {v(A[2])}")
        P(f"v_lshrrev_b32 {v(A[1])}, 3, {l}")
        P(f"v_lshl_or_b32 {v(vDS2K)}, {v(A[1])}, 11, {v(A[2])}")
        self.pack_setup()
        P.vmq.append("b1")
        for f in seq[1:n0]:
            f()
        self.pub_offsets(XP, STX)
        P(f"v_mov_b32 {v(A[1])}, 0")
        self.xstamp("pre x0 wait")
        P.wait(vm="x0")
        self.xstamp("x0 landed")
        for t in self.rowswap_list(PK, 4):
            P(t)
        self.stats_and_store(sPUB, sSTO)
        P.vm(f"buffer_load_dword {v(68)}, {v(A[1])}, {srd(DBG)}, 0 offen sc1", "pub")
        self.xstamp("pub issued")
        if self.o.get("l2pre", 1) == 2:
            for t in self.wq_l2_setup(A[2], A[3], T[0]):
                P(t)
            self.wq_l2(76, A[2], T[0])
        for f in seq[n0:n1]:
            f()
        self.xstamp("w issued")
        P.wait(vm="pub")
        self.xstamp("pub drained")
        P(f"s_mov_b32 {s(sTO)}, 0")
        P("L_dbg:")
        P(f"v_readfirstlane_b32 {s(T[0])}, {v(68)}")
        P(f"s_cmp_lg_u32 {s(T[0])}, 0")
        P("s_cbranch_scc1 L_dbgok")
        P(f"s_add_u32 {s(sTO)}, {s(sTO)}, 1")
        P(f"s_cmp_ge_u32 {s(sTO)}, 0x20000")
        P("s_cbranch_scc1 L_dbgok")
        P(f"buffer_load_dword {v(68)}, {v(A[1])}, {srd(DBG)}, 0 offen sc1")
        P("s_waitcnt vmcnt(0)")
        P("s_branch L_dbg")
        P("L_dbgok:")
        self.arrive(sCO, 0)
        self.xstamp("arrived")
        for f in seq[n1:]:
            f()
        self.xstamp("wq hi issued")
        P.wait(vm="wkv")
        self.kv_weights()
        self.xstamp("kw read")
        for e in range(4):
            self.wq_slot(e, True)
        self.xstamp("wq lo issued")
        self.poll_issue(sCO, 0)
        self.p1_setup("a")

    def row_offsets(self):
        P = self.P
        P(f"s_lshl_b32 {s(sPUB)}, {s(sTT)}, 16")
        P(f"s_lshl_b32 {s(sSTO)}, {s(sFS)}, 7")
        P(f"s_add_u32 {s(sPUB)}, {s(sPUB)}, {s(sSTO)}")
        P(f"s_add_u32 {s(sSTO)}, {s(sPUB)}, 32768")

    KX = 128

    @staticmethod
    def kw(sx, off, n):
        return a(224 + 8 * sx + off, n) if sx < 4 else v(32 + 8 * sx + off, n)

    def kw_addr(self):
        l = v(vLANE)
        return [f"v_lshrrev_b32 {v(A[5])}, 2, {l}", f"v_lshlrev_b32 {v(A[5])}, 6, {v(A[5])}", f"v_and_b32 {v(vTMP)}, 3, {l}",
                f"v_lshl_or_b32 {v(A[5])}, {v(vTMP)}, 3, {v(A[5])}", f"v_add_u32 {v(A[5])}, {s(sW4K)}, {v(A[5])}"]

    def kw_read(self, sx, m, e):
        self.P.lg(f"ds_read_b64_tr_b16 {self.kw(sx,4*m+2*e,2)}, {v(A[5])} offset:{(sx>>1)*16384+(sx&1)*2048+e*1024+m*32}", ("kw", sx))

    def kv_weights(self):
        P = self.P
        for t in self.kw_addr():
            P(t)
        for sx in range(8):
            for m in range(2):
                for e in range(2):
                    self.kw_read(sx, m, e)
            if sx >= 2:
                P.wait(lg=("kw", sx - 2))
        P.wait_all(vm=False)

    XA2 = 124

    def x_addr(self, xbuf, tab, by_wave):
        P = self.P
        P(f"s_lshl_b32 {s(sXK)}, {s(sTT)}, 16")
        P(f"s_add_u32 {s(sXK)}, {s(sXK)}, {s(sLB)}")
        if xbuf:
            P(f"s_add_u32 {s(sXK)}, {s(sXK)}, {xbuf}")
        P(f"v_add_u32 {v(A[0])}, {s(sXK)}, {v(vL16)}")
        P(f"v_add_u32 {v(self.XA2)}, 4096, {v(A[0])}")
        for n in range(4):
            if by_wave:
                P(f"s_xor_b32 {s(sXK)}, {s(sW)}, {(0, 1, 3, 2)[n]}")
                P(f"s_lshl1_add_u32 {s(sXK)}, {s(sXK)}, {s(sROT)}")
            else:
                P(f"s_add_u32 {s(sXK)}, {s(sROT)}, {2*n}")
            P(f"s_lshl_b32 {s(sXK)}, {s(sXK)}, 13")
            P(f"s_and_b32 {s(tab+2*n)}, {s(sXK)}, 0xffff")
            P(f"s_add_u32 {s(sXK)}, {s(sXK)}, 8192")
            P(f"s_and_b32 {s(tab+2*n+1)}, {s(sXK)}, 0xffff")
        self.xtab = tab

    def gemm_a_addr(self, xbuf):
        self.x_addr(xbuf, ARR, True)
        for t in range(4):
            self.P(f"v_xor_b32 {v(A[1+t])}, {32*t}, {v(vTR)}")

    def xload(self, x, mask=63):
        self.P.vm(f"buffer_load_dwordx4 {a(4*(x&mask),4)}, {v((A[0], self.XA2)[(x>>2)&1])}, {srd(WS)}, {s(self.xtab+(x>>3))} offen offset:{1024*(x&3)} sc1", ("X", x))

    WB = 64

    def ga_read(self, f, e):
        p, t = f >> 2, f & 3
        self.P.lg(f"ds_read_b64_tr_b16 {v(self.WB+4*(f&7)+2*e,2)}, {v(A[1+t])} offset:{(p&7)*4096+e*2048}", ("W", f))

    def gemm_a(self, acc, zero_init, nx, fill, f0=0, f1=128, cs=None, LA=None):
        P = self.P
        LA, DL = LA or self.o["LA"], 5
        if f0 == 0:
            for f in range(DL):
                self.ga_read(f, 0)
                self.ga_read(f, 1)

        def one(f, mem_ok):
            if fill and fill[0][0] <= f and (mem_ok or not fill[0][1]):
                x = fill.pop(0)[2]
                x() if callable(x) else P(x)
        for f in range(f0, f1):
            p, t = f >> 2, f & 3
            if self.o.get("fine") == [-1, 4]:
                if f & 3 == 0:
                    P(f"s_memtime {s(sTM,2)}")
                if f & 3 == 3:
                    P(f"v_writelane_b32 {v(vSTAMP)}, {s(sTM)}, {(f >> 2) + (0 if zero_init else 32)}")
            if f == 0:
                P.wait(vm=("X", 1), lg=("W", 1))
            w = v(self.WB + 4 * (f & 7), 4)
            for k in range(2):
                th = k ^ (t & 1)
                d = v(acc + 16 * (t >> 1) + 8 * th + 4 * (t & 1), 4)
                P(f"v_mfma_f32_16x16x32_bf16 {d}, {w}, {a(4*((2*p+th)&31),4)}, {0 if zero_init and p == 0 else d}")
                if k == 1 and f & 1:
                    P.wait(vm=("X", 2 * p + 3) if t == 3 else None, lg=("W", min(f + 2, 127)))
                g = f + DL
                if g < 128:
                    self.ga_read(g, k)
                if k == 0:
                    if 32 <= g + 1 < 128 and (g + 1) & 31 < 4:
                        P(f"v_xor_b32 {v(A[1+((g+1)&3)])}, {0x10000 if (g+1)>>5 == 2 else 0x8000}, {v(A[1+((g+1)&3)])}")
                    else:
                        one(f, False)
            if cs is not None:
                d = v(cs[0] + 4 * t, 4)
                P(f"v_mfma_f32_16x16x32_bf16 {d}, {v(cs[1],4)}, {w}, {0 if p == 0 else d}")
            if f & 1 == 0 and nx < min(64, (f >> 1) + LA + 1):
                self.xload(nx, 31)
                nx += 1
            else:
                one(f, True)
        return nx

    def p1_setup(self, sfx):
        P = self.P
        KA, KC, ONES = 160, 168, 184
        l = v(vLANE)
        P(f"s_lshr_b32 {s(T[4])}, {s(sJJ)}, 1")
        P(f"s_lshl2_add_u32 {s(T[4])}, {s(sTAU)}, {s(T[4])}")
        P(f"s_and_b32 {s(T[5])}, {s(sJJ)}, 1")
        for i in range(4):
            P(f"v_mov_b32 {v(ONES+i)}, 0x3f803f80")
        un = self.unpack_list(R, PK, 16)
        for sx in range(8):
            for m in range(2):
                d = v(KC + 4 * m, 4)
                P(f"v_mfma_f32_16x16x32_bf16 {d}, {self.kw(sx,4*m,4)}, {v(ONES,4)}, {d if sx else 0}")
                P(un.pop(0))
                P(un.pop(0))
        self.gemm_a_addr(XP)
        P(f"s_lshl_b32 {s(T[0])}, {s(T[4])}, 16")
        P(f"s_lshl_b32 {s(T[1])}, {s(T[5])}, 10")
        P(f"s_add_u32 {s(T[0])}, {s(T[0])}, {s(T[1])}")
        P(f"s_lshl2_add_u32 {s(T[0])}, {s(sW4K)}, {s(T[0])}")
        P(f"s_add_u32 {s(T[0])}, {s(T[0])}, {s(sLB)}")
        P(f"s_lshl_b32 {s(T[1])}, {s(T[4])}, 12")
        P(f"s_add_u32 {s(T[1])}, {s(T[1])}, {s(sLB)}")
        P(f"s_add_u32 {s(T[2])}, {s(T[1])}, {STX}")
        P(f"s_cmp_lg_u32 {s(T[5])}, 0")
        P("s_cselect_b64 vcc, -1, 0")
        P(f"v_and_b32 {v(KA)}, 15, {l}")
        P(f"v_bfe_u32 {v(KA+1)}, {l}, 4, 1")
        P(f"v_lshrrev_b32 {v(KA+2)}, 5, {l}")
        P(f"s_mul_i32 {s(T[6])}, {s(sW)}, 2112")
        P(f"s_add_u32 {s(T[6])}, {s(T[6])}, {KVR}")
        P(f"v_mul_u32_u24 {v(KA+3)}, 1056, {v(KA+2)}")
        P(f"s_add_u32 {s(T[1])}, {s(T[1])}, {KV}")
        P(f"s_cmp_lg_u32 {s(sKH)}, 0")
        P("s_cbranch_scc1 L_vaddr" + sfx)
        P(f"v_and_b32 {v(A[5])}, 0x1f0, {v(vL16)}")
        P(f"v_add_u32 {v(A[5])}, {v(A[5])}, {v(KA+3)}")
        P(f"v_mov_b32 {v(A[6])}, {v(A[5])}")
        P(f"v_lshlrev_b32 {v(A[7])}, 4, {v(KA)}")
        P(f"v_lshl_or_b32 {v(A[7])}, {v(KA+1)}, 10, {v(A[7])}")
        P(f"v_lshl_or_b32 {v(A[7])}, {v(KA+2)}, 9, {v(A[7])}")
        P(f"s_lshl_b32 {s(T[5])}, {s(T[5])}, 8")
        P("s_branch L_kvaddr" + sfx)
        P("L_vaddr" + sfx + ":")
        P(f"v_bfe_u32 {v(A[5])}, {l}, 2, 2")
        P(f"v_mul_u32_u24 {v(A[5])}, 528, {v(A[5])}")
        P(f"v_and_b32 {v(A[6])}, 0xcc, {v(vL4)}")
        P(f"v_add_u32 {v(A[5])}, {v(A[5])}, {v(A[6])}")
        P(f"v_and_b32 {v(A[6])}, 7, {l}")
        P(f"v_lshl_or_b32 {v(A[6])}, {v(KA+1)}, 3, {v(A[6])}")
        P(f"v_bfe_u32 {v(A[7])}, {l}, 3, 1")
        P(f"v_lshl_or_b32 {v(A[6])}, {v(A[7])}, 4, {v(A[6])}")
        P(f"v_lshl_add_u32 {v(A[6])}, {v(A[6])}, 4, {v(KA+3)}")
        P(f"v_mov_b32 {v(A[7])}, {v(vL16)}")
        P(f"s_lshl_b32 {s(T[5])}, {s(T[5])}, 10")
        P(f"s_add_u32 {s(T[5])}, {s(T[5])}, 2048")
        P("L_kvaddr" + sfx + ":")
        P(f"s_add_u32 {s(T[1])}, {s(T[1])}, {s(T[5])}")
        P(f"s_cmp_eq_u32 {s(sW)}, 0")
        P(f"s_cselect_b32 {s(T[1])}, {s(T[1])}, {OOB}")
        P(f"s_add_u32 {s(ARR+8)}, {s(sCT)}, {CT_TEAM}")
        P(f"s_add_u32 {s(ARR+9)}, {s(sCT)}, {CT_REP}")
        P(f"s_add_u32 {s(ARR+10)}, {s(sCO)}, 384")
        P(f"s_cmp_eq_u32 {s(sW)}, 0")
        P(f"s_cselect_b32 {s(ARR+8)}, {s(ARR+8)}, {s(ARR+10)}")
        P(f"s_cselect_b32 {s(ARR+9)}, {s(ARR+9)}, {s(ARR+10)}")
        P(f"s_cselect_b32 {s(ARR+10)}, 16, 0")
        P(f"s_cselect_b32 {s(ARR+11)}, 1, 0")
        P(f"s_lshl_b32 {s(ARR+12)}, {s(sTT)}, 12")
        P(f"s_add_u32 {s(ARR+12)}, {s(ARR+12)}, {s(sLB)}")
        P(f"s_add_u32 {s(ARR+12)}, {s(ARR+12)}, {STX}")
        P(f"s_lshl_b32 {s(ARR+13)}, {s(sTAU)}, 14")
        P(f"s_lshr_b32 {s(sSB)}, {s(sW4K)}, 1")
        P(f"s_add_u32 {s(sKS)}, {s(ARR+13)}, {s(sSB)}")
        P(f"s_add_u32 {s(sKS)}, {s(sKS)}, 2048")
        P(f"s_add_u32 {s(sSB)}, {s(sSB)}, {RING}")
        P(f"s_add_u32 {s(ARR+14)}, {s(sLB)}, {KV}")
        P(f"v_add_u32 {v(A[5])}, {s(T[6])}, {v(A[5])}")
        P(f"v_add_u32 {v(A[6])}, {KVR}, {v(A[6])}")

    def p1(self):
        P = self.P
        KX = self.KX
        KA, KC, KS, KR, ONES, QA, CSA, ST, EXB = 160, 168, 104, 128, 184, 224, 168, 104, 120
        l = v(vLANE)
        P.vmq = []
        self.stamp(1)
        self.poll_check(sCO, 0, 16)
        P("s_barrier")
        self.stamp(2)
        for i in range(4):
            self.stat_load(KS, T[2], i, "ks")
        for sx in range(8):
            P.vm(f"buffer_load_dwordx4 {a(KX+4*sx,4)}, {v(vL16)}, {srd(WS)}, {s(T[0])} offen offset:{2048*(sx&1)} sc1", ("kx", sx))
            if sx & 1:
                P(f"s_add_u32 {s(T[0])}, {s(T[0])}, 4096")
        nxs = self.o.get("nxs", [0, 6, 4, 4])
        nx = nxs[0]
        for x in range(nx):
            self.xload(x, 31)
        self.xstamp("kv loads issued")
        P.wait(vm="ks")
        self.xstamp("ks landed")
        ch = self.stat_sum_list(KS)
        ch += [f"v_mov_b32 {v(KS+2)}, {v(KS)}", f"v_add_f32 {v(KS+1)}, {f32(1e-5)}, {v(KS+1)}", f"v_rsq_f32 {v(KS+1)}, {v(KS+1)}",
               f"v_permlane16_swap_b32 {v(KS)}, {v(KS+2)}", f"v_mov_b32 {v(KS+3)}, {v(KS+1)}",
               f"v_cndmask_b32 {v(KS)}, {v(KS)}, {v(KS+2)}, vcc", f"v_permlane16_swap_b32 {v(KS+1)}, {v(KS+3)}",
               f"v_cndmask_b32 {v(KS+1)}, {v(KS+1)}, {v(KS+3)}, vcc", f"v_mul_f32 {v(KS)}, {v(KS)}, {v(KS+1)}"]
        ch += [f"v_mul_f32 {v(KC+i)}, -{v(KS)}, {v(KC+i)}" for i in range(8)]
        while len(ch) > 32:
            P(ch.pop(0))
        for sx in range(8):
            P.wait(vm=("kx", sx))
            for m in range(2):
                P(f"v_mfma_f32_16x16x32_bf16 {v(KA+4*m,4)}, {self.kw(sx,4*m,4)}, {a(KX+4*sx,4)}, {v(KA+4*m,4) if sx else 0}")
                P(ch.pop(0))
                P(ch.pop(0))
        self.xstamp("kv mfma done")
        for x in range(nx, nx + nxs[1]):
            self.xload(x, 31)
        nx += nxs[1]
        for i in range(8):
            P(f"v_fma_f32 {v(KA+i)}, {v(KS+1)}, {v(KA+i)}, {v(KC+i)}")
        P(f"s_cmp_lg_u32 {s(sKH)}, 0")
        P("s_cbranch_scc1 L_vwr")
        for m in range(2):
            P(f"ds_write_b128 {v(A[5])}, {v(KA+4*m,4)} offset:{528*m}")
        P("s_branch L_kvwr")
        P("L_vwr:")
        for m in range(2):
            for r in range(4):
                P(f"ds_write_b32 {v(A[5])}, {v(KA+4*m+r)} offset:{256*m+16*r}")
        P("L_kvwr:")
        P.wait_all(vm=False)
        self.xstamp("kv written")
        P("s_barrier")
        self.xstamp("kv barrier")
        for w in range(4):
            for e in range(2):
                P.lg(f"ds_read_b128 {v(KR+8*w+4*e,4)}, {v(A[6])} offset:{2112*w+528*e}", ("kr", w))
        for x in range(nx, nx + nxs[2]):
            self.xload(x, 31)
        nx += nxs[2]
        P.wait(lg=("kr", 1))
        for i in range(8):
            P(f"v_add_f32 {v(KR+i)}, {v(KR+i)}, {v(KR+8+i)}")
        P.wait(lg=("kr", 3))
        for i in range(8):
            P(f"v_add_f32 {v(KR+16+i)}, {v(KR+16+i)}, {v(KR+24+i)}")
        for i in range(8):
            P(f"v_add_f32 {v(KR+i)}, {v(KR+i)}, {v(KR+16+i)}")
        for i in range(4):
            P(f"v_cvt_pk_bf16_f32 {v(KA+i)}, {v(KR+2*i)}, {v(KR+2*i+1)}")
        P.vm(f"buffer_store_dwordx4 {v(KA,4)}, {v(A[7])}, {srd(WS)}, {s(T[1])} offen sc1", "kvst")
        self.stamp(3)
        for x in range(nx, nx + nxs[3]):
            self.xload(x, 31)
        nx += nxs[3]

        def h_arr():
            P.wait(vm="kvst")
            P(f"s_atomic_add {s(ARR+11)}, {s(WS,2)}, {s(ARR+8)} glc")

        def h_fin():
            slow, back = P.newlabel("slow"), P.newlabel("back")
            P(f"s_bitcmp1_b32 0x8002, {s(ARR+11)}")
            P(f"s_cbranch_scc1 {slow}")
            P(f"{back}:")
            self.slow.append((slow, back, lambda: self.two_level_finish(0, ARR + 11)))

        def h_kv():
            self.poll_fast(ARR + 9, 0, s(ARR + 10))
            P("s_barrier")
            self.stamp(5)

        def k0(m):
            return lambda: P.vm(f"buffer_load_dwordx4 {v(self.KF+4*m,4)}, {v(A[5])}, {srd(WS)}, {s(ARR+13)} offen offset:{1024*m} sc1", "k0")

        def kvd(i):
            return lambda: P.vm(f"buffer_load_dwordx4 {v(A[5])}, {srd(WS)}, {s(sKS)} offen offset:{1024*i} sc1 lds", "kv")

        c = math.log2(math.e) / math.sqrt(32)
        SUMA = self.SUMA
        alu = [f"v_mov_b32 {v(self.O_+i)}, 0" for i in range(32)] + [f"v_mov_b32 {v(self.LA_+i)}, 0" for i in range(8)]
        alu += [f"v_and_b32 {v(vTMP)}, 7, {l}", f"v_cmp_eq_u32 vcc, 0, {v(vTMP)}", f"v_mov_b32 {v(A[7])}, 0xdddd",
                f"v_cndmask_b32 {v(SUMA)}, 0, {v(ONES)}, vcc", f"v_cndmask_b32 {v(SUMA+1)}, 0, {v(ONES)}, vcc",
                f"v_cmp_eq_u32 vcc, 4, {v(vTMP)}", f"v_add_u32 {v(A[6])}, {RING}, {v(vL16)}",
                f"v_cndmask_b32 {v(SUMA+2)}, 0, {v(ONES)}, vcc", f"v_cndmask_b32 {v(SUMA+3)}, 0, {v(ONES)}, vcc",
                f"v_add_u32 {v(A[5])}, {s(ARR+14)}, {v(vL16)}"]
        harr, hfin, hpoll, hkv = self.o.get("hq", [8, 30, 80, 102])
        fill = [(0, True, (lambda i=i: self.stat_load(ST, ARR + 12, i, "st"))) for i in range(4)]
        fill += [(0, False, t) for t in alu[:6]] + [(harr, False, h_arr)] + [(0, False, t) for t in alu[6:30]]
        fill += [(hfin, False, h_fin)] + [(0, False, t) for t in alu[30:]]
        st = self.stat_sum_list(ST)
        st += [f"v_add_f32 {v(ST+1)}, {f32(1e-5)}, {v(ST+1)}", f"v_rsq_f32 {v(ST+1)}, {v(ST+1)}"]
        st += self.stat_frag_list(EXB, ST, None, ST + 2)
        st += [f"v_mul_f32 {v(ST+1)}, {f32(c)}, {v(ST+1)}"] + self.split_list(ST + 1, ST + 2)
        fill += [(0, False, lambda: P.wait(vm="st"))] + [(0, False, t) for t in st]
        fill += [(hpoll - 1, False, f"s_mov_b32 {s(sPD)}, 0"), (hpoll, False, f"s_atomic_add {s(sPD)}, {s(WS,2)}, {s(ARR+9)} glc")]
        fill += [(0, False, f"s_mov_b32 m0, {s(sSB)}"), (hkv, True, h_kv), (0, True, k0(0)), (0, True, k0(1)), (0, True, kvd(0)), (0, True, kvd(1))]
        fill += [(0, False, f"s_add_u32 {s(sKS)}, {s(sKS)}, 8192"), (0, False, f"s_add_u32 m0, {s(sSB)}, 8192"),
                 (0, False, f"s_and_b32 {s(sKS)}, {s(sKS)}, 0x3ffff"), (0, True, kvd(0)), (0, True, kvd(1)),
                 (0, False, f"s_add_u32 {s(sKS)}, {s(sKS)}, 8192")]
        LQ = self.o.get("LQ", 14)
        P(f"s_cmp_lg_u32 {s(sL)}, 0")
        P("s_cbranch_scc1 L_q_nocs")
        q0 = (list(P.vmq), list(P.lgq))
        self.gemm_a(QA, True, nx, list(fill), 0, 32, cs=(CSA, ONES), LA=LQ)
        q1 = (list(P.vmq), list(P.lgq))
        self.gather4([CSA + 4 * t for t in range(4)])
        P(f"s_lshr_b32 {s(T[1])}, {s(sW4K)}, 4")
        P(f"s_add_u32 {s(T[1])}, {s(T[1])}, {CSQ}")
        P(f"v_add_u32 {v(CSA+1)}, {s(T[1])}, {v(vL4)}")
        P(f"ds_write_b32 {v(CSA+1)}, {v(CSA)}")
        P("s_waitcnt lgkmcnt(0)")
        P("s_branch L_q_rest")
        P("L_q_nocs:")
        P.vmq, P.lgq = q0
        nx = self.gemm_a(QA, True, nx, fill, 0, 32, LA=LQ)
        assert (P.vmq, P.lgq) == q1
        P("L_q_rest:")
        self.gemm_a(QA, True, nx, fill, 32, 128, LA=LQ)
        assert not fill
        self.stamp(4)
        P(f"s_cmp_lg_u32 {s(sL)}, 0")
        P("s_cbranch_scc1 L_q_wo")
        P(f"v_and_b32 {v(vTMP)}, 15, {l}")
        P(f"v_lshlrev_b32 {v(vTMP)}, 2, {v(vTMP)}")
        P(f"v_lshrrev_b32 {v(A[1])}, 4, {l}")
        P(f"v_lshl_or_b32 {v(vTMP)}, {v(A[1])}, 8, {v(vTMP)}")
        P(f"v_add_u32 {v(vTMP)}, {CSQ}, {v(vTMP)}")
        for t in range(4):
            P(f"ds_read_b32 {v(ST+4+t)}, {v(vTMP)} offset:{64*t}")
        P("s_waitcnt lgkmcnt(0)")
        for t in range(4):
            for x in self.cs_frag_list(EXQ + 2 * t, ST + 4 + t, None, ST + 8 + t):
                P(x)
        P(f"v_add_u32 {v(A[1])}, 16384, {v(vTR)}")
        P(f"v_mov_b32 {v(A[0])}, {v(EXA+20)}")
        for t in range(1, 4):
            P(f"v_xor_b32 {v(A[1+t])}, {32*t}, {v(A[1])}")
        P(f"s_mov_b32 {s(sDS)}, {s(sTRIP)}")
        P(f"s_mov_b32 {s(sSA)}, {s(sPD2)}")
        P(f"s_lshl3_add_u32 {s(sDL)}, {s(sW4K)}, 16384")
        P(f"s_mov_b32 {s(sXK)}, 2")
        P(f"s_mov_b32 {s(sPD)}, -1")
        P("s_branch L_q_fin")
        P("L_q_wo:")
        self.wo_setup()
        P(f"s_mov_b64 {s(PKS,2)}, {s(WO,2)}")
        P(f"s_mov_b32 {s(PKS+2)}, {2*MB}")
        P(f"s_mov_b32 {s(sXK)}, {7 if self.o.get('wppre', 1) else 8}")
        P(f"s_mov_b32 {s(sPD)}, 0x1fffff")
        P("L_q_fin:")
        ini = [f"v_mov_b32 {v(self.SB[3]+i)}, {f32(-1e30)}" for i in range(16)]
        for t in range(4):
            for th in range(2):
                d = v(QA + 16 * (t >> 1) + 8 * th + 4 * (t & 1), 4)
                P(f"v_mfma_f32_16x16x16_bf16 {d}, {v(EXQ+2*t,2)}, {v(EXB+2*th,2)}, {d}")
                P(ini.pop(0))
                P(ini.pop(0))
        for i in range(16):
            P(f"v_mov_b32 {v(self.SB[2]+i)}, 0")
        for i in range(32):
            P(f"v_mul_f32 {v(QA+i)}, {v(ST+1+((i>>3)&1))}, {v(QA+i)}")
        for i in range(16):
            P(f"v_cvt_pk_bf16_f32 {v(PK+i)}, {v(QA+2*i)}, {v(QA+2*i+1)}")
        for i in range(8):
            P(f"v_mov_b32 {v(self.VF+8+i)}, 0")
        for hd in range(2):
            for k in range(4):
                P(f"v_permlane16_swap_b32 {v(PK+8*hd+k)}, {v(PK+8*hd+4+k)}")

    QF, SB, VF, O_, LA_, KF, ONES, SUMA = 48, (224, 240, 64, 80), 104, 128, 160, 168, 184, 188

    def qk(self, i, m, c=None):
        n, hd = i >> 1, i & 1
        d = v(self.SB[i & 3], 16)
        c = c or ("0" if m == 0 else d)
        return f"v_mfma_f32_32x32x16_bf16 {d}, {v(self.KF+8*(n&1)+4*m,4)}, {v(self.QF+8*hd+4*m,4)}, {c}"

    def pv(self, i, m):
        n, hd = i >> 1, i & 1
        if self.o.get("aabl") == "pvconst" and m == 0:
            return f"v_smfmac_f32_16x16x64_bf16 {v(EXA+24,4)}, {v(self.SUMA,4)}, {v(self.SB[i&3]+8*m,8)}, {v(A[7])}"
        return f"v_smfmac_f32_32x32x32_bf16 {v(self.O_+16*hd,16)}, {v(self.VF+8*(n&1)+4*m,4)}, {v(self.SB[i&3]+8*m,8)}, {v(A[7])}"

    def sm(self, i, m):
        ab = self.o.get("aabl")
        if ab == "sumzero":
            return f"v_smfmac_f32_16x16x64_bf16 {v(self.LA_+4*(i&1),4)}, {v(EXA+20,4)}, {v(EXA+16,8)}, {v(A[7])}"
        if ab == "addnop":
            return f"s_nop 2\nv_smfmac_f32_16x16x64_bf16 {v(self.LA_+4*(i&1),4)}, {v(self.SUMA,4)}, {v(self.SB[i&3]+8*m,8)}, {v(A[7])}"
        return f"v_smfmac_f32_16x16x64_bf16 {v(self.LA_+4*(i&1),4)}, {v(self.SUMA,4)}, {v(self.SB[i&3]+8*m,8)}, {v(A[7])}"

    def ex(self, i, r):
        return f"v_exp_f32 {v(self.SB[i&3]+r)}, {v(self.SB[i&3]+r)}"

    def att_body(self, rs, nextra, mask):
        P = self.P
        kv = lambda off: P(f"buffer_load_dwordx4 {v(A[5])}, {srd(WS)}, {s(sKS)} offen offset:{off} sc1 lds")
        def tstamp(k):
            if self.o.get("fine") == [-3, 1]:
                P(f"s_cselect_b32 {s(sTM+2)}, 1, 0")
                P(f"s_memtime {s(sTM,2)}")
                P(f"s_mov_b32 {s(sTM+3)}, m0")
                P(f"s_lshl3_add_u32 m0, {s(sL)}, {s(sTRIP)}")
                P(f"s_lshl2_add_u32 m0, m0, {k}")
                P("s_waitcnt lgkmcnt(0)")
                P(f"v_writelane_b32 {v(vSTAMP)}, {s(sTM)}, m0")
                P(f"s_mov_b32 m0, {s(sTM+3)}")
                P(f"s_cmp_lg_u32 {s(sTM+2)}, 0")
        for it in range(4):
            tstamp(it)
            for u in range(4):
                i = 4 * it + u + 3
                if u & 1 == 0:
                    n = (i + 1) // 2 + 1
                    rdst, roff = self.KF + 8 * (n & 1), 2048 + 2048 * u
                else:
                    n = i // 2
                    rdst, roff = self.VF + 8 * (n & 1), 2048 * (u - 1)
                rd = [f"ds_read_b128 {v(rdst+4*m,4)}, {v(A[6])} offset:{8192*it+roff+1024*m}" for m in range(2)]
                even = it & 1 == 0
                kvslot = even and u < 2
                exslot = (even and u >= 2 or (not even and u < 2 and nextra == 2))
                P(self.qk(i + 1, 0))
                if even and u == 0:
                    P("s_waitcnt lgkmcnt(0)")
                    P("s_barrier")
                elif kvslot:
                    P(f"s_add_u32 m0, {s(sSB)}, {8192*((it+3)&3)}")
                elif exslot:
                    P(f"s_mov_b32 m0, {s(sDL)}")
                for r in range(0, 3):
                    P(self.ex(i, r))
                P(self.sm(i - 1, 0))
                P(rd[0])
                for r in range(3, 5):
                    P(self.ex(i, r))
                P(self.qk(i + 1, 1))
                if self.o.get("fine") == [-2, 1]:
                    P(f"v_writelane_b32 {v(vSTAMP)}, {s(sTM)}, {((4*it+u-1)&15) + 16*(nextra-1)}")
                    P(f"s_memtime {s(sTM,2)}")
                if not (even and u == 0):
                    P("s_waitcnt lgkmcnt(1)")
                for r in range(5, 8):
                    P(self.ex(i, r))
                P(self.pv(i - 1, 0))
                if kvslot:
                    P(f"s_and_b32 {s(sKS)}, {s(sKS)}, 0x3ffff")
                    kv(0)
                elif exslot:
                    if mask:
                        P(f"s_and_b32 {s(sDS)}, {s(sDS)}, {mask}")
                    P(f"buffer_load_dwordx4 {v(A[0])}, {srd(rs)}, {s(sDS)} offen lds")
                elif it == 3 and u == 2:
                    P(f"s_add_u32 {s(sTRIP)}, {s(sTRIP)}, 1")
                elif u == 3:
                    P(f"s_add_u32 m0, {s(sSB)}, {8192*((it+3)&3)}")
                for r in range(8, 11):
                    P(self.ex(i, r))
                P(self.sm(i - 1, 1))
                P(rd[1])
                for r in range(11, 13):
                    P(self.ex(i, r))
                P(self.pv(i - 1, 1))
                if kvslot:
                    kv(1024)
                    P(f"s_add_u32 {s(sKS)}, {s(sKS)}, 8192")
                elif exslot:
                    P(f"s_add_u32 {s(sDS)}, {s(sDS)}, {s(sSA)}")
                    P(f"s_add_u32 {s(sDL)}, {s(sDL)}, 1024")
                elif u == 3:
                    P(f"s_waitcnt vmcnt({2*nextra})")
                    if it == 3:
                        P(f"s_cmp_lt_u32 {s(sTRIP)}, {s(sXK)}")
                for r in range(13, 16):
                    P(self.ex(i, r))

    PD = [CODE, CODE + 1, CODE + 2, CODE + 3, X0, X0 + 1, X0 + 2, X0 + 3]

    def pack_setup(self):
        P = self.P
        l = v(vLANE)
        gw = T[7]
        P(f"s_lshl2_add_u32 {s(gw)}, s2, {s(sW)}")
        PD = self.PD
        P(f"s_cmp_ge_u32 {s(gw)}, 448")
        P("s_cbranch_scc1 L_pk2")
        P(f"v_lshrrev_b32 {v(vTMP)}, 3, {l}")
        P(f"v_mul_u32_u24 {v(vTMP)}, 5120, {v(vTMP)}")
        P(f"v_add_u32 {v(EXA+20)}, {v(vTMP)}, {v(vDS2K)}")
        P(f"s_lshr_b32 {s(T[0])}, {s(gw)}, 3")
        P(f"s_and_b32 {s(T[1])}, {s(gw)}, 7")
        P(f"s_mul_i32 {s(sTRIP)}, {s(T[1])}, {128*7168}")
        P(f"s_lshl_b32 {s(T[2])}, {s(T[0])}, 7")
        P(f"s_add_u32 {s(sTRIP)}, {s(sTRIP)}, {s(T[2])}")
        P(f"s_mov_b32 {s(sPD2)}, {8*7168}")
        P(f"s_lshl_b32 {s(sCSO)}, {s(T[1])}, 7")
        P(f"s_lshl4_add_u32 {s(sCSO)}, {s(T[2])}, {s(sCSO)}")
        P(f"s_add_u32 {s(sCSO)}, {s(sCSO)}, {CS}")
        P(f"s_bitcmp1_b32 {s(T[1])}, 0")
        P(f"s_cselect_b32 {s(sCSO)}, {OOB}, {s(sCSO)}")
        P(f"s_bitcmp1_b32 {s(T[1])}, 1")
        P(f"s_cselect_b32 {s(T[2])}, {OOB}, {s(T[2])}")
        P(f"v_lshrrev_b32 {v(vTMP)}, 1, {v(vL4)}")
        P(f"buffer_load_ushort {v(EXA+16)}, {v(vTMP)}, {srd(B1)}, {s(T[2])} offen")
        for t in range(2):
            P(f"s_lshl1_add_u32 {s(T[2])}, {s(T[0])}, {t}")
            P(f"s_mul_i32 {s(T[3])}, {s(T[2])}, 9363")
            P(f"s_lshr_b32 {s(T[3])}, {s(T[3])}, 16")
            P(f"s_mul_i32 {s(T[4])}, {s(T[3])}, 7")
            P(f"s_sub_u32 {s(T[2])}, {s(T[2])}, {s(T[4])}")
            P(f"s_bfe_u32 {s(T[4])}, {s(T[3])}, 0x10002")
            P(f"s_lshl1_add_u32 {s(T[4])}, {s(T[3])}, {s(T[4])}")
            P(f"s_and_b32 {s(T[4])}, {s(T[4])}, {self.o.get('rot', 1)}")
            P(f"s_lshl_b32 {s(T[4])}, {s(T[4])}, 1")
            P(f"s_and_b32 {s(T[5])}, {s(T[3])}, 3")
            P(f"s_lshr_b32 {s(T[6])}, {s(T[3])}, 2")
            P(f"s_lshl2_add_u32 {s(T[5])}, {s(T[5])}, {s(T[6])}")
            P(f"s_xor_b32 {s(T[5])}, {s(T[5])}, {s(T[4])}")
            P(f"s_mul_i32 {s(T[3])}, {s(T[3])}, 896")
            P(f"s_add_u32 {s(T[3])}, {s(T[3])}, {WP >> 10}")
            P(f"s_lshl1_add_u32 {s(sTO)}, {s(T[2])}, {s(T[3])}")
            P(f"s_cmp_lt_u32 {s(T[2])}, 2")
            P(f"s_cselect_b32 {s(T[6])}, 4, 2")
            P(f"s_cselect_b32 {s(T[7])}, 2, 60")
            P(f"s_mul_i32 {s(T[2])}, {s(T[2])}, {s(T[7])}")
            P(f"s_add_u32 {s(T[2])}, {s(T[2])}, 28")
            P(f"s_add_u32 {s(T[2])}, {s(T[2])}, {s(T[3])}")
            for u in range(2):
                d0, d1 = PD[4 * u + t], PD[4 * u + 2 + t]
                P(f"s_lshl1_add_u32 {s(T[7])}, {s(T[1])}, {u}")
                P(f"s_xor_b32 {s(T[7])}, {s(T[7])}, {s(T[4])}")
                P(f"s_cmp_eq_u32 {s(T[7])}, 15")
                P(f"s_cselect_b32 {s(sXK)}, {s(T[5])}, {s(T[7])}")
                P(f"s_mul_i32 {s(sXK)}, {s(sXK)}, {s(T[6])}")
                P(f"s_lshl1_add_u32 {s(sXK)}, {s(sXK)}, {s(T[2])}")
                P(f"s_cmp_eq_u32 {s(T[7])}, {s(T[5])}")
                P(f"s_cselect_b32 {s(d0)}, {s(sTO)}, {s(sXK)}")
                P(f"s_cselect_b32 {s(d1)}, 14, {s(T[6])}")
                P(f"s_add_u32 {s(d1)}, {s(d1)}, {s(d0)}")
                P(f"s_lshl_b32 {s(d0)}, {s(d0)}, 10")
                P(f"s_lshl_b32 {s(d1)}, {s(d1)}, 10")
        P("s_branch L_pkdone")
        P("L_pk2:")
        P(f"buffer_load_ushort {v(EXA+16)}, {v(vL4)}, {srd(B1)}, 0 offen")
        P(f"v_mov_b32 {v(EXA+20)}, {v(vDS2K)}")
        P(f"s_sub_u32 {s(gw)}, {s(gw)}, 448")
        P(f"s_and_b32 {s(T[0])}, {s(gw)}, 15")
        P(f"s_bfe_u32 {s(T[1])}, {s(gw)}, 0x10004")
        P(f"s_lshr_b32 {s(T[2])}, {s(gw)}, 5")
        P(f"s_mul_i32 {s(sTRIP)}, {s(T[2])}, 7")
        P(f"s_lshl2_add_u32 {s(sTRIP)}, {s(T[1])}, {s(sTRIP)}")
        P(f"s_lshl_b32 {s(sTRIP)}, {s(sTRIP)}, 16")
        P(f"s_lshl_b32 {s(T[3])}, {s(T[0])}, 7")
        P(f"s_add_u32 {s(sTRIP)}, {s(sTRIP)}, {s(T[3])}")
        P(f"s_mov_b32 {s(sPD2)}, 16384")
        P(f"s_mov_b32 {s(sCSO)}, {OOB}")
        P(f"s_lshr_b32 {s(T[3])}, {s(T[0])}, 2")
        P(f"s_sub_u32 {s(T[4])}, {s(T[2])}, {s(T[3])}")
        P(f"s_and_b32 {s(T[4])}, {s(T[4])}, 3")
        P(f"s_lshl4_add_u32 {s(T[4])}, {s(T[1])}, {s(T[4])}")
        P(f"s_lshr_b32 {s(T[2])}, {s(T[2])}, 2")
        P(f"s_sub_u32 {s(T[0])}, {s(T[0])}, {s(T[2])}")
        P(f"s_sub_u32 {s(T[0])}, {s(T[0])}, 1")
        P(f"s_and_b32 {s(T[0])}, {s(T[0])}, 3")
        P(f"s_lshl2_add_u32 {s(T[3])}, {s(T[2])}, {s(T[3])}")
        P(f"s_mul_i32 {s(T[3])}, {s(T[3])}, {896*1024}")
        P(f"s_add_u32 {s(T[3])}, {s(T[3])}, {WP + 448*1024}")
        P(f"s_cmp_ge_u32 {s(gw)}, 512")
        P(f"s_cselect_b32 {s(T[3])}, {OOB}, {s(T[3])}")
        P(f"s_lshl1_add_u32 {s(T[5])}, {s(T[4])}, {s(T[0])}")
        P(f"s_mul_i32 {s(T[6])}, {s(T[0])}, 28")
        P(f"s_add_u32 {s(T[6])}, {s(T[6])}, {s(T[4])}")
        P(f"s_cmp_lt_u32 {s(T[0])}, 2")
        P(f"s_cselect_b32 {s(T[5])}, {s(T[5])}, {s(T[6])}")
        P(f"s_lshl_b32 {s(T[5])}, {s(T[5])}, 12")
        P(f"s_add_u32 {s(PD[0])}, {s(T[5])}, {s(T[3])}")
        P(f"s_lshr_b32 {s(T[0])}, {s(T[0])}, 1")
        P(f"s_lshr_b32 {s(T[5])}, 32768, {s(T[0])}")
        P(f"s_lshl_b32 {s(T[6])}, {s(T[1])}, 30")
        for i in range(1, 4):
            P(f"s_add_u32 {s(PD[2*i])}, {s(PD[2*i-2])}, {s(T[5])}")
        P(f"s_or_b32 {s(PD[6])}, {s(PD[6])}, {s(T[6])}")
        for i in range(4):
            P(f"s_add_u32 {s(PD[2*i+1])}, {s(PD[2*i])}, 2048")
        P("L_pkdone:")

    def pack_step(self, rd, wr):
        P = self.P
        for t in range(4):
            if wr is not None:
                b = 16 * wr + 4 * t
                P(f"v_mfma_f32_16x16x32_bf16 {v(EXA+4*t,4)}, {v(self.ONES,4)}, {a(b,4)}, {v(EXA+4*t,4) if wr else 0}")
                P(f"buffer_store_dwordx4 {a(b,4)}, {v(vL16)}, {srd(WS)}, {s(self.PD[2*wr+(t>>1)])} offen offset:{1024*(t&1)} sc1")
            if rd is not None:
                for e in range(2):
                    P(f"ds_read_b64_tr_b16 {a(16*rd+4*t+2*e,2)}, {v(A[1+t])} offset:{rd*4096+e*2048}")

    def fallback(self):
        P = self.P
        M = 120
        P("s_waitcnt vmcnt(0) lgkmcnt(0)")
        for hd in range(2):
            i = hd
            S, CB = self.SB[i & 3], self.SB[2]
            l1, l2 = P.newlabel("fb"), P.newlabel("fb")
            P(f"v_mov_b32 {v(M)}, 0xff800000")
            P(f"s_mov_b32 {s(T[0])}, 0")
            P(f"{l1}:")
            for m in range(2):
                P(f"buffer_load_dwordx4 {v(self.KF+4*m,4)}, {v(A[5])}, {srd(WS)}, {s(T[0])} offen offset:{1024*m} sc1")
            P("s_waitcnt vmcnt(0)")
            P(self.qk(i, 0))
            P(self.qk(i, 1))
            for r in range(8):
                P(f"v_max3_f32 {v(M)}, {v(S+2*r)}, {v(S+2*r+1)}, {v(M)}")
            P(f"s_add_u32 {s(T[0])}, {s(T[0])}, 4096")
            P(f"s_cmp_lt_u32 {s(T[0])}, 0x40000")
            P(f"s_cbranch_scc1 {l1}")
            P(f"v_mov_b32 {v(vTMP)}, {v(M)}")
            P(f"v_permlane32_swap_b32 {v(M)}, {v(vTMP)}")
            P(f"v_max_f32 {v(M)}, {v(M)}, {v(vTMP)}")
            for r in range(16):
                P(f"v_sub_f32 {v(CB+r)}, 0, {v(M)}")
                P(f"v_mov_b32 {v(self.O_+16*hd+r)}, 0")
            for r in range(4):
                P(f"v_mov_b32 {v(self.LA_+4*hd+r)}, 0")
            P(f"s_mov_b32 {s(T[0])}, 0")
            P(f"{l2}:")
            for m in range(2):
                P(f"buffer_load_dwordx4 {v(self.KF+4*m,4)}, {v(A[5])}, {srd(WS)}, {s(T[0])} offen offset:{1024*m} sc1")
                P(f"buffer_load_dwordx4 {v(self.VF+4*m,4)}, {v(A[5])}, {srd(WS)}, {s(T[0])} offen offset:{2048+1024*m} sc1")
            P("s_waitcnt vmcnt(0)")
            P(self.qk(i, 0, v(CB, 16)))
            P(self.qk(i, 1))
            for r in range(16):
                P(self.ex(i, r))
            for m in range(2):
                P(self.pv(i, m))
                P(self.sm(i, m))
            P(f"s_add_u32 {s(T[0])}, {s(T[0])}, 4096")
            P(f"s_cmp_lt_u32 {s(T[0])}, 0x40000")
            P(f"s_cbranch_scc1 {l2}")
            P("s_nop 11")

    def p2(self):
        P = self.P
        P(f"s_mov_b32 {s(sTRIP)}, 0")
        P.wait_all()
        self.stamp(6)
        P(f"s_add_u32 m0, {s(sSB)}, 16384")
        P(".p2align 3")
        P("L_att_a:")
        self.att_body(PKS, 1, s(sPD))
        P("s_cbranch_scc1 L_att_a")
        P(f"s_cmp_lt_u32 {s(sTRIP)}, 8")
        P("s_cbranch_scc1 L_pack_a")
        P("L_att_tail:")
        i = 127
        P(self.sm(i - 1, 0))
        P("s_waitcnt lgkmcnt(0)")
        for r in range(0, 3):
            P(self.ex(i, r))
        P(self.pv(i - 1, 0))
        for r in range(3, 6):
            P(self.ex(i, r))
        P(self.pv(i - 1, 1))
        for r in range(6, 9):
            P(self.ex(i, r))
        P(self.sm(i - 1, 1))
        for r in range(9, 11):
            P(self.ex(i, r))
        P(self.pv(i, 0))
        for r in range(11, 14):
            P(self.ex(i, r))
        P(self.sm(i, 0))
        for r in range(14, 16):
            P(self.ex(i, r))
        P("s_nop 1")
        P(self.sm(i, 1))
        P(self.pv(i, 1))
        self.pub_offsets(OP, None)
        l = v(vLANE)
        P(f"v_and_b32 {v(A[6])}, 15, {l}")
        P(f"v_lshlrev_b32 {v(A[6])}, 4, {v(A[6])}")
        P(f"v_bfe_u32 {v(vTMP)}, {l}, 4, 1")
        P(f"v_lshl_or_b32 {v(A[6])}, {v(vTMP)}, 10, {v(A[6])}")
        P(f"v_lshrrev_b32 {v(vTMP)}, 5, {l}")
        P(f"v_lshl_or_b32 {v(A[6])}, {v(vTMP)}, 8, {v(A[6])}")
        self.stamp(7)
        lo, hi = (2.0 ** -60, 2.0 ** 60) if not self.force_fallback else (1.0, 0.5)
        RC = 122
        P(f"v_min_f32 {v(RC)}, {v(self.LA_)}, {v(self.LA_+4)}")
        P(f"v_add_f32 {v(RC+1)}, {v(self.LA_)}, {v(self.LA_+4)}")
        P(f"v_cmp_nle_f32 vcc, {f32(lo)}, {v(RC)}")
        P(f"s_mov_b64 {s(T[2],2)}, vcc")
        P(f"v_cmp_nge_f32 vcc, {f32(hi)}, {v(RC+1)}")
        P(f"s_or_b64 {s(T[2],2)}, {s(T[2],2)}, vcc")
        if not self.o.get("aabl"):
            P("s_cbranch_scc1 L_fallback")
        P("L_att_fin:")
        for hd in range(2):
            P(f"v_rcp_f32 {v(RC+hd)}, {v(self.LA_+4*hd)}")
        for hd in range(2):
            for r in range(16):
                P(f"v_mul_f32 {v(self.O_+16*hd+r)}, {v(RC+hd)}, {v(self.O_+16*hd+r)}")
            for r in range(8):
                P(f"v_cvt_pk_bf16_f32 {v(PK+8*hd+r)}, {v(self.O_+16*hd+2*r)}, {v(self.O_+16*hd+2*r+1)}")
            for m in range(2):
                P(f"buffer_store_dwordx4 {v(PK+8*hd+4*m,4)}, {v(A[6])}, {srd(WS)}, {s(sPUB)} offen offset:{2048*hd+512*m} sc1")
        self.xstamp("O stores issued")
        P(f"s_mov_b32 {s(sPD2)}, 1")
        P(f"s_or_b32 {s(T[4])}, {s(sW)}, {s(sL)}")
        P("s_cbranch_scc1 L_nopk")
        P(f"s_atomic_add {s(sPD2)}, {s(WS,2)}, {s(sCT)} offset:{CT_TEAM + 8} glc")
        P("L_nopk:")
        self.gemm_a_addr(OP)
        P(f"v_and_b32 {v(A[5])}, 48, {v(vROW)}")
        P(f"s_lshl_b32 {s(T[0])}, {s(sFS)}, 7")
        P(f"s_lshl_b32 {s(T[2])}, {s(sTAU)}, 7")
        P(f"s_mul_i32 {s(sCSO)}, {s(sJ)}, {896*1024}")
        P(f"s_add_u32 {s(sCSO)}, {s(sCSO)}, {s(sW4K)}")
        P(f"s_add_u32 {s(sCSO)}, {s(sCSO)}, {WP}")
        P.wait_all()
        self.xstamp("O drained")

    def wo_setup(self):
        P = self.P
        P(f"s_lshl1_add_u32 {s(sDS)}, {s(sW)}, {s(sROT)}")
        P(f"s_lshl_b32 {s(sDS)}, {s(sDS)}, 18")
        P(f"s_mov_b32 {s(sSA)}, 16384")
        P(f"s_lshl_b32 {s(T[0])}, {s(sFS)}, 7")
        P(f"v_add_u32 {v(A[0])}, {s(T[0])}, {v(vDS2K)}")
        P(f"s_lshl_b32 {s(sDL)}, {s(sW)}, 15")

    def pack_side(self):
        P = self.P
        P("L_pack_a:")
        P(f"s_cmp_lg_u32 {s(sTRIP)}, 7")
        P("s_cbranch_scc1 L_pack_a2")
        for t in self.wp_l2_setup(A[1], T[0]):
            P(t)
        for i in range(self.o.get("wppre", 1)):
            P(f"buffer_load_dword {v(A[2+i])}, {v(A[1])}, {srd(WS)}, {s(T[0])} offen sc1")
            P(f"s_add_u32 {s(T[0])}, {s(T[0])}, 131072")
        P("s_branch L_att_a")
        P("L_pack_a2:")
        P(f"s_cmp_lg_u32 {s(sTRIP)}, 2")
        P("s_cbranch_scc1 L_pack_a3")
        self.pack_step(0, None)
        P("s_branch L_att_a")
        P("L_pack_a3:")
        P(f"s_cmp_lg_u32 {s(sTRIP)}, 3")
        P("s_cbranch_scc1 L_pack_a4")
        self.pack_step(1, 0)
        P("s_branch L_att_a")
        P("L_pack_a4:")
        self.pack_step(2, 1)
        self.wo_setup()
        P(".p2align 3")
        P("L_att_c:")
        self.att_body(WO, 2, 0x1fffff)
        P(f"s_cmp_eq_u32 {s(sTRIP)}, 8")
        P("s_cbranch_scc1 L_att_tail")
        P(f"s_cmp_lg_u32 {s(sTRIP)}, 5")
        P("s_cbranch_scc1 L_pack_c6")
        self.pack_step(3, 2)
        P("s_branch L_att_c")
        P("L_pack_c6:")
        P(f"s_cmp_lg_u32 {s(sTRIP)}, 6")
        P("s_cbranch_scc1 L_pack_c7")
        self.pack_step(None, 3)
        self.gather4([EXA + 4 * t for t in range(4)])
        P(f"s_lshl3_add_u32 {s(T[0])}, {s(sW4K)}, 31744")
        P(f"v_add_u32 {v(EXA+17)}, {s(T[0])}, {v(vL4)}")
        P(f"ds_write_b32 {v(EXA+17)}, {v(EXA)}")
        P("s_branch L_att_c")
        P("L_pack_c7:")
        l = v(vLANE)
        P(f"v_xor_b32 {v(EXA+17)}, 0x8000, {v(EXA+17)}")
        P(f"ds_read_b32 {v(EXA+1)}, {v(EXA+17)}")
        P(f"v_lshlrev_b32 {v(EXA+16)}, 16, {v(EXA+16)}")
        P(f"v_and_b32 {v(EXA+18)}, 0xf0, {v(vL16)}")
        P(f"v_bfe_u32 {v(EXA+19)}, {l}, 4, 1")
        P(f"v_lshl_or_b32 {v(EXA+18)}, {v(EXA+19)}, 3, {v(EXA+18)}")
        P(f"v_lshrrev_b32 {v(EXA+19)}, 5, {l}")
        P(f"v_lshl_or_b32 {v(EXA+18)}, {v(EXA+19)}, 10, {v(EXA+18)}")
        P("s_waitcnt lgkmcnt(0)")
        P(f"v_add_f32 {v(EXA)}, {v(EXA)}, {v(EXA+1)}")
        for x in self.cs_frag_list(EXA + 2, EXA, EXA + 16, EXA + 1):
            P(x)
        P(f"buffer_store_dwordx2 {v(EXA+2,2)}, {v(EXA+18)}, {srd(WS)}, {s(sCSO)} offen sc1")
        P("s_branch L_att_c")

    def slot_of(self, c):
        return (8, 9, 4, 5, 6, 7)[c] if c < 6 else (c + 4) % 10

    def wp_chunk(self, c, i):
        self.emit_dma(self.grp_wp(c)[i])

    B2P = 176
    TB = [160, 112, 240, 176, 64, 80, 160]
    WF = 128
    XT = T + [CODE, CODE + 1, CODE + 2, CODE + 3, X0, X0 + 1, X0 + 2]

    def dsread(self, f):
        c, i = f >> 4, f & 15
        addr = self.slot_of(c) * 16384 + i * 1024
        self.P.lg(f"ds_read_b128 {v(self.WF+4*(f&7),4)}, {v((vL16, A[2], A[3])[addr>>16])} offset:{addr & 0xffff}", ("F", f))

    def x1load(self, x):
        self.P.vm(f"buffer_load_dwordx4 {a(4*x,4)}, {v(A[0])}, {srd(WS)}, {s(self.XT[x>>2])} offen offset:{1024*(x&3)} sc1", ("X", x))

    def p3(self):
        P = self.P
        self.stamp(8)
        self.arrive_wait(sCO, 8, 16)
        self.stamp(9)
        slow, back = P.newlabel("slow"), P.newlabel("back")
        P(f"s_cmp_eq_u32 {s(sPD2)}, 15")
        P(f"s_cbranch_scc1 {slow}")
        P(f"{back}:")
        self.slow.append((slow, back, lambda: self.two_level_finish(8)))
        for x in range(self.o["LO"]):
            self.xload(x, 31)
        P("s_barrier")
        early = [c for c in range(10) if self.slot_of(c) >= 8]
        t0 = 2 * (64 - self.o["LO"])
        fill = [(40, True, (lambda i=i: P.vm(f"buffer_load_dwordx4 {v(self.B2P+4*i,4)}, {v(A[5])}, {srd(B2)}, {s(T[0])} offen offset:{64*i}", "b2")))
                for i in range(2)]
        fill += [(62, False, lambda: P.wait(vm="b2"))] + [(0, False, t) for t in self.rowswap_list(self.B2P, 2) + self.unpack_list(224, self.B2P, 8)]
        fill += [(t0 - 26, False, f"s_mov_b32 {s(sPD2)}, 0"), (0, False, f"s_atomic_add {s(sPD2)}, {s(WS,2)}, {s(T[2])} offset:{CT_REP + 8} glc")]
        fill += [(t0 - 2, False, lambda: self.poll_fast(T[2], CT_REP + 8, 16, sPD2))]
        n = 0
        for c in early:
            for pre, txt, tag in self.grp_wp(c):
                fill += [(0, False, t) for t in pre] + [(t0 + self.o.get("egap", 2) * n, True, (lambda txt=txt, tag=tag: P.vm(txt, tag)))]
                n += 1
        self.gemm_a(R, False, self.o["LO"], fill, LA=self.o["LO"])
        assert not fill
        self.pub_offsets(X1P, ST1)
        self.stamp(10)
        self.pack_R()
        self.stats_and_store(sPUB, sSTO)
        self.xstamp("x1 stores issued")
        P(f"s_lshl_b32 {s(sSTO)}, {s(sTT)}, 12")
        P(f"s_add_u32 {s(sSTO)}, {s(sSTO)}, {s(sLB)}")
        P(f"s_add_u32 {s(sSTO)}, {s(sSTO)}, {ST1}")
        self.mlp_addr()
        P(f"s_lshl_b32 {s(sXK)}, {s(sTT)}, 16")
        P(f"s_add_u32 {s(sXK)}, {s(sXK)}, {s(sLB)}")
        P(f"s_add_u32 {s(sXK)}, {s(sXK)}, {X1P}")
        P(f"v_add_u32 {v(A[0])}, {s(sXK)}, {v(vL16)}")
        P(f"s_lshl_b32 {s(sXK)}, {s(sROT)}, 13")
        P(f"s_lshl_b32 {s(sDS)}, {s(sFS)}, 12")
        P(f"s_xor_b32 {s(sDL)}, {s(sXK)}, {15 << 12}")
        tab = []
        for n, r in enumerate(self.XT):
            tab.append([f"s_xor_b32 {s(r)}, {s(sXK)}, {n << 12}", f"s_cmp_eq_u32 {s(r)}, {s(sDS)}", f"s_cselect_b32 {s(r)}, {s(sDL)}, {s(r)}"])
        P.wait(vm="pub")
        self.xstamp("x1 drained")

        fl = self.unpack_list(R, PK, 16) + [f"v_add_f32 {v(R+k)}, {v(R+k)}, {v(224+8*(k>>4)+(k&7))}" for k in range(32)]

        def rest():
            P("s_barrier")
            dm = [x for c in range(2, self.o["npre"]) for x in self.grp_wp(c)]
            while dm:
                if len(dm) == 4 * self.o.get("npoll", 2):
                    self.poll_issue(sCO, 16, sPD2)
                self.emit_dma(dm.pop(0))
                if tab:
                    for x in tab.pop(0):
                        P(x)
            assert not tab
            self.stamp(11)
        self.arrive_wait(sCO, 16, 16, rest)
        self.stamp(12)
        DSL = self.o["DSL"]
        for f in range(DSL):
            self.dsread(f)
        nx = self.o["LA"]
        for x in range(nx):
            self.x1load(x)
        for f in range(28):
            i, t, half = f // 14, (f % 14) >> 1, f & 1
            if f == 0:
                P.wait(lg=("F", 1))
            for k in range(2):
                th = k ^ half
                n = 8 * th + 4 * half
                d = v(self.TB[t] + n, 4) if t < 6 else a(240 + n, 4)
                P(f"v_mfma_f32_16x16x32_bf16 {d}, {v(self.WF+4*(f&7),4)}, {v(PK+8*i+4*th,4)}, {d if i else 0}")
                if k == 0:
                    self.dsread(f + DSL)
                    if fl:
                        P(fl.pop(0))
                else:
                    if f & 1:
                        P.wait(lg=("F", f + 2))
                    if f == 31 - DSL:
                        P.wait(vm=[("C", 2), ("C", 3)])
                        P("s_barrier")
                    elif f >= self.o.get("xgo", 16) and f & 1 == 0:
                        self.x1load(nx)
                        nx += 1
                    else:
                        for _ in range(2):
                            if fl:
                                P(fl.pop(0))
        assert not fl
        self.nx0 = nx

    sHC, sPM, sPI, sLO, sHI = range(ARR + 4, ARR + 9)
    sPF = [ARR + 9, ARR + 10, ARR + 11]
    sPO = [ARR + 12, ARR + 13, ARR + 14]

    def mlp_addr(self):
        P = self.P
        P(f"v_add_u32 {v(A[2])}, 0x10000, {v(vL16)}")
        P(f"v_add_u32 {v(A[3])}, 0x20000, {v(vL16)}")
        P(f"s_mul_i32 {s(T[0])}, {s(sTT)}, {224*1024}")
        P(f"s_add_u32 {s(T[0])}, {s(T[0])}, {s(sLB)}")
        P(f"s_add_u32 {s(T[0])}, {s(T[0])}, {HP}")
        P(f"s_mul_i32 {s(T[1])}, {s(sJ)}, 14336")
        P(f"s_add_u32 {s(sPUB)}, {s(T[0])}, {s(T[1])}")
        P(f"s_and_b32 {s(T[2])}, {s(sJ)}, 12")
        P(f"s_mul_i32 {s(T[1])}, {s(T[2])}, 14336")
        P(f"s_add_u32 {s(T[0])}, {s(T[0])}, {s(T[1])}")
        P(f"v_add_u32 {v(A[4])}, {s(T[0])}, {v(vL16)}")
        for r in range(4):
            P(f"s_add_u32 {s(T[0])}, {s(sJ)}, {r}")
            P(f"s_and_b32 {s(T[0])}, {s(T[0])}, 3")
            P(f"s_mul_i32 {s(ARR+r)}, {s(T[0])}, 14336")
        P(f"s_lshl2_add_u32 {s(self.sHC)}, {s(T[2])}, {s(sCO)}")
        P(f"s_lshl_b32 {s(T[0])}, {s(sTT)}, 9")
        P(f"s_lshl_b32 {s(T[1])}, {s(sL)}, 6")
        P(f"s_add_u32 {s(T[0])}, {s(T[0])}, {s(T[1])}")
        P(f"s_lshl2_add_u32 {s(self.sPM)}, {s(sJ)}, {s(T[0])}")
        P(f"s_lshl_b32 {s(T[1])}, {s(sTT)}, 16")
        P(f"s_add_u32 {s(T[1])}, {s(T[1])}, {s(sLB)}")
        P(f"s_add_u32 {s(T[1])}, {s(T[1])}, {PART}")
        P(f"s_lshl_b32 {s(T[2])}, {s(sJ)}, 12")
        P(f"s_add_u32 {s(self.sPI)}, {s(T[1])}, {s(T[2])}")
        for n in range(3):
            P(f"s_add_u32 {s(T[2])}, {s(sJ)}, {4*(n+1)}")
            P(f"s_and_b32 {s(T[2])}, {s(T[2])}, 15")
            P(f"s_lshl2_add_u32 {s(self.sPF[n])}, {s(T[2])}, {s(T[0])}")
            P(f"s_add_u32 {s(T[2])}, {s(T[2])}, {n * 1024}")
            P(f"s_lshl_b32 {s(T[2])}, {s(T[2])}, 12")
            P(f"s_add_u32 {s(self.sPO[n])}, {s(T[1])}, {s(T[2])}")
        P(f"s_mov_b32 {s(self.sLO)}, 2")
        P(f"s_mov_b32 {s(self.sHI)}, 4")
        P(f"s_mul_i32 {s(sSB)}, {s(sJ)}, 7168")
        P(f"s_add_u32 {s(sSB)}, {s(sSB)}, {CS}")
        P(f"s_add_u32 {s(sTRIP)}, {s(sSB)}, 4096")
        self.wq_setup()
        for t in self.kw_addr():
            P(t)
        P(f"s_cmp_eq_u32 {s(sL)}, 0")
        P(f"s_cselect_b32 {s(WQ+2)}, {2*MB}, 0")
        P(f"s_cselect_b32 {s(WKV+2)}, 65536, 0")

    def mlp(self):
        P = self.P
        o = self.o
        DSL, BG = o["DSL"], o.get("BG", 1)
        abl = o.get("abl", "")
        sHC, sPF, sPM, sPO, sPI = self.sHC, self.sPF, self.sPM, self.sPO, self.sPI
        BLK = [64, 80, 160, 176]
        WF, ST, EXB, C1, C2, SD, TM = 128, 224, 104, 108, 110, 220, 224
        TB, dsread = self.TB, self.dsread
        ACC = [[112, 240], [BLK[3], BLK[0]], [BLK[1], BLK[2]], [R, R + 16]]
        PBUF = [PK, TM, PK]
        PIN = [BLK[3], TM, BLK[2]]
        SUMP = [112 + k if k < 16 else 224 + k for k in range(32)]
        steps = []
        tile_end = {}

        def slot(f, xt, xs, blk, half, z):
            steps.append(dict(f=f, x=xt, xs=xs, acc=blk + 4 * half, half=half, z=z, blk=blk))

        def extra(t):
            for half in range(2):
                steps.append(dict(ex=2 * t + half, acc=TB[t] + 4 * half, x=("E", t)))
            tile_end[t] = len(steps) - 1
        for p in range(30):
            for k in range(4):
                slot(28 + 4 * p + k, ("X", 2 * p + 1), 2 * p, TB[k >> 1], k & 1, False)
        extra(0)
        extra(1)
        x_dead = {}
        for t in range(2, 7):
            for p in range(30):
                for half in range(2):
                    slot(28 + 60 * t + 2 * p + half, None, 2 * p, TB[t], half, False)
                if t == 6:
                    x_dead[p] = len(steps) - 1
            extra(t)
        mlp2_start = len(steps)
        h_use = {}
        f = 448
        for q in range(28):
            h_use[q] = len(steps)
            for k in range(8):
                slot(f, ("H", 2 * q + 1), 2 * q, ACC[k >> 2][(k >> 1) & 1], k & 1, q == 0)
                f += 1
        pass_start = {}
        for n in (2, 3):
            pass_start[n] = len(steps)
            for q in range(28):
                for k in range(4):
                    slot(f, None, 2 * q, ACC[n][k >> 1], k & 1, q == 0 and n == 2)
                    f += 1
        N = len(steps)
        fstep = {st["f"]: i for i, st in enumerate(steps) if "f" in st}
        bars = [c for c in range(2, 56) if c == 2 or c % BG == 0 or c >= o.get("cb", 55) or c in o.get("xbar", [9, 11])]
        bar_own = {c: (fstep[16 * c - DSL] - 1 if c > 2 else -1) for c in bars}
        bar_at = {st: c for c, st in bar_own.items()}
        bar_pub = {c: bar_own[max(b for b in bars if b <= c)] for c in range(2, 56)}
        bar_free = {c: bar_own[min(b for b in bars if b >= c + 2)] for c in range(54)}
        last_in = lambda sl, c: max([x for x in range(c) if self.slot_of(x) == sl], default=None)

        nx0 = self.nx0

        def hload(qq):
            t, r = qq >> 3, qq & 7
            if r == 0 and t and t & 1 == 0:
                P(f"v_add_u32 {v(A[4])}, 4096, {v(A[4])}")
            P.vm(f"buffer_load_dwordx4 {a(4*qq,4)}, {v(A[4])}, {srd(WS)}, {s(ARR+(r>>1))} offen offset:{2048*(t&1)+1024*(r&1)} sc1", ("H", qq))

        PG = o.get("PG", 22)

        def off_bar(x):
            while x in bar_at or x - PG in bar_at:
                x += 1
            return x
        flags = o.get("flags", [[2, -46], [4, 62], [5, 112], [6, 160]])
        polls = {t: (off_bar(mlp2_start + at), sHC, (128, 136, 192, 200)[n], 4) for n, (t, at) in enumerate(flags)}
        arrivals = {t: (("hs", t), sHC, polls[t][2], sONE) for t in polls}
        px = o.get("px", [[4, 10, 92, 8, 146], [44, 10, 132, 8, 184], [116, 6, 194, 2, 216]])
        p2s = pass_start[2]
        for n in range(3):
            polls[f"p{n}"] = (off_bar(p2s + px[n][2]), sPM, 256, ("bit", n))
            arrivals[f"p{n}"] = (("ps", n), sPF[n], 256, (sONE, self.sLO, self.sHI)[n])
        PL_AT = [off_bar(p2s + x[4]) for x in px]
        arrived = {}
        ST_AT = o.get("stat", 60)
        KW_AT = [off_bar(pass_start[3] + x) for x in o.get("kw", [50, 80])]

        ops = []
        for x in range(nx0, 60):
            ops.append(dict(dl=4 * (x >> 1) - 1, av=0, fn=(lambda x=x: self.x1load(x)), k="x"))
        for i in range(4):
            ops.append(dict(dl=ST_AT - 24 + 8 * i, av=0, fn=(lambda i=i: self.stat_load(ST, sSTO, i, "st")), k="s"))
        for u in range(7):
            ops.append(dict(dl=tile_end[u] - 3, av=max(0, tile_end[u] - 60), k="e", fn=(lambda u=u: P.vm(
                f"buffer_load_dwordx4 {v(EXA+4*u,4)}, {v(vL16)}, {srd(WS)}, {s(sTRIP if u >= 4 else sSB)} offen offset:{1024*(u&3)} sc1", ("E", u)))))
        groups = []
        for c in range(o["npre"], 56):
            prev = last_in(self.slot_of(c), c)
            if "w" not in abl:
                groups.append(dict(dl=bar_pub[c] - (o.get("g0lead", 0) if c < 10 else 0), av=bar_free[prev] + 1 if prev is not None else 0, d=self.grp_wp(c), k="w"))
        for qq in range(56):
            q = qq >> 1
            flag = min(t for t, _ in flags if t >= q >> 2)
            ops.append(dict(dl=h_use[q] - 1, av=max(x_dead[q], polls[flag][0]) + 1, fn=(lambda qq=qq: hload(qq)), k="h"))
        if "n" not in abl:
            for g in range(4):
                groups.append(dict(dl=KW_AT[g >> 1] - o.get("kwlead", 10), av=bar_free[last_in(g, 56)] + 1, d=self.grp_wkv(g), k="n"))
            for e in range(8):
                groups.append(dict(dl=N + 100 + (e ^ 4), av=bar_free[last_in(e, 56)] + 1 if e ^ 4 < o.get("nwq", 2) else N + 9,
                                   d=self.grp_wq(e, e < 4 and o.get("nwq", 2) <= 4 and o.get("wrot", 1)), k="n",
                                   need=("kw", 2 * e + 1) if e < 4 else None))
        queues = {k: [x for x in ops if x["k"] == k and k not in abl] for k in "xshe"}
        cur = [None]

        def pick_group(i):
            if cur[0] is None:
                cand = [g for g in groups if g["av"] <= i + 2 and (not g.get("need") or (g["need"] in done and g["need"] not in P.lgq))]
                if cand:
                    cur[0] = min(cand, key=lambda g: g["dl"])
                    groups.remove(cur[0])
            return cur[0]

        items = []

        def item(text, first, deps=(), cost=None, vm=False, mark=None):
            if cost is None:
                cost = 8 if text.startswith(("v_exp", "v_rcp", "v_rsq")) else 4
            items.append(dict(t=text, first=first, deps=list(deps), cost=cost, vm=vm, mark=mark, at=None))
            return items[-1]

        def chain(texts, first, dep=None):
            for t in texts:
                dep = item(t, first, [dep] if dep else [])
            return dep

        def unp(dst, src, k):
            return f"v_and_b32 {v(dst)}, 0xffff0000, {v(src+(k>>1))}" if k & 1 else f"v_lshlrev_b32 {v(dst)}, 16, {v(src+(k>>1))}"
        k1 = -2 * math.sqrt(2 / math.pi) * math.log2(math.e)
        sl = self.stat_sum_list(ST)
        sl += [f"v_add_f32 {v(ST+2)}, {f32(1e-5)}, {v(ST+1)}", f"v_rsq_f32 {v(ST+2)}, {v(ST+2)}",
               f"v_mul_f32 {v(ST+3)}, {v(ST+1)}, {v(ST+2)}", f"v_fmaak_f32 {v(ST+3)}, {v(ST+3)}, {v(ST+2)}, {f32(1e-5)}",
               f"v_rsq_f32 {v(ST+3)}, {v(ST+3)}", f"v_mul_f32 {v(ST+2)}, {v(ST+2)}, {v(ST+3)}",
               f"v_rcp_f32 {v(SD)}, {v(ST+2)}", f"v_mul_f32 {v(C1)}, {f32(k1)}, {v(ST+2)}",
               f"v_mul_f32 {v(C2)}, {v(ST+2)}, {v(ST+2)}", f"v_mul_f32 {v(C2)}, {v(C2)}, {v(C1)}",
               f"v_mul_f32 {v(C2)}, {f32(0.044715)}, {v(C2)}"]
        sl += self.stat_frag_list(EXB, ST, SD, ST + 4)
        for r in (C1, C2, SD):
            sl += self.split_list(r, r + 1)
        chain(sl, ST_AT + 1)["mark"] = "st"

        def hstore(t, th):
            def f():
                if th == 0 and t and t & 1 == 0:
                    P(f"s_add_u32 {s(sPUB)}, {s(sPUB)}, 4096")
                P.vm(f"buffer_store_dwordx4 {v(PK+8*(t&1)+4*th,4)}, {v(vL16)}, {srd(WS)}, {s(sPUB)} offen offset:{2048*(t&1)+1024*th} sc1", ("hs", t))
            return f
        cvt_of = {}
        store_of = {}
        prev_store = None
        for t in range(7):
            st0 = tile_end[t] + 3
            b = TB[t]
            for th in range(2):
                cv = []
                for pr in range(4):
                    last = []
                    for k in range(2):
                        n = 8 * th + 2 * pr + k
                        e, tm = v(b + n), v(TM + n)
                        last.append(chain([f"v_mul_f32 {tm}, {e}, {e}", f"v_fma_f32 {tm}, {tm}, {v(C2+th)}, {v(C1+th)}",
                                           f"v_mul_f32 {tm}, {tm}, {e}", f"v_exp_f32 {tm}, {tm}",
                                           f"v_fma_f32 {tm}, {tm}, {v(SD+th)}, {v(SD+th)}", f"v_rcp_f32 {tm}, {tm}",
                                           f"v_mul_f32 {tm}, {tm}, {e}"], st0, cvt_of.get(n >> 1)))
                    n = 8 * th + 2 * pr
                    dep = last + ([store_of[(t - 2, th)]] if t >= 2 else [])
                    cvt_of[n >> 1] = item(f"v_cvt_pk_bf16_f32 {v(PK+8*(t&1)+4*th+pr)}, {v(TM+n)}, {v(TM+n+1)}", st0, dep)
                    cv.append(cvt_of[n >> 1])
                prev_store = store_of[(t, th)] = item(hstore(t, th), st0, cv + ([prev_store] if prev_store else []), cost=0, vm=True,
                                                      mark=t if th else None)

            if t == 1:
                for k in range(16):
                    item(f"v_accvgpr_read_b32 {v(TB[6]+k)}, {a(240+k)}", 0, [store_of[(0, 1)]], mark=("t6", k))

        def pstore(n, i):
            return lambda: P.vm(f"buffer_store_dwordx4 {v(PBUF[n]+4*i,4)}, {v(vL16)}, {srd(WS)}, {s(sPO[n])} offen offset:{1024*i} sc1", ("ps", n))

        def pload(n, i):
            def f():
                if i == 0 and n:
                    P(f"s_add_u32 {s(sPI)}, {s(sPI)}, {4 * MB}")
                P.vm(f"buffer_load_dwordx4 {v(PIN[n]+4*i,4)}, {v(vL16)}, {srd(WS)}, {s(sPI)} offen offset:{1024*i} sc1", ("pl", n))
            return f

        def send(n, first, gap):
            cvs = []
            for i in range(4):
                src = ACC[n][i >> 1] + 8 * (i & 1)
                cvs.append([item(f"v_cvt_pk_bf16_f32 {v(PBUF[n]+4*i+k)}, {v(src+2*k)}, {v(src+2*k+1)}", first[0],
                                 mark=("cv", n) if i == 3 and k == 3 else None) for k in range(4)])
            for i in range(4):
                item(pstore(n, i), first[1] + gap * i, cvs[i], cost=0, vm=True, mark=f"p{n}" if i == 3 else None)
        send(0, (p2s + 2, p2s + px[0][0]), px[0][1])
        send(1, (p2s + 2, p2s + px[1][0]), px[1][1])

        def kw_items(h):
            if "n" not in abl:
                for sx in range(4 * h, 4 * h + 4):
                    for m in range(2):
                        for e in range(2):
                            item((lambda sx=sx, m=m, e=e: self.kw_read(sx, m, e)), KW_AT[h] + 1, cost=5, mark=("kw", sx) if m and e else None)
        send(2, (pass_start[3] + 2, p2s + px[2][0]), px[2][1])
        prev = None
        for n in range(3):
            for i in range(4):
                prev = item(pload(n, i), polls[f"p{n}"][0] + 1 + px[n][3] * i, [prev] if prev else [], cost=0, vm=True, mark=("pli", n) if i == 3 else None)
        if o.setdefault("wqpre", 770):
            dep = chain(self.wq_l2_setup(A[6], A[7], T[0]), o["wqpre"] - 12)
            item(lambda: self.wq_l2(A[7], A[6], T[0]), o["wqpre"], [dep], cost=0, vm=True)
        kw_items(0)
        kw_items(1)
        acc_of = [item(unp(SUMP[k], PIN[0], k), PL_AT[0] + 1) for k in range(32)]
        tmp_of = {}
        for k in range(32):
            u = item(unp(104 + (k & 7), PIN[1], k), PL_AT[1] + 1, [tmp_of[k & 7]] if k & 7 in tmp_of else [])
            tmp_of[k & 7] = item(f"v_add_f32 {v(SUMP[k])}, {v(SUMP[k])}, {v(104+(k&7))}", PL_AT[1] + 1, [u, acc_of[k]])

        pending = {}
        done = {}

        def ready(x, i, pos):
            return x["first"] <= i and all(d["at"] is not None and d["at"] < pos for d in x["deps"])

        def emit(x, i, pos):
            x["at"] = pos
            items.remove(x)
            if callable(x["t"]):
                x["t"]()
            elif not ("g" in abl and i > 135):
                P(x["t"])
            if x["mark"] is not None:
                done[x["mark"]] = i
                if x["mark"] in arrivals:
                    pending[x["mark"]] = i

        def fill(i, pos, budget):
            g = pick_group(i)
            while budget >= 4:
                if g and g["d"][0][0]:
                    P(g["d"][0][0].pop(0))
                    g["set"] = pos
                    budget -= 4
                    continue
                cand = [x for x in items[:140] if not x["vm"] and x["cost"] <= budget and ready(x, i, pos)]
                if not cand:
                    break
                big = [x for x in cand[:40] if x["cost"] > 4]
                x = big[0] if big else cand[0]
                budget -= x["cost"] & ~3
                emit(x, i, pos)

        assert [c for c in bar_pub if bar_pub[c] == -1] in ([2], [2, 3])
        P.wait(vm=("X", 1), lg=("F", 29))
        self.xstamp("mlp first mfma")
        credit = 0.0
        for i, st in enumerate(steps):
            if i == mlp2_start:
                self.stamp(13)
            if i == pass_start[2]:
                self.stamp(14)
            if st.get("z") and i > 4:
                prev = [t for t in range(7) if TB[t] == st["blk"] and tile_end[t] < i]
                assert not prev or prev[-1] in done, ("accumulator reused before its epilogue", i)
            if "ex" in st:
                assert "st" in done
            if i == tile_end[5] + 1:
                assert all(("t6", k) in done for k in range(16))

            def mf(k):
                th = k ^ st.get("half", 0)
                d = v(st["acc"] + 8 * th, 4)
                if "f" in st:
                    assert ("F", st["f"]) not in P.lgq and st["x"] not in P.vmq
                    P(f"v_mfma_f32_16x16x32_bf16 {d}, {v(WF+4*(st['f']&7),4)}, {a(4*(st['xs']+th),4)}, {0 if st['z'] else d}")
                else:
                    P(f"v_mfma_f32_16x16x16_bf16 {d}, {v(EXA+2*st['ex'],2)}, {v(EXB+2*th,2)}, {d}")
            mf(0)
            if o.get("fine") and o["fine"][0] >= 0:
                f0, fs_ = o["fine"]
                if i >= f0 and (i - f0) % fs_ == 0 and (i - f0) // fs_ < 64:
                    P(f"s_memtime {s(sTM,2)}")
                if i >= f0 and (i - f0) % fs_ == fs_ - 1 and (i - f0) // fs_ < 64:
                    P(f"v_writelane_b32 {v(vSTAMP)}, {s(sTM)}, {(i - f0) // fs_}")
            b1 = o["b1"] if i < mlp2_start + o.get("boost", -30) or 6 in done else 8
            if "f" in st and st["f"] + DSL < 896:
                dsread(st["f"] + DSL)
            else:
                b1 += 4
            fill(i, 2 * i, b1)
            mf(1)
            b2 = o["b2"]
            nxt = steps[i + 1] if i + 1 < N else {}
            want_l = ("F", nxt["f"] + 1) if ("F", nxt.get("f")) in P.lgq and ("F", nxt["f"] + 1) in P.lgq else ("F", nxt.get("f"))
            want_v = [nxt.get("x")]
            assert not any(x["dl"] <= i for x in queues["x"] + queues["h"] + queues["e"] + groups + ([cur[0]] if cur[0] else [])), i
            if i in bar_at:
                want_v += [("C", c) for c in bar_pub if bar_pub[c] == i]
            if i == ST_AT:
                assert not queues["s"]
                want_v.append("st")
            if i in KW_AT:
                assert i == KW_AT[0] or ("cv", 2) in done
                want_v.append(("wkv", KW_AT.index(i)))
            if i in PL_AT[:2]:
                assert ("pli", PL_AT.index(i)) in done
                want_v.append(("pl", PL_AT.index(i)))
            P.wait(vm=[x for x in want_v if x], lg=want_l)
            if i in bar_at:
                if "b" not in abl:
                    P("s_barrier")
                continue
            for key, (chk, reg, imm, tgt) in polls.items():
                if i == chk - PG:
                    self.poll_issue(reg, imm)
                if i == chk:
                    assert key in done and key not in pending, (key, i)
                    self.poll_fast(reg, imm, tgt)
            rates = o.get("rates", [0.5, 0.42, 0.42, 0.46, 0.42])
            credit = min(credit + rates[(i > tile_end[1]) + (i >= mlp2_start) + (6 in done) + (i >= p2s)], 2.0)
            did_vm = False
            cand = [x for x in items if x["vm"] and ready(x, i, 2 * i + 1)]
            if cand:
                emit(cand[0], i, 2 * i + 1)
                did_vm = True
            else:
                cand = [q[0] for q in queues.values() if q and q[0]["av"] <= i]
                g = pick_group(i)
                if g and g["av"] <= i:
                    urgent = min([g["dl"]] + [x["dl"] - 8 for x in groups if x["av"] <= i])
                    if not g["d"][0][0] or urgent - i <= o["D"]:
                        cand.append(dict(dl=urgent, k="g"))
                if cand:
                    best = min(cand, key=lambda x: x["dl"])
                    if credit >= 1.0 or best["dl"] - i <= o["D"]:
                        if best["k"] == "g":
                            self.emit_dma(g["d"].pop(0))
                            if not g["d"]:
                                cur[0] = None
                        else:
                            queues[best["k"]].pop(0)
                            best["fn"]()
                        did_vm = True
            if did_vm:
                credit = max(credit - 1.0, -1.0)
                b2 -= o.get("vmcost", 8)
            for k in list(pending):
                tag, reg, imm, data = arrivals[k]
                if tag not in P.vmq or i - pending[k] >= o.get("arrw", 26):
                    P.wait(vm=tag)
                    self.arrive(reg, imm, data)
                    del pending[k]
                    arrived[k] = i
            fill(i, 2 * i + 1, b2)
        assert not pending and not any(queues.values()) and all(g["k"] == "n" for g in groups)
        self.left = (cur[0]["d"] if cur[0] else []) + [x for g in groups for x in g["d"]]
        self.info = dict(done={k: x for k, x in done.items() if not isinstance(k, tuple) or k[1] in (3, 7)}, tile_end=tile_end, rest=len(items), arrived=arrived,
                         mlp2_start=mlp2_start, passes=pass_start, N=N, left=len(self.left), polls={k: x[0] for k, x in polls.items()})
        P(f"s_add_u32 {s(T[7])}, {s(sLB)}, {LSTRIDE}")
        self.pub_offsets(XP, STX, T[7])
        for x in list(items):
            x["t"]() if callable(x["t"]) else P(x["t"])
        P.wait(lg=[("kw", sx) for sx in range(8)])
        self.stamp(15)
        P(f"s_mov_b32 {s(T[1])}, 0x00003f80")
        P(f"s_mov_b32 {s(T[2])}, 0x3f800000")
        for i in range(32):
            P(f"v_add_f32 {v(R+i)}, {v(R+i)}, {v(SUMP[i])}")
        P.wait(vm=("pl", 2))
        for i in range(32):
            P(f"v_dot2_f32_bf16 {v(R+i)}, {v(PIN[2]+(i>>1))}, {s(T[1+(i&1)])}, {v(R+i)}")
        self.pack_R()

    def build(self):
        P = self.P
        self.prologue()
        P("L_layer:")
        self.maybe_stop("p0")
        self.p1()
        self.maybe_stop("p1")
        self.p2()
        self.maybe_stop("p2")
        self.p3()
        self.maybe_stop("p3")
        self.mlp()
        P(f"s_cmp_lg_u32 {s(sL)}, 0")
        P("s_cbranch_scc1 L_out")
        self.stats_and_store(sPUB, sSTO)
        self.xstamp("x2 stores issued")
        nl = self.o.get("nleft", 8)
        for x in self.left[:nl]:
            self.emit_dma(x)
        P(f"s_mov_b32 {s(sL)}, 1")
        P(f"s_add_u32 {s(sLB)}, {s(sLB)}, {LSTRIDE}")
        P(f"s_add_u32 {s(sCO)}, {s(sCO)}, 4")
        P(f"s_add_u32 {s(sCT)}, {s(sCT)}, 4")
        mark = len(P.ins)
        self.p1_setup("b")
        setup = P.ins[mark:]
        del P.ins[mark:]
        n0 = self.o.get("nset", 60)
        P.ins += setup[:n0]
        self.xstamp("x2 setup done")
        P.wait(vm="pub")
        self.xstamp("x2 drained")
        self.arrive(sCO, 0)
        npl = max(nl, len(self.left) - self.o.get("npl", 4))
        for x in self.left[nl:npl]:
            self.emit_dma(x)
        self.poll_issue(sCO, 0)
        for x in self.left[npl:]:
            self.emit_dma(x)
        P.ins += setup[n0:]
        self.stamp(0)
        P("s_branch L_layer")
        self.pack_side()
        self.slow_polls()
        P("L_fallback:")
        self.fallback()
        P("s_branch L_att_fin")
        P("L_out:")
        self.row_offsets()
        for t in self.rowswap_list(PK, 4):
            P(t)
        for i in range(4):
            P(f"buffer_store_dwordx4 {v(PK+4*i,4)}, {v(vROW)}, {srd(OUT)}, {s((sPUB,sSTO)[i&1])} offen offset:{64*(i>>1)}" + self.o.get("outfl", " sc1"))
        P("L_fin:")
        if self.stamps:
            P(f"s_mov_b32 {s(sL)}, 2")
            P("s_waitcnt vmcnt(0)")
            self.stamp(0)
            P(f"s_lshl2_add_u32 {s(T[0])}, s2, {s(sW)}")
            P(f"s_lshl_b32 {s(T[0])}, {s(T[0])}, 8")
            P(f"s_add_u32 {s(T[0])}, {s(T[0])}, {STAMP}")
            P(f"buffer_store_dword {v(vSTAMP)}, {v(vL4)}, {srd(WS)}, {s(T[0])} offen")
            if self.o.get("probe") is not None:
                lane, thr, thr2 = self.o["probe"]
                P(f"s_lshl2_add_u32 {s(T[0])}, s2, {s(sW)}")
                P(f"s_cmp_lg_u32 {s(T[0])}, 0")
                P("s_cbranch_scc1 L_end")
                P(f"v_readlane_b32 {s(T[1])}, {v(vSTAMP)}, 0")
                P(f"v_readlane_b32 {s(T[2])}, {v(vSTAMP)}, {lane}")
                P(f"s_sub_u32 {s(T[2])}, {s(T[2])}, {s(T[1])}")
                P(f"s_cmp_lt_u32 {s(T[2])}, {thr}")
                P("s_cbranch_scc1 L_end")
                P(f"s_cmp_gt_u32 {s(T[2])}, {thr2}")
                P("s_cbranch_scc1 L_end")
                P(f"v_mov_b32 {v(A[1])}, 0")
                for n, ln in enumerate([1, 3, 6, 7, 13, 15, 23, 32]):
                    P(f"v_readlane_b32 {s(T[3])}, {v(vSTAMP)}, {ln}")
                    P(f"s_sub_u32 {s(T[3])}, {s(T[3])}, {s(T[1])}")
                    P(f"v_cvt_f32_u32 {v(A[2])}, {s(T[3])}")
                    P(f"buffer_store_short_d16_hi {v(A[2])}, {v(A[1])}, {srd(OUT)}, 0 offen offset:{2*n}")
            if self.o.get("dbgstamp") is not None:
                sel = [1, 3, 4, 6, 7, 10, 13, 15, 20, 22, 23, 26, 29, 31, 32]
                P(f"s_lshl2_add_u32 {s(T[0])}, s2, {s(sW)}")
                P(f"s_cmp_lg_u32 {s(T[0])}, {self.o['dbgstamp']}")
                P("s_cbranch_scc1 L_end")
                P(f"v_readlane_b32 {s(T[1])}, {v(vSTAMP)}, 0")
                P(f"v_mov_b32 {v(A[1])}, 0")
                for n, lane in enumerate(sel):
                    P(f"v_readlane_b32 {s(T[2])}, {v(vSTAMP)}, {lane}")
                    P(f"s_sub_u32 {s(T[2])}, {s(T[2])}, {s(T[1])}")
                    P(f"v_mov_b32 {v(A[2])}, {s(T[2])}")
                    P(f"buffer_store_dword {v(A[2])}, {v(A[1])}, {srd(DBG)}, 0 offen offset:{4+4*n}")
        if self.stop and len(self.stop) > 2:
            P(f"s_lshl2_add_u32 {s(T[0])}, s2, {s(sW)}")
            P(f"s_lshl_b32 {s(T[0])}, {s(T[0])}, 12")
            for i in range(4):
                P(f"buffer_store_dwordx4 {v(self.stop[2]+4*i,4)}, {v(vL16)}, {srd(OUT)}, {s(T[0])} offen offset:{1024*i}")
        P("L_end:")
        P("s_endpgm")
        body, nops = P.finish()
        self.nops = nops
        ref = open(REF).read().split("\n")
        head = [x for x in ref if x.startswith(";") and "@launch" not in x and "Override" not in x and "grid=ceil" not in x]
        txt = "\n".join(head) + "\n; @launch grid=(256,1,1) block=(256,1,1) lds=163840\n"
        txt += f""".amdgcn_target "amdgcn-amd-amdhsa--gfx950"
.text
.globl {NAME}
.p2align 8
.type {NAME},@function
{NAME}:
{body}.section .rodata,"a"
.p2align 6
.amdhsa_kernel {NAME}
  .amdhsa_next_free_vgpr 512
  .amdhsa_next_free_sgpr 102
  .amdhsa_accum_offset 256
  .amdhsa_group_segment_fixed_size 0
  .amdhsa_kernarg_size 104
  .amdhsa_user_sgpr_count 2
  .amdhsa_user_sgpr_kernarg_segment_ptr 1
  .amdhsa_system_sgpr_workgroup_id_x 1
.end_amdhsa_kernel
"""
        return txt


if __name__ == "__main__":
    import json
    g = Gen(**(json.loads(sys.argv[2]) if len(sys.argv) > 2 else {}))
    txt = g.build()
    out = sys.argv[1] if len(sys.argv) > 1 else "k.s"
    open(out, "w").write(txt)
    print("nops", g.nops, "bytes", len(txt), g.info)
```

```python
import math, struct, sys
from dsl import Prog, v, a, s

NAME = "interleave_layers__grouped_kv_mqa__mixer_channel_mlp__prompt_kernel"
REF = "interleave_layers__grouped_kv_mqa__mixer_channel_mlp__prompt.s.ref"

MB = 1 << 20
CTR = 0
CTR_BYTES = 36864
CT_TEAM = 32768
CT_REP = 32768 + 2048
CS = 0x10000
STAMP = 0x40000
WP = 1 * MB
LAYER0 = 16 * MB
LSTRIDE = 48 * MB
XP = 0
OP = 4 * MB
X1P = 8 * MB
PART = 12 * MB
HP = 28 * MB
KV = 44 * MB
STX = 45 * MB
ST1 = 46 * MB
WS_BYTES = 256 * MB
OOB = 0x40000000

RING = 131072
KVR = RING + 16384
CSQ = RING + 25600

WS, X0, WQ, WKV, WO, PKS, B1, B2, OUT, DBG, CODE = 4, 8, 12, 16, 20, 24, 28, 32, 36, 40, 44
sW, sTAU, sJJ, sKH, sJ, sFS, sTT, sL, sLB, sPD, sTO, sCO = range(48, 60)
T = list(range(60, 68))
ARR = 68
sTRIP, sXK, sDS, sDL, sSA, sSB, sKS, sCT, sONE, sPUB, sSTO, sCSO, sW4K, sPD2 = range(84, 98)
sTM = 98
sROT = 3

vLANE, vL16, vL4, vTR, vROW, vDS2K, vSTAMP, vTMP = range(8)
A = list(range(8, 16))
R = 16
PK = 48
EXA, EXQ = 192, 96


def f32(x):
    return "0x%08x" % struct.unpack("<I", struct.pack("<f", x))[0]


def srd(n):
    return s(n, 4)


class Gen:
    def __init__(self, stop=None, stamps=False, force_fallback=False, **kw):
        self.P = Prog()
        self.stop = stop
        self.slow = []
        self.xnames = []
        self.stamps = stamps
        self.force_fallback = force_fallback
        self.o = dict(LA=10, LO=12, rate=0.42, D=22, DSL=5, npre=9, BG=2, b1=4, b2=8, vmcost=4, span=2)
        self.o.update(kw)

    def stamp(self, i):
        if not self.stamps or self.o.get("fine"):
            return
        P = self.P
        P(f"{'s_memtime' if self.stamps == 2 else 's_memrealtime'} {s(sTM,2)}")
        P(f"s_mov_b32 {s(sTM+3)}, m0")
        P(f"s_lshl_b32 {s(sTM+2)}, {s(sL)}, 4")
        P(f"s_add_u32 m0, {s(sTM+2)}, {i}")
        P.wait_all(vm=False)
        P(f"v_writelane_b32 {v(vSTAMP)}, {s(sTM)}, m0")
        P(f"s_mov_b32 m0, {s(sTM+3)}")

    def xstamp(self, name):
        if not self.stamps or not self.o.get("xs"):
            return
        P = self.P
        lane = 33 + len(self.xnames)
        self.xnames.append(name)
        skip = P.newlabel("xs")
        if self.o.get("xl0"):
            P(f"s_cmp_lg_u32 {s(sL)}, 0")
            P(f"s_cbranch_scc1 {skip}")
        P(f"s_memrealtime {s(sTM,2)}")
        P("s_waitcnt lgkmcnt(0)")
        P(f"v_writelane_b32 {v(vSTAMP)}, {s(sTM)}, {lane}")
        P(f"{skip}:")

    def maybe_stop(self, name):
        if self.stop and self.stop[0] == name:
            self.P(f"s_cmp_eq_u32 {s(sL)}, {self.stop[1]}")
            self.P("s_cbranch_scc1 L_fin")

    def arrive(self, off_sgpr, imm, data=sONE):
        self.P(f"s_atomic_add {s(data)}, {s(WS,2)}, {s(off_sgpr)} offset:{imm}")

    def arrive_wait(self, off_sgpr, imm, target, between=None):
        P = self.P
        P(f"s_mov_b32 {s(sPD)}, 1")
        P(f"s_atomic_add {s(sPD)}, {s(WS,2)}, {s(off_sgpr)} offset:{imm} glc")
        if between:
            between()
        P.wait_all(vm=False)
        P(f"s_add_u32 {s(sPD)}, {s(sPD)}, 1")
        if between:
            P(f"s_max_u32 {s(sPD)}, {s(sPD)}, {s(sPD2)}")
        self.poll_check(off_sgpr, imm, target)

    def poll_issue(self, off_sgpr, imm, dst=sPD):
        self.P(f"s_mov_b32 {s(dst)}, 0")
        self.P(f"s_atomic_add {s(dst)}, {s(WS,2)}, {s(off_sgpr)} offset:{imm} glc")

    def poll_check(self, off_sgpr, imm, target, dst=sPD):
        P = self.P
        top, done = P.newlabel("poll"), P.newlabel("polled")
        P(f"s_mov_b32 {s(sTO)}, 0")
        P(f"{top}:")
        P.wait_all(vm=False)
        P(f"s_bitcmp1_b32 {s(dst)}, {target[1]}" if isinstance(target, tuple) else f"s_cmp_ge_u32 {s(dst)}, {target}")
        P(f"s_cbranch_scc1 {done}")
        P(f"s_add_u32 {s(sTO)}, {s(sTO)}, 1")
        P(f"s_cmp_ge_u32 {s(sTO)}, 0x20000")
        P(f"s_cbranch_scc1 {done}")
        self.poll_issue(off_sgpr, imm, dst)
        P(f"s_branch {top}")
        P(f"{done}:")

    def poll_fast(self, off_sgpr, imm, target, dst=sPD):
        P = self.P
        slow, back = P.newlabel("slow"), P.newlabel("back")
        P(f"s_bitcmp0_b32 {s(dst)}, {target[1]}" if isinstance(target, tuple) else f"s_cmp_lt_u32 {s(dst)}, {target}")
        P(f"s_cbranch_scc1 {slow}")
        P(f"{back}:")
        self.slow.append((slow, back, lambda: self.poll_check(off_sgpr, imm, target, dst)))

    def slow_polls(self):
        P = self.P
        for slow, back, fn in self.slow:
            P(f"{slow}:")
            fn()
            P(f"s_branch {back}")

    def two_level_issue(self, word):
        P = self.P
        skip = P.newlabel("tl")
        P(f"s_mov_b32 {s(sPD2)}, 1")
        P(f"s_cmp_lg_u32 {s(sW)}, 0")
        P(f"s_cbranch_scc1 {skip}")
        P(f"s_atomic_add {s(sPD2)}, {s(WS,2)}, {s(sCT)} offset:{CT_TEAM + word} glc")
        P(f"{skip}:")

    def two_level_finish(self, word, got=sPD2):
        P = self.P
        skip = P.newlabel("tl")
        P.wait_all(vm=False)
        P(f"s_cmp_lg_u32 {s(got)}, 15")
        P(f"s_cbranch_scc1 {skip}")
        P(f"s_lshl2_add_u32 {s(T[7])}, {s(sL)}, {CT_REP + word}")
        P(f"v_lshrrev_b32 {v(126)}, 4, {v(vLANE)}")
        P(f"v_lshlrev_b32 {v(125)}, 7, {v(vLANE)}")
        P(f"v_lshl_or_b32 {v(125)}, {v(126)}, 29, {v(125)}")
        P(f"v_mov_b32 {v(126)}, 1")
        P(f"buffer_atomic_add {v(126)}, {v(125)}, {srd(WS)}, {s(T[7])} offen sc1")
        P(f"{skip}:")

    def stats_and_store(self, so_pk, so_st):
        P = self.P
        for i in range(4):
            P.vm(f"buffer_store_dwordx4 {v(PK+4*i,4)}, {v(vL16)}, {srd(WS)}, {s(so_pk)} offen offset:{1024*i} sc1", "pub")
        t0 = 108
        P(f"s_mov_b32 {s(T[6])}, 0x3f803f80")
        P(f"v_and_b32 {v(t0-1)}, 0xf0, {v(vL16)}")
        P(f"v_lshrrev_b32 {v(t0-2)}, 4, {v(vLANE)}")
        P(f"v_lshl_or_b32 {v(t0-1)}, {v(t0-2)}, 2, {v(t0-1)}")
        for k in range(8):
            for th in range(2):
                r = PK + 8 * (k >> 2) + 4 * th + (k & 3)
                P(f"v_dot2_f32_bf16 {v(t0+th)}, {v(r)}, {s(T[6])}, {v(t0+th) if k else 0}")
                P(f"v_dot2_f32_bf16 {v(t0+2+th)}, {v(r)}, {v(r)}, {v(t0+2+th) if k else 0}")
        for th in range(2):
            P(f"v_permlane32_swap_b32 {v(t0+th)}, {v(t0+2+th)}")
        for th in range(2):
            P(f"v_add_f32 {v(t0+th)}, {v(t0+th)}, {v(t0+2+th)}")
        P(f"v_permlane16_swap_b32 {v(t0)}, {v(t0+1)}")
        P(f"v_add_f32 {v(t0)}, {v(t0)}, {v(t0+1)}")
        P.vm(f"buffer_store_dword {v(t0)}, {v(t0-1)}, {srd(WS)}, {s(so_st)} offen sc1", "pub")

    def rowswap_list(self, base, nfrag):
        return [f"v_permlane16_swap_b32 {v(base+4*i+k)}, {v(base+4*i+2+k)}" for i in range(nfrag) for k in range(2)]

    def split_list(self, r0, r1):
        return [f"v_mov_b32 {v(r1)}, {v(r0)}", f"v_permlane16_swap_b32 {v(r0)}, {v(r1)}"]

    def gather4(self, c):
        P = self.P
        P(f"v_permlane16_swap_b32 {v(c[0])}, {v(c[1])}")
        P(f"v_permlane16_swap_b32 {v(c[2])}, {v(c[3])}")
        P(f"v_permlane32_swap_b32 {v(c[0])}, {v(c[2])}")

    def unpack_list(self, dst, src, n):
        out = []
        for i in range(n):
            out.append(f"v_lshlrev_b32 {v(dst+2*i)}, 16, {v(src+i)}")
            out.append(f"v_and_b32 {v(dst+2*i+1)}, 0xffff0000, {v(src+i)}")
        return out

    def pack_R(self):
        for i in range(16):
            self.P(f"v_cvt_pk_bf16_f32 {v(PK+i)}, {v(R+2*i)}, {v(R+2*i+1)}")

    def pub_offsets(self, xbuf, stbuf, lb=sLB):
        P = self.P
        P(f"s_lshl_b32 {s(sPUB)}, {s(sTT)}, 16")
        P(f"s_lshl_b32 {s(T[0])}, {s(sFS)}, 12")
        P(f"s_add_u32 {s(sPUB)}, {s(sPUB)}, {s(T[0])}")
        P(f"s_lshr_b32 {s(sSTO)}, {s(sPUB)}, 4")
        P(f"s_add_u32 {s(sPUB)}, {s(sPUB)}, {s(lb)}")
        P(f"s_add_u32 {s(sSTO)}, {s(sSTO)}, {s(lb)}")
        if xbuf:
            P(f"s_add_u32 {s(sPUB)}, {s(sPUB)}, {xbuf}")
        if stbuf is not None:
            P(f"s_add_u32 {s(sSTO)}, {s(sSTO)}, {stbuf}")

    def stat_load(self, st, so, i, tag):
        self.P.vm(f"buffer_load_dwordx4 {v(st+4*i,4)}, {v(vL16)}, {srd(WS)}, {s(so)} offen offset:{1024*i} sc1", tag)

    def stat_sum_list(self, st):
        o = []
        for step in (8, 4):
            for i in range(step):
                o.append(f"v_add_f32 {v(st+i)}, {v(st+i)}, {v(st+i+step)}")
        o.append(f"v_permlane32_swap_b32 {v(st)}, {v(st+2)}")
        o.append(f"v_permlane32_swap_b32 {v(st+1)}, {v(st+3)}")
        o.append(f"v_add_f32 {v(st)}, {v(st)}, {v(st+2)}")
        o.append(f"v_add_f32 {v(st+1)}, {v(st+1)}, {v(st+3)}")
        o.append(f"v_permlane16_swap_b32 {v(st)}, {v(st+1)}")
        o.append(f"v_add_f32 {v(st)}, {v(st)}, {v(st+1)}")
        o.append(f"v_mul_f32 {v(st)}, {f32(1/1024)}, {v(st)}")
        o.append(f"v_mov_b32 {v(st+1)}, {v(st)}")
        o.append(f"v_permlane32_swap_b32 {v(st)}, {v(st+1)}")
        o.append(f"v_fma_f32 {v(st+1)}, -{v(st)}, {v(st)}, {v(st+1)}")
        o.append(f"v_max_f32 {v(st+1)}, 0, {v(st+1)}")
        return o

    def stat_frag_list(self, ex, mean, sd, tmp):
        o = []
        if sd is not None:
            o.append(f"v_cvt_pk_bf16_f32 {v(tmp)}, 0, {v(sd)}")
            o.append(f"v_sub_f32 {v(tmp+1)}, {v(sd)}, {v(tmp)}")
            o.append(f"v_permlane32_swap_b32 {v(tmp)}, {v(tmp+1)}")
        o.append(f"v_cvt_pk_bf16_f32 {v(ex+1)}, -{v(mean)}, {v(tmp) if sd is not None else 0}")
        o.append(f"v_lshlrev_b32 {v(tmp)}, 16, {v(ex+1)}")
        o.append(f"v_add_f32 {v(tmp)}, {v(tmp)}, {v(mean)}")
        o.append(f"v_cvt_pk_bf16_f32 {v(ex)}, -{v(mean)}, -{v(tmp)}")
        o += self.split_list(ex + 1, ex + 3)
        o += self.split_list(ex, ex + 2)
        return o

    def cs_frag_list(self, ex, cs, b, tmp):
        return [f"v_cvt_pk_bf16_f32 {v(ex)}, {v(cs)}, {v(cs)}",
                f"v_and_b32 {v(tmp)}, 0xffff0000, {v(ex)}",
                f"v_sub_f32 {v(tmp)}, {v(cs)}, {v(tmp)}",
                f"v_cvt_pk_bf16_f32 {v(ex+1)}, {v(tmp)}, {v(b) if b is not None else 0}"]

    def wq_setup(self):
        P = self.P
        P(f"s_lshl_b32 {s(sSA)}, {s(sW)}, 16")
        P(f"s_lshl_b32 {s(T[0])}, {s(sFS)}, 7")
        P(f"s_add_u32 {s(sSA)}, {s(sSA)}, {s(T[0])}")

    def wq_slot(self, e, rot, i0=0, i1=4, tag="wq"):
        P = self.P
        if i0 == 0:
            if rot:
                P(f"s_add_u32 {s(sDL)}, {s(sTAU)}, {e & 3}")
                P(f"s_and_b32 {s(sDL)}, {s(sDL)}, 3")
                if e & 4:
                    P(f"s_or_b32 {s(sDL)}, {s(sDL)}, 4")
                P(f"s_add_u32 {s(sDS)}, {s(sDL)}, {s(sROT)}")
                P(f"s_lshl_b32 {s(sDL)}, {s(sDL)}, 14")
                P(f"s_add_u32 {s(sDL)}, {s(sDL)}, {s(sW4K)}")
            else:
                P(f"s_add_u32 {s(sDS)}, {s(sROT)}, {e}")
                P(f"s_add_u32 {s(sDL)}, {s(sW4K)}, {e * 16384}")
            P(f"s_and_b32 {s(sDS)}, {s(sDS)}, 7")
            P(f"s_lshl_b32 {s(sDS)}, {s(sDS)}, 18")
            P(f"s_add_u32 {s(sDS)}, {s(sDS)}, {s(sSA)}")
        for i in range(i0, i1):
            if i == i0:
                P(f"s_mov_b32 m0, {s(sDL)}")
            if i:
                P(f"s_add_u32 {s(sDS)}, {s(sDS)}, {16384 - 1024}")
            P.vm(f"buffer_load_dwordx4 {v(vDS2K)}, {srd(WQ)}, {s(sDS)} offen offset:{1024*i} lds", tag)

    def wq_l2_setup(self, va, vt, so):
        l = v(vLANE)
        return [f"v_lshlrev_b32 {v(va)}, 10, {l}", f"v_lshrrev_b32 {v(vt)}, 4, {l}", f"v_lshl_or_b32 {v(va)}, {v(vt)}, 28, {v(va)}",
                f"s_lshr_b32 {s(so)}, s2, 3", f"s_lshl2_add_u32 {s(so)}, {s(so)}, {s(sW)}", f"s_lshl_b32 {s(so)}, {s(so)}, 14",
                f"s_andn2_b32 {s(so+1)}, 8, {s(sJ)}", f"s_lshl_b32 {s(so+1)}, {s(so+1)}, 27", f"s_or_b32 {s(so)}, {s(so)}, {s(so+1)}"]

    def wq_l2(self, dst, va, so):
        self.P.vm(f"buffer_load_dword {v(dst)}, {v(va)}, {srd(WQ)}, {s(so)} offen offset:384", "pre")

    def wp_l2_setup(self, va, so):
        return [f"v_lshlrev_b32 {v(va)}, 7, {v(vLANE)}", f"s_and_b32 {s(so)}, {s(sTT)}, 15", f"s_mul_i32 {s(so+1)}, {s(sJ)}, 112",
                f"s_add_u32 {s(so)}, {s(so)}, {s(so+1)}", f"s_lshl_b32 {s(so)}, {s(so)}, 13", f"s_add_u32 {s(so)}, {s(so)}, {WP}"]

    def code_warm(self, ahead):
        P = self.P
        P("s_getpc_b64 s[0:1]")
        if ahead is None:
            here = P.newlabel("cw")
            P(f"{here}:")
            P(f"s_add_u32 s0, s0, L_end-16384-{here}")
            P("s_addc_u32 s1, s1, 0")
        P(f"s_load_dword {s(ARR+15)}, s[0:1], {s(DBG+2)} offset:{ahead or 0}")

    def grp_wq(self, e, rot=False):
        if rot:
            pre = [f"s_add_u32 {s(sDL)}, {s(sTAU)}, {e}", f"s_and_b32 {s(sDL)}, {s(sDL)}, 3", f"s_add_u32 {s(sDS)}, {s(sDL)}, {s(sROT)}",
                   f"s_lshl_b32 {s(sDL)}, {s(sDL)}, 14", f"s_add_u32 m0, {s(sDL)}, {s(sW4K)}", f"s_and_b32 {s(sDS)}, {s(sDS)}, 7",
                   f"s_lshl_b32 {s(sDS)}, {s(sDS)}, 18", f"s_add_u32 {s(sDS)}, {s(sDS)}, {s(sSA)}"]
        pre = pre if rot else [f"s_add_u32 {s(sDS)}, {s(sROT)}, {e}", f"s_and_b32 {s(sDS)}, {s(sDS)}, 7", f"s_lshl_b32 {s(sDS)}, {s(sDS)}, 18",
               f"s_add_u32 {s(sDS)}, {s(sDS)}, {s(sSA)}", f"s_add_u32 m0, {s(sW4K)}, {e * 16384}"]
        nxt = [f"s_add_u32 {s(sDS)}, {s(sDS)}, {16384 - 1024}"]
        return [(list(nxt if i else pre), f"buffer_load_dwordx4 {v(vDS2K)}, {srd(WQ)}, {s(sDS)} offen offset:{1024*i} lds", "wq") for i in range(4)]

    def grp_wkv(self, g):
        pre = [f"s_lshl2_add_u32 {s(sDS)}, {s(sW4K)}, {g * 4096}", f"s_add_u32 m0, {s(sW4K)}, {g * 16384}"]
        return [([] if i else pre, f"buffer_load_dwordx4 {v(vL16)}, {srd(WKV)}, {s(sDS)} offen offset:{1024*i} lds", ("wkv", g >> 1)) for i in range(4)]

    def grp_wp(self, c):
        pre = [f"s_add_u32 m0, {s(sW4K)}, {self.slot_of(c)*16384}", f"s_add_u32 {s(sKS)}, {s(sCSO)}, {c*16384}"]
        return [([] if i else pre, f"buffer_load_dwordx4 {v(vL16)}, {srd(WS)}, {s(sKS)} offen offset:{1024*i} sc1 lds", ("C", c)) for i in range(4)]

    def emit_dma(self, x):
        for t in x[0]:
            self.P(t)
        self.P.vm(x[1], x[2])

    def wkv_slot(self, g, rot, i0=0, i1=4):
        P = self.P
        if i0 == 0:
            if rot:
                P(f"s_add_u32 {s(sDL)}, {s(sTAU)}, {g}")
                P(f"s_and_b32 {s(sDL)}, {s(sDL)}, 3")
                P(f"s_lshl_b32 {s(sDL)}, {s(sDL)}, 12")
                P(f"s_lshl2_add_u32 {s(sDS)}, {s(sW4K)}, {s(sDL)}")
                P(f"s_lshl2_add_u32 {s(sDL)}, {s(sDL)}, {s(sW4K)}")
            else:
                P(f"s_lshl2_add_u32 {s(sDS)}, {s(sW4K)}, {g * 4096}")
                P(f"s_add_u32 {s(sDL)}, {s(sW4K)}, {g * 16384}")
        for i in range(i0, i1):
            if i == i0:
                P(f"s_mov_b32 m0, {s(sDL)}")
            P.vm(f"buffer_load_dwordx4 {v(vL16)}, {srd(WKV)}, {s(sDS)} offen offset:{1024*i} lds", "wkv")

    def prologue(self):
        P = self.P
        P("s_cmp_ge_u32 s2, 256")
        P("s_cbranch_scc1 L_end")
        if self.stamps and self.o.get("xs"):
            P(f"s_memrealtime {s(sDS,2)}")
        P(f"s_load_dwordx2 {s(X0,2)}, s[0:1], 0")
        P(f"s_load_dwordx2 {s(WS,2)}, s[0:1], 96")
        P(f"s_load_dwordx2 {s(DBG,2)}, s[0:1], 88")
        P(f"s_load_dwordx16 {s(ARR,16)}, s[0:1], 0")
        P(f"s_load_dwordx8 {s(T[0],8)}, s[0:1], 64")
        P(f"s_getpc_b64 {s(CODE,2)}")
        P("L_pc:")
        P(f"s_mov_b32 {s(CODE+2)}, L_end-L_pc")
        P(f"s_mov_b32 {s(CODE+3)}, 0x00020000")
        P(f"s_lshr_b32 {s(sTO)}, s2, 3")
        P(f"s_mul_i32 {s(sTO)}, {s(sTO)}, 3072")
        P(f"v_mul_u32_u24 {v(vL4)}, 12, v0")
        P.vm(f"buffer_load_dwordx3 {v(72,3)}, {v(vL4)}, {srd(CODE)}, {s(sTO)} offen", "code")
        P(f"v_lshrrev_b32 {v(vTMP)}, 6, v0")
        P(f"v_and_b32 {v(vLANE)}, 63, v0")
        P(f"v_readfirstlane_b32 {s(sW)}, {v(vTMP)}")
        for reg, n in ((WS, WS_BYTES), (X0, 4 * MB)):
            P(f"s_mov_b32 {s(reg+2)}, {n}")
            P(f"s_mov_b32 {s(reg+3)}, 0x00020000")
        sp = self.o["span"]
        if sp == 2:
            P(f"s_and_b32 {s(sKH)}, s2, 1")
            P(f"s_bfe_u32 {s(sJJ)}, s2, 0x30003")
            P(f"s_bfe_u32 {s(sTAU)}, s2, 0x20001")
            P(f"s_lshl_b32 {s(sTAU)}, {s(sTAU)}, 2")
            P(f"s_lshr_b32 {s(sJ)}, s2, 6")
            P(f"s_add_u32 {s(sTAU)}, {s(sTAU)}, {s(sJ)}")
        elif sp == 4:
            P(f"s_bfe_u32 {s(sKH)}, s2, 0x10001")
            P(f"s_bfe_u32 {s(sJJ)}, s2, 0x20003")
            P(f"s_and_b32 {s(sJ)}, s2, 1")
            P(f"s_lshl2_add_u32 {s(sJJ)}, {s(sJ)}, {s(sJJ)}")
            P(f"s_bfe_u32 {s(sTAU)}, s2, 0x10002")
            P(f"s_lshr_b32 {s(sJ)}, s2, 5")
            P(f"s_lshl3_add_u32 {s(sTAU)}, {s(sTAU)}, {s(sJ)}")
        else:
            P(f"s_bfe_u32 {s(sKH)}, s2, 0x10006")
            P(f"s_bfe_u32 {s(sJJ)}, s2, 0x30003")
            P(f"s_and_b32 {s(sTAU)}, s2, 7")
            P(f"s_lshl_b32 {s(sTAU)}, {s(sTAU)}, 1")
            P(f"s_lshr_b32 {s(sJ)}, s2, 7")
            P(f"s_add_u32 {s(sTAU)}, {s(sTAU)}, {s(sJ)}")
        P(f"s_lshl3_add_u32 {s(sJ)}, {s(sKH)}, {s(sJJ)}")
        P(f"s_and_b32 {s(sFS)}, {s(sJ)}, 3")
        P(f"s_lshr_b32 {s(sJJ)}, {s(sJJ)}, 2")
        P(f"s_lshl1_add_u32 {s(sJJ)}, {s(sFS)}, {s(sJJ)}")
        P(f"s_and_b32 {s(sROT)}, {s(sJJ)}, {self.o.get('rot', 1)}")
        if self.o.get("kvmap", 1):
            P(f"s_lshr_b32 {s(sJJ)}, {s(sJ)}, 1")
            P(f"s_and_b32 {s(sKH)}, {s(sJ)}, 1")
        P(f"s_lshr_b32 {s(sTT)}, {s(sJ)}, 2")
        P(f"s_lshl2_add_u32 {s(sFS)}, {s(sFS)}, {s(sTT)}")
        P(f"s_lshl2_add_u32 {s(sTT)}, {s(sTAU)}, {s(sW)}")
        P(f"s_mov_b32 {s(sL)}, 0")
        P(f"s_mov_b32 {s(sLB)}, {LAYER0}")
        P(f"s_mov_b32 {s(sONE)}, 1")
        P(f"s_lshl_b32 {s(sCO)}, {s(sTT)}, 9")
        P(f"s_lshl_b32 {s(sCT)}, {s(sTAU)}, 7")
        P(f"s_lshl_b32 {s(sW4K)}, {s(sW)}, 12")
        P(f"v_lshlrev_b32 {v(vL16)}, 4, {v(vLANE)}")
        P(f"v_lshlrev_b32 {v(vL4)}, 2, {v(vLANE)}")
        P(f"v_mov_b32 {v(vSTAMP)}, 0")
        l = v(vLANE)
        P(f"v_and_b32 {v(vROW)}, 15, {l}")
        P(f"v_lshlrev_b32 {v(vROW)}, 11, {v(vROW)}")
        P(f"v_bfe_u32 {v(vTMP)}, {l}, 4, 1")
        P(f"v_lshl_or_b32 {v(vROW)}, {v(vTMP)}, 5, {v(vROW)}")
        P(f"v_lshrrev_b32 {v(vTMP)}, 5, {l}")
        P(f"v_lshl_or_b32 {v(vROW)}, {v(vTMP)}, 4, {v(vROW)}")
        self.row_offsets()
        P(f"s_lshl2_add_u32 {s(sPD)}, s2, {s(sW)}")
        P.wait_all(vm=False)
        self.stamp(0)
        if self.stamps and self.o.get("xs"):
            P(f"v_writelane_b32 {v(vSTAMP)}, {s(sDS)}, 33")
            self.xnames.append("entry")
        P(f"s_cmp_lg_u32 {s(sJ)}, 0")
        P("s_cbranch_scc1 L_nozero2")
        for i in range(4):
            P(f"v_mov_b32 {v(64+i)}, 0")
        P(f"v_cmp_gt_u32 vcc, 24, {l}")
        P(f"v_mov_b32 {v(A[3])}, {OOB}")
        P(f"v_lshlrev_b32 {v(A[1])}, 9, {l}")
        P(f"v_cndmask_b32 {v(A[3])}, {v(A[3])}, {v(vL16)}, vcc")
        P(f"buffer_store_dwordx4 {v(64,4)}, {v(A[3])}, {srd(WS)}, {s(sCO)} offen offset:128 sc1")
        P(f"s_cmp_lg_u32 {s(sPD)}, 0")
        P("s_cbranch_scc1 L_nozero2")
        P(f"v_lshlrev_b32 {v(A[2])}, 7, {l}")
        P(f"v_lshl_or_b32 {v(A[2])}, {v(vTMP)}, 30, {v(A[2])}")
        P(f"s_load_dword {s(sTO)}, {s(DBG,2)}, 128")
        P(f"s_mov_b32 {s(sKS)}, {CT_TEAM}")
        P(f"buffer_store_dwordx4 {v(64,4)}, {v(A[1])}, {srd(WS)}, 0 offen sc1")
        P(f"buffer_store_dwordx4 {v(64,4)}, {v(A[1])}, {srd(WS)}, 0 offen offset:16 sc1")
        P(f"buffer_store_dwordx4 {v(64,4)}, {v(A[2])}, {srd(WS)}, {s(sKS)} offen sc1")
        P("L_nozero2:")
        for i in range(4):
            P.vm(f"buffer_load_dwordx4 {v(PK+4*i,4)}, {v(vROW)}, {srd(X0)}, {s((sPUB,sSTO)[i&1])} offen offset:{64*(i>>1)}", "x0")
        P(f"s_cmp_eq_u32 {s(sKH)}, 0")
        P(f"s_cselect_b64 {s(WKV,2)}, {s(ARR+4,2)}, {s(ARR+6,2)}")
        P("s_cmp_lt_u32 s2, 112")
        P(f"s_cselect_b64 {s(PKS,2)}, {s(ARR+12,2)}, {s(T[0],2)}")
        for reg, src in ((WQ, ARR + 2), (WO, ARR + 8), (B1, ARR + 14), (B2, T[2]), (OUT, T[4])):
            P(f"s_mov_b64 {s(reg,2)}, {s(src,2)}")
        for reg, n in ((WQ, 2 * MB), (WKV, 65536), (WO, 2 * MB), (PKS, 7 * MB), (B1, 7168), (B2, 2048), (OUT, 4 * MB), (DBG, 256)):
            P(f"s_mov_b32 {s(reg+2)}, {n}")
            P(f"s_mov_b32 {s(reg+3)}, 0x00020000")
        P("s_barrier")
        P(f"s_cmp_lg_u32 {s(sPD)}, 0")
        P("s_cbranch_scc1 L_noflag")
        P("s_waitcnt vmcnt(4) lgkmcnt(0)")
        P(f"s_atomic_add {s(sONE)}, {s(DBG,2)}, 0")
        P("L_noflag:")
        if self.o.get("l2pre", 1) == 1:
            for t in self.wq_l2_setup(A[2], A[3], T[0]):
                P(t)
            self.wq_l2(76, A[2], T[0])
        if self.o.get("mpre", 1):
            P(f"v_lshrrev_b32 {v(A[3])}, 4, {l}")
            P(f"v_lshlrev_b32 {v(A[2])}, 7, {l}")
            P(f"v_lshl_or_b32 {v(A[2])}, {v(A[3])}, 28, {v(A[2])}")
            P(f"s_lshl_b32 {s(T[0])}, {s(sPD)}, 11")
            P.vm(f"buffer_load_dword {v(77)}, {v(A[2])}, {srd(WQ)}, {s(T[0])} offen", "pre")
        self.wq_setup()
        seq = [lambda g=g: self.wkv_slot(g, True) for g in range(4)] + [lambda e=e: self.wq_slot(e, True) for e in range(4, 8)]
        n0, n1 = self.o.get("pro", [2, 5])
        seq[0]()
        P(f"v_lshrrev_b32 {v(A[1])}, 2, {l}")
        P(f"v_lshlrev_b32 {v(vTR)}, 7, {v(A[1])}")
        P(f"v_bfe_u32 {v(A[1])}, {l}, 3, 2")
        P(f"v_lshl_or_b32 {v(vTR)}, {v(A[1])}, 5, {v(vTR)}")
        P(f"v_and_b32 {v(A[1])}, 3, {l}")
        P(f"v_lshl_or_b32 {v(vTR)}, {v(A[1])}, 3, {v(vTR)}")
        P(f"s_lshl_b32 {s(T[0])}, {s(sW)}, 15")
        P(f"v_add_u32 {v(vTR)}, {s(T[0])}, {v(vTR)}")
        P(f"v_lshrrev_b32 {v(A[1])}, 1, {l}")
        P(f"v_lshrrev_b32 {v(A[2])}, 4, {l}")
        P(f"v_xor_b32 {v(A[1])}, {v(A[1])}, {v(A[2])}")
        P(f"v_and_b32 {v(A[1])}, 3, {v(A[1])}")
        P(f"v_and_b32 {v(A[2])}, 1, {l}")
        P(f"v_lshlrev_b32 {v(A[2])}, 4, {v(A[2])}")
        P(f"v_lshl_or_b32 {v(A[2])}, {v(A[1])}, 5, {v(A[2])}")
        P(f"v_lshrrev_b32 {v(A[1])}, 3, {l}")
        P(f"v_lshl_or_b32 {v(vDS2K)}, {v(A[1])}, 11, {v(A[2])}")
        self.pack_setup()
        P.vmq.append("b1")
        for f in seq[1:n0]:
            f()
        self.pub_offsets(XP, STX)
        P(f"v_mov_b32 {v(A[1])}, 0")
        self.xstamp("pre x0 wait")
        P.wait(vm="x0")
        self.xstamp("x0 landed")
        for t in self.rowswap_list(PK, 4):
            P(t)
        self.stats_and_store(sPUB, sSTO)
        P.vm(f"buffer_load_dword {v(68)}, {v(A[1])}, {srd(DBG)}, 0 offen sc1", "pub")
        self.xstamp("pub issued")
        if self.o.get("l2pre", 1) == 2:
            for t in self.wq_l2_setup(A[2], A[3], T[0]):
                P(t)
            self.wq_l2(76, A[2], T[0])
        for f in seq[n0:n1]:
            f()
        self.xstamp("w issued")
        P.wait(vm="pub")
        self.xstamp("pub drained")
        P(f"s_mov_b32 {s(sTO)}, 0")
        P("L_dbg:")
        P(f"v_readfirstlane_b32 {s(T[0])}, {v(68)}")
        P(f"s_cmp_lg_u32 {s(T[0])}, 0")
        P("s_cbranch_scc1 L_dbgok")
        P(f"s_add_u32 {s(sTO)}, {s(sTO)}, 1")
        P(f"s_cmp_ge_u32 {s(sTO)}, 0x20000")
        P("s_cbranch_scc1 L_dbgok")
        P(f"buffer_load_dword {v(68)}, {v(A[1])}, {srd(DBG)}, 0 offen sc1")
        P("s_waitcnt vmcnt(0)")
        P("s_branch L_dbg")
        P("L_dbgok:")
        P(f"s_lshr_b32 {s(DBG+2)}, s2, 3")
        P(f"s_lshl2_add_u32 {s(DBG+2)}, {s(DBG+2)}, {s(sW)}")
        P(f"s_lshl_b32 {s(DBG+2)}, {s(DBG+2)}, 7")
        self.arrive(sCO, 0)
        self.xstamp("arrived")
        for f in seq[n1:]:
            f()
        self.xstamp("wq hi issued")
        P.wait(vm="wkv")
        self.kv_weights()
        self.xstamp("kw read")
        for e in range(4):
            self.wq_slot(e, True)
        self.xstamp("wq lo issued")
        self.poll_issue(sCO, 0)
        self.p1_setup("a")

    def row_offsets(self):
        P = self.P
        P(f"s_lshl_b32 {s(sPUB)}, {s(sTT)}, 16")
        P(f"s_lshl_b32 {s(sSTO)}, {s(sFS)}, 7")
        P(f"s_add_u32 {s(sPUB)}, {s(sPUB)}, {s(sSTO)}")
        P(f"s_add_u32 {s(sSTO)}, {s(sPUB)}, 32768")

    KX = 128

    @staticmethod
    def kw(sx, off, n):
        return a(224 + 8 * sx + off, n) if sx < 4 else v(32 + 8 * sx + off, n)

    def kw_addr(self):
        l = v(vLANE)
        return [f"v_lshrrev_b32 {v(A[5])}, 2, {l}", f"v_lshlrev_b32 {v(A[5])}, 6, {v(A[5])}", f"v_and_b32 {v(vTMP)}, 3, {l}",
                f"v_lshl_or_b32 {v(A[5])}, {v(vTMP)}, 3, {v(A[5])}", f"v_add_u32 {v(A[5])}, {s(sW4K)}, {v(A[5])}"]

    def kw_read(self, sx, m, e):
        self.P.lg(f"ds_read_b64_tr_b16 {self.kw(sx,4*m+2*e,2)}, {v(A[5])} offset:{(sx>>1)*16384+(sx&1)*2048+e*1024+m*32}", ("kw", sx))

    def kv_weights(self):
        P = self.P
        for t in self.kw_addr():
            P(t)
        for sx in range(8):
            for m in range(2):
                for e in range(2):
                    self.kw_read(sx, m, e)
            if sx >= 2:
                P.wait(lg=("kw", sx - 2))
        P.wait_all(vm=False)

    XA2 = 124

    def x_addr(self, xbuf, tab, by_wave):
        P = self.P
        P(f"s_lshl_b32 {s(sXK)}, {s(sTT)}, 16")
        P(f"s_add_u32 {s(sXK)}, {s(sXK)}, {s(sLB)}")
        if xbuf:
            P(f"s_add_u32 {s(sXK)}, {s(sXK)}, {xbuf}")
        P(f"v_add_u32 {v(A[0])}, {s(sXK)}, {v(vL16)}")
        P(f"v_add_u32 {v(self.XA2)}, 4096, {v(A[0])}")
        for n in range(4):
            if by_wave:
                P(f"s_xor_b32 {s(sXK)}, {s(sW)}, {(0, 1, 3, 2)[n]}")
                P(f"s_lshl1_add_u32 {s(sXK)}, {s(sXK)}, {s(sROT)}")
            else:
                P(f"s_add_u32 {s(sXK)}, {s(sROT)}, {2*n}")
            P(f"s_lshl_b32 {s(sXK)}, {s(sXK)}, 13")
            P(f"s_and_b32 {s(tab+2*n)}, {s(sXK)}, 0xffff")
            P(f"s_add_u32 {s(sXK)}, {s(sXK)}, 8192")
            P(f"s_and_b32 {s(tab+2*n+1)}, {s(sXK)}, 0xffff")
        self.xtab = tab

    def gemm_a_addr(self, xbuf):
        self.x_addr(xbuf, ARR, True)
        for t in range(4):
            self.P(f"v_xor_b32 {v(A[1+t])}, {32*t}, {v(vTR)}")

    def xload(self, x, mask=63):
        self.P.vm(f"buffer_load_dwordx4 {a(4*(x&mask),4)}, {v((A[0], self.XA2)[(x>>2)&1])}, {srd(WS)}, {s(self.xtab+(x>>3))} offen offset:{1024*(x&3)} sc1", ("X", x))

    WB = 64

    def ga_read(self, f, e):
        p, t = 2 * (f >> 3) + (f & 1), (f >> 1) & 3
        self.P.lg(f"ds_read_b64_tr_b16 {v(self.WB+4*(f&7)+2*e,2)}, {v(A[1+t])} offset:{(p&7)*4096+e*2048}", ("W", f))

    def gemm_a(self, acc, zero_init, nx, fill, f0=0, f1=128, cs=None, LA=None):
        P = self.P
        LA, DL = LA or self.o["LA"], 5
        if f0 == 0:
            for f in range(DL):
                self.ga_read(f, 0)
                self.ga_read(f, 1)

        def one(f, mem_ok):
            if fill and fill[0][0] <= f and (mem_ok or not fill[0][1]):
                x = fill.pop(0)[2]
                x() if callable(x) else P(x)
        for f in range(f0, f1):
            pp, t = f >> 3, (f >> 1) & 3
            if self.o.get("fine") == [-1, 4]:
                if f & 3 == 0:
                    P(f"s_memtime {s(sTM,2)}")
                if f & 3 == 3:
                    P(f"v_writelane_b32 {v(vSTAMP)}, {s(sTM)}, {(f >> 2) + (0 if zero_init else 32)}")
            if f == 0:
                P.wait(vm=("X", 3), lg=("W", 1))
            th = (t ^ f) & 1
            d = v(acc + 16 * (t >> 1) + 8 * th + 4 * (t & 1), 4)
            for k in range(2):
                i = k ^ (f & 1)
                P(f"v_mfma_f32_16x16x32_bf16 {d}, {v(self.WB+4*((f&6)+i),4)}, {a(4*((4*pp+2*i+th)&31),4)}, {0 if zero_init and pp == 0 and k == 0 else d}")
                if k == 1 and f & 1:
                    P.wait(vm=("X", 4 * pp + 7) if t == 3 else None, lg=("W", min(f + 2, 127)))
                g = f + DL
                if g < 128:
                    self.ga_read(g, k)
                if k == 0:
                    if 32 <= g + 1 < 128 and (g + 1) & 31 < 8 and g & 1:
                        r = v(A[1 + (((g + 1) >> 1) & 3)])
                        P(f"v_xor_b32 {r}, {0x10000 if (g+1)>>5 == 2 else 0x8000}, {r}")
                    else:
                        one(f, False)
            if cs is not None and f & 1:
                d = v(cs[0] + 4 * t, 4)
                for i in range(2):
                    P(f"v_mfma_f32_16x16x32_bf16 {d}, {v(cs[1],4)}, {v(self.WB+4*((f&6)+i),4)}, {0 if pp == 0 and i == 0 else d}")
            if f & 1 == 0 and nx < min(64, (f >> 1) + LA + 1):
                self.xload(nx, 31)
                nx += 1
            else:
                one(f, True)
        return nx

    def p1_setup(self, sfx):
        P = self.P
        KA, KC, ONES = 160, 168, 184
        l = v(vLANE)
        P(f"s_lshr_b32 {s(T[4])}, {s(sJJ)}, 1")
        P(f"s_lshl2_add_u32 {s(T[4])}, {s(sTAU)}, {s(T[4])}")
        P(f"s_and_b32 {s(T[5])}, {s(sJJ)}, 1")
        for i in range(4):
            P(f"v_mov_b32 {v(ONES+i)}, 0x3f803f80")
        un = self.unpack_list(R, PK, 16)
        for sx in range(8):
            for m in range(2):
                d = v(KC + 4 * m, 4)
                P(f"v_mfma_f32_16x16x32_bf16 {d}, {self.kw(sx,4*m,4)}, {v(ONES,4)}, {d if sx else 0}")
                P(un.pop(0))
                P(un.pop(0))
        self.gemm_a_addr(XP)
        P(f"s_lshl_b32 {s(T[0])}, {s(T[4])}, 16")
        P(f"s_lshl_b32 {s(T[1])}, {s(T[5])}, 10")
        P(f"s_add_u32 {s(T[0])}, {s(T[0])}, {s(T[1])}")
        P(f"s_lshl2_add_u32 {s(T[0])}, {s(sW4K)}, {s(T[0])}")
        P(f"s_add_u32 {s(T[0])}, {s(T[0])}, {s(sLB)}")
        P(f"s_lshl_b32 {s(T[1])}, {s(T[4])}, 12")
        P(f"s_add_u32 {s(T[1])}, {s(T[1])}, {s(sLB)}")
        P(f"s_add_u32 {s(T[2])}, {s(T[1])}, {STX}")
        P(f"s_cmp_lg_u32 {s(T[5])}, 0")
        P("s_cselect_b64 vcc, -1, 0")
        P(f"v_and_b32 {v(KA)}, 15, {l}")
        P(f"v_bfe_u32 {v(KA+1)}, {l}, 4, 1")
        P(f"v_lshrrev_b32 {v(KA+2)}, 5, {l}")
        P(f"s_mul_i32 {s(T[6])}, {s(sW)}, 2112")
        P(f"s_add_u32 {s(T[6])}, {s(T[6])}, {KVR}")
        P(f"v_mul_u32_u24 {v(KA+3)}, 1056, {v(KA+2)}")
        P(f"s_add_u32 {s(T[1])}, {s(T[1])}, {KV}")
        P(f"s_cmp_lg_u32 {s(sKH)}, 0")
        P("s_cbranch_scc1 L_vaddr" + sfx)
        P(f"v_and_b32 {v(A[5])}, 0x1f0, {v(vL16)}")
        P(f"v_add_u32 {v(A[5])}, {v(A[5])}, {v(KA+3)}")
        P(f"v_mov_b32 {v(A[6])}, {v(A[5])}")
        P(f"v_lshlrev_b32 {v(A[7])}, 4, {v(KA)}")
        P(f"v_lshl_or_b32 {v(A[7])}, {v(KA+1)}, 10, {v(A[7])}")
        P(f"v_lshl_or_b32 {v(A[7])}, {v(KA+2)}, 9, {v(A[7])}")
        P(f"s_lshl_b32 {s(T[5])}, {s(T[5])}, 8")
        P("s_branch L_kvaddr" + sfx)
        P("L_vaddr" + sfx + ":")
        P(f"v_bfe_u32 {v(A[5])}, {l}, 2, 2")
        P(f"v_mul_u32_u24 {v(A[5])}, 528, {v(A[5])}")
        P(f"v_and_b32 {v(A[6])}, 0xcc, {v(vL4)}")
        P(f"v_add_u32 {v(A[5])}, {v(A[5])}, {v(A[6])}")
        P(f"v_and_b32 {v(A[6])}, 7, {l}")
        P(f"v_lshl_or_b32 {v(A[6])}, {v(KA+1)}, 3, {v(A[6])}")
        P(f"v_bfe_u32 {v(A[7])}, {l}, 3, 1")
        P(f"v_lshl_or_b32 {v(A[6])}, {v(A[7])}, 4, {v(A[6])}")
        P(f"v_lshl_add_u32 {v(A[6])}, {v(A[6])}, 4, {v(KA+3)}")
        P(f"v_mov_b32 {v(A[7])}, {v(vL16)}")
        P(f"s_lshl_b32 {s(T[5])}, {s(T[5])}, 10")
        P(f"s_add_u32 {s(T[5])}, {s(T[5])}, 2048")
        P("L_kvaddr" + sfx + ":")
        P(f"s_add_u32 {s(T[1])}, {s(T[1])}, {s(T[5])}")
        P(f"s_cmp_eq_u32 {s(sW)}, 0")
        P(f"s_cselect_b32 {s(T[1])}, {s(T[1])}, {OOB}")
        P(f"s_add_u32 {s(ARR+8)}, {s(sCT)}, {CT_TEAM}")
        P(f"s_add_u32 {s(ARR+9)}, {s(sCT)}, {CT_REP}")
        P(f"s_add_u32 {s(ARR+10)}, {s(sCO)}, 384")
        P(f"s_cmp_eq_u32 {s(sW)}, 0")
        P(f"s_cselect_b32 {s(ARR+8)}, {s(ARR+8)}, {s(ARR+10)}")
        P(f"s_cselect_b32 {s(ARR+9)}, {s(ARR+9)}, {s(ARR+10)}")
        P(f"s_cselect_b32 {s(ARR+10)}, 16, 0")
        P(f"s_cselect_b32 {s(ARR+11)}, 1, 0")
        P(f"s_lshl_b32 {s(ARR+12)}, {s(sTT)}, 12")
        P(f"s_add_u32 {s(ARR+12)}, {s(ARR+12)}, {s(sLB)}")
        P(f"s_add_u32 {s(ARR+12)}, {s(ARR+12)}, {STX}")
        P(f"s_lshl_b32 {s(ARR+13)}, {s(sTAU)}, 14")
        P(f"s_lshr_b32 {s(sSB)}, {s(sW4K)}, 1")
        P(f"s_add_u32 {s(sKS)}, {s(ARR+13)}, {s(sSB)}")
        P(f"s_add_u32 {s(sKS)}, {s(sKS)}, 2048")
        P(f"s_add_u32 {s(sSB)}, {s(sSB)}, {RING}")
        P(f"s_add_u32 {s(ARR+14)}, {s(sLB)}, {KV}")
        P(f"v_add_u32 {v(A[5])}, {s(T[6])}, {v(A[5])}")
        P(f"v_add_u32 {v(A[6])}, {KVR}, {v(A[6])}")

    def p1(self):
        P = self.P
        KX = self.KX
        KA, KC, KS, KR, ONES, QA, CSA, ST, EXB = 160, 168, 104, 128, 184, 224, 168, 104, 120
        l = v(vLANE)
        P.vmq = []
        self.stamp(1)
        self.poll_check(sCO, 0, 16)
        P("s_barrier")
        self.stamp(2)
        for i in range(4):
            self.stat_load(KS, T[2], i, "ks")
        for sx in range(8):
            P.vm(f"buffer_load_dwordx4 {a(KX+4*sx,4)}, {v(vL16)}, {srd(WS)}, {s(T[0])} offen offset:{2048*(sx&1)} sc1", ("kx", sx))
            if sx & 1:
                P(f"s_add_u32 {s(T[0])}, {s(T[0])}, 4096")
        nxs = self.o.get("nxs", [0, 6, 4, 4])
        nx = nxs[0]
        for x in range(nx):
            self.xload(x, 31)
        self.xstamp("kv loads issued")
        P.wait(vm="ks")
        self.xstamp("ks landed")
        ch = self.stat_sum_list(KS)
        ch += [f"v_mov_b32 {v(KS+2)}, {v(KS)}", f"v_add_f32 {v(KS+1)}, {f32(1e-5)}, {v(KS+1)}", f"v_rsq_f32 {v(KS+1)}, {v(KS+1)}",
               f"v_permlane16_swap_b32 {v(KS)}, {v(KS+2)}", f"v_mov_b32 {v(KS+3)}, {v(KS+1)}",
               f"v_cndmask_b32 {v(KS)}, {v(KS)}, {v(KS+2)}, vcc", f"v_permlane16_swap_b32 {v(KS+1)}, {v(KS+3)}",
               f"v_cndmask_b32 {v(KS+1)}, {v(KS+1)}, {v(KS+3)}, vcc", f"v_mul_f32 {v(KS)}, {v(KS)}, {v(KS+1)}"]
        ch += [f"v_mul_f32 {v(KC+i)}, -{v(KS)}, {v(KC+i)}" for i in range(8)]
        while len(ch) > 32:
            P(ch.pop(0))
        for sx in range(8):
            P.wait(vm=("kx", sx))
            for m in range(2):
                P(f"v_mfma_f32_16x16x32_bf16 {v(KA+4*m,4)}, {self.kw(sx,4*m,4)}, {a(KX+4*sx,4)}, {v(KA+4*m,4) if sx else 0}")
                P(ch.pop(0))
                P(ch.pop(0))
        self.xstamp("kv mfma done")
        for x in range(nx, nx + nxs[1]):
            self.xload(x, 31)
        nx += nxs[1]
        for i in range(8):
            P(f"v_fma_f32 {v(KA+i)}, {v(KS+1)}, {v(KA+i)}, {v(KC+i)}")
        P(f"s_cmp_lg_u32 {s(sKH)}, 0")
        P("s_cbranch_scc1 L_vwr")
        for m in range(2):
            P(f"ds_write_b128 {v(A[5])}, {v(KA+4*m,4)} offset:{528*m}")
        P("s_branch L_kvwr")
        P("L_vwr:")
        for m in range(2):
            for r in range(4):
                P(f"ds_write_b32 {v(A[5])}, {v(KA+4*m+r)} offset:{256*m+16*r}")
        P("L_kvwr:")
        P.wait_all(vm=False)
        self.xstamp("kv written")
        P("s_barrier")
        self.xstamp("kv barrier")
        for w in range(4):
            for e in range(2):
                P.lg(f"ds_read_b128 {v(KR+8*w+4*e,4)}, {v(A[6])} offset:{2112*w+528*e}", ("kr", w))
        for x in range(nx, nx + nxs[2]):
            self.xload(x, 31)
        nx += nxs[2]
        P.wait(lg=("kr", 1))
        for i in range(8):
            P(f"v_add_f32 {v(KR+i)}, {v(KR+i)}, {v(KR+8+i)}")
        P.wait(lg=("kr", 3))
        for i in range(8):
            P(f"v_add_f32 {v(KR+16+i)}, {v(KR+16+i)}, {v(KR+24+i)}")
        for i in range(8):
            P(f"v_add_f32 {v(KR+i)}, {v(KR+i)}, {v(KR+16+i)}")
        for i in range(4):
            P(f"v_cvt_pk_bf16_f32 {v(KA+i)}, {v(KR+2*i)}, {v(KR+2*i+1)}")
        P.vm(f"buffer_store_dwordx4 {v(KA,4)}, {v(A[7])}, {srd(WS)}, {s(T[1])} offen sc1", "kvst")
        self.stamp(3)
        for x in range(nx, nx + nxs[3]):
            self.xload(x, 31)
        nx += nxs[3]

        def h_arr():
            P.wait(vm="kvst")
            P(f"s_atomic_add {s(ARR+11)}, {s(WS,2)}, {s(ARR+8)} glc")

        def h_fin():
            slow, back = P.newlabel("slow"), P.newlabel("back")
            P(f"s_bitcmp1_b32 0x8002, {s(ARR+11)}")
            P(f"s_cbranch_scc1 {slow}")
            P(f"{back}:")
            self.slow.append((slow, back, lambda: self.two_level_finish(0, ARR + 11)))

        def h_kv():
            self.poll_fast(ARR + 9, 0, s(ARR + 10))
            P("s_barrier")
            self.stamp(5)

        def k0(m):
            return lambda: P.vm(f"buffer_load_dwordx4 {v(self.KF+4*m,4)}, {v(A[5])}, {srd(WS)}, {s(ARR+13)} offen offset:{1024*m} sc1", "k0")

        def kvd(i):
            return lambda: P.vm(f"buffer_load_dwordx4 {v(A[5])}, {srd(WS)}, {s(sKS)} offen offset:{1024*i} sc1 lds", "kv")

        c = math.log2(math.e) / math.sqrt(32)
        SUMA = self.SUMA
        alu = [f"v_mov_b32 {v(self.O_+i)}, 0" for i in range(32)] + [f"v_mov_b32 {v(self.LA_+i)}, 0" for i in range(8)]
        alu += [f"v_and_b32 {v(vTMP)}, 7, {l}", f"v_cmp_eq_u32 vcc, 0, {v(vTMP)}", f"v_mov_b32 {v(A[7])}, 0xdddd",
                f"v_cndmask_b32 {v(SUMA)}, 0, {v(ONES)}, vcc", f"v_cndmask_b32 {v(SUMA+1)}, 0, {v(ONES)}, vcc",
                f"v_cmp_eq_u32 vcc, 4, {v(vTMP)}", f"v_add_u32 {v(A[6])}, {RING}, {v(vL16)}",
                f"v_cndmask_b32 {v(SUMA+2)}, 0, {v(ONES)}, vcc", f"v_cndmask_b32 {v(SUMA+3)}, 0, {v(ONES)}, vcc",
                f"v_add_u32 {v(A[5])}, {s(ARR+14)}, {v(vL16)}"]
        harr, hfin, hpoll, hkv = self.o.get("hq", [8, 30, 80, 102])
        fill = [(0, True, (lambda i=i: self.stat_load(ST, ARR + 12, i, "st"))) for i in range(4)]
        fill += [(0, False, t) for t in alu[:6]] + [(harr, False, h_arr)] + [(0, False, t) for t in alu[6:30]]
        fill += [(hfin, False, h_fin)] + [(0, False, t) for t in alu[30:]]
        st = self.stat_sum_list(ST)
        st += [f"v_add_f32 {v(ST+1)}, {f32(1e-5)}, {v(ST+1)}", f"v_rsq_f32 {v(ST+1)}, {v(ST+1)}"]
        st += self.stat_frag_list(EXB, ST, None, ST + 2)
        st += [f"v_mul_f32 {v(ST+1)}, {f32(c)}, {v(ST+1)}"] + self.split_list(ST + 1, ST + 2)
        fill += [(0, False, lambda: P.wait(vm="st"))] + [(0, False, t) for t in st]
        fill += [(hpoll - 1, False, f"s_mov_b32 {s(sPD)}, 0"), (hpoll, False, f"s_atomic_add {s(sPD)}, {s(WS,2)}, {s(ARR+9)} glc")]
        fill += [(0, False, f"s_mov_b32 m0, {s(sSB)}"), (hkv, True, h_kv), (0, True, k0(0)), (0, True, k0(1)), (0, True, kvd(0)), (0, True, kvd(1))]
        fill += [(0, False, f"s_add_u32 {s(sKS)}, {s(sKS)}, 8192"), (0, False, f"s_add_u32 m0, {s(sSB)}, 8192"),
                 (0, False, f"s_and_b32 {s(sKS)}, {s(sKS)}, 0x3ffff"), (0, True, kvd(0)), (0, True, kvd(1)),
                 (0, False, f"s_add_u32 {s(sKS)}, {s(sKS)}, 8192")]
        LQ = self.o.get("LQ", 14)
        P(f"s_cmp_lg_u32 {s(sL)}, 0")
        P("s_cbranch_scc1 L_q_nocs")
        q0 = (list(P.vmq), list(P.lgq))
        self.gemm_a(QA, True, nx, list(fill), 0, 32, cs=(CSA, ONES), LA=LQ)
        q1 = (list(P.vmq), list(P.lgq))
        self.gather4([CSA + 4 * t for t in range(4)])
        P(f"s_lshr_b32 {s(T[1])}, {s(sW4K)}, 4")
        P(f"s_add_u32 {s(T[1])}, {s(T[1])}, {CSQ}")
        P(f"v_add_u32 {v(CSA+1)}, {s(T[1])}, {v(vL4)}")
        P(f"ds_write_b32 {v(CSA+1)}, {v(CSA)}")
        P("s_waitcnt lgkmcnt(0)")
        if self.o.get("cwc", 0):
            self.code_warm(None)
        P("s_branch L_q_rest")
        P("L_q_nocs:")
        P.vmq, P.lgq = q0
        nx = self.gemm_a(QA, True, nx, fill, 0, 32, LA=LQ)
        assert (P.vmq, P.lgq) == q1
        P("L_q_rest:")
        self.gemm_a(QA, True, nx, fill, 32, 128, LA=LQ)
        assert not fill
        self.stamp(4)
        P(f"s_cmp_lg_u32 {s(sL)}, 0")
        P("s_cbranch_scc1 L_q_wo")
        P(f"v_and_b32 {v(vTMP)}, 15, {l}")
        P(f"v_lshlrev_b32 {v(vTMP)}, 2, {v(vTMP)}")
        P(f"v_lshrrev_b32 {v(A[1])}, 4, {l}")
        P(f"v_lshl_or_b32 {v(vTMP)}, {v(A[1])}, 8, {v(vTMP)}")
        P(f"v_add_u32 {v(vTMP)}, {CSQ}, {v(vTMP)}")
        for t in range(4):
            P(f"ds_read_b32 {v(ST+4+t)}, {v(vTMP)} offset:{64*t}")
        P("s_waitcnt lgkmcnt(0)")
        for t in range(4):
            for x in self.cs_frag_list(EXQ + 2 * t, ST + 4 + t, None, ST + 8 + t):
                P(x)
        P(f"v_add_u32 {v(A[1])}, 16384, {v(vTR)}")
        P(f"v_mov_b32 {v(A[0])}, {v(EXA+20)}")
        for t in range(1, 4):
            P(f"v_xor_b32 {v(A[1+t])}, {32*t}, {v(A[1])}")
        P(f"s_mov_b32 {s(sDS)}, {s(sTRIP)}")
        P(f"s_mov_b32 {s(sSA)}, {s(sPD2)}")
        P(f"s_lshl3_add_u32 {s(sDL)}, {s(sW4K)}, 16384")
        P(f"s_mov_b32 {s(sXK)}, 2")
        P(f"s_mov_b32 {s(sPD)}, -1")
        P("s_branch L_q_fin")
        P("L_q_wo:")
        self.wo_setup()
        P(f"s_mov_b64 {s(PKS,2)}, {s(WO,2)}")
        P(f"s_mov_b32 {s(PKS+2)}, {2*MB}")
        P(f"s_mov_b32 {s(sXK)}, {7 if self.o.get('wppre', 1) else 8}")
        P(f"s_mov_b32 {s(sPD)}, 0x1fffff")
        P("L_q_fin:")
        ini = [f"v_mov_b32 {v(self.SB[3]+i)}, {f32(-1e30)}" for i in range(16)]
        for t in range(4):
            for th in range(2):
                d = v(QA + 16 * (t >> 1) + 8 * th + 4 * (t & 1), 4)
                P(f"v_mfma_f32_16x16x16_bf16 {d}, {v(EXQ+2*t,2)}, {v(EXB+2*th,2)}, {d}")
                P(ini.pop(0))
                P(ini.pop(0))
        for i in range(16):
            P(f"v_mov_b32 {v(self.SB[2]+i)}, 0")
        for i in range(32):
            P(f"v_mul_f32 {v(QA+i)}, {v(ST+1+((i>>3)&1))}, {v(QA+i)}")
        for i in range(16):
            P(f"v_cvt_pk_bf16_f32 {v(PK+i)}, {v(QA+2*i)}, {v(QA+2*i+1)}")
        for i in range(8):
            P(f"v_mov_b32 {v(self.VF+8+i)}, 0")
        for hd in range(2):
            for k in range(4):
                P(f"v_permlane16_swap_b32 {v(PK+8*hd+k)}, {v(PK+8*hd+4+k)}")

    QF, SB, VF, O_, LA_, KF, ONES, SUMA = 48, (224, 240, 64, 80), 104, 128, 160, 168, 184, 188

    def qk(self, i, m, c=None):
        n, hd = i >> 1, i & 1
        d = v(self.SB[i & 3], 16)
        c = c or ("0" if m == 0 else d)
        return f"v_mfma_f32_32x32x16_bf16 {d}, {v(self.KF+8*(n&1)+4*m,4)}, {v(self.QF+8*hd+4*m,4)}, {c}"

    def pv(self, i, m):
        n, hd = i >> 1, i & 1
        if self.o.get("aabl") == "pvconst" and m == 0:
            return f"v_smfmac_f32_16x16x64_bf16 {v(EXA+24,4)}, {v(self.SUMA,4)}, {v(self.SB[i&3]+8*m,8)}, {v(A[7])}"
        return f"v_smfmac_f32_32x32x32_bf16 {v(self.O_+16*hd,16)}, {v(self.VF+8*(n&1)+4*m,4)}, {v(self.SB[i&3]+8*m,8)}, {v(A[7])}"

    def sm(self, i, m):
        ab = self.o.get("aabl")
        if ab == "sumzero":
            return f"v_smfmac_f32_16x16x64_bf16 {v(self.LA_+4*(i&1),4)}, {v(EXA+20,4)}, {v(EXA+16,8)}, {v(A[7])}"
        if ab == "addnop":
            return f"s_nop 2\nv_smfmac_f32_16x16x64_bf16 {v(self.LA_+4*(i&1),4)}, {v(self.SUMA,4)}, {v(self.SB[i&3]+8*m,8)}, {v(A[7])}"
        return f"v_smfmac_f32_16x16x64_bf16 {v(self.LA_+4*(i&1),4)}, {v(self.SUMA,4)}, {v(self.SB[i&3]+8*m,8)}, {v(A[7])}"

    def ex(self, i, r):
        return f"v_exp_f32 {v(self.SB[i&3]+r)}, {v(self.SB[i&3]+r)}"

    def att_body(self, rs, nextra, mask):
        P = self.P
        kv = lambda off: f"buffer_load_dwordx4 {v(A[5])}, {srd(WS)}, {s(sKS)} offen offset:{off} sc1 lds"
        def tstamp(k):
            if self.o.get("fine") == [-3, 1]:
                P(f"s_cselect_b32 {s(sTM+2)}, 1, 0")
                P(f"s_memtime {s(sTM,2)}")
                P(f"s_mov_b32 {s(sTM+3)}, m0")
                P(f"s_lshl3_add_u32 m0, {s(sL)}, {s(sTRIP)}")
                P(f"s_lshl2_add_u32 m0, m0, {k}")
                P("s_waitcnt lgkmcnt(0)")
                P(f"v_writelane_b32 {v(vSTAMP)}, {s(sTM)}, m0")
                P(f"s_mov_b32 m0, {s(sTM+3)}")
                P(f"s_cmp_lg_u32 {s(sTM+2)}, 0")
        for it in range(4):
            tstamp(it)
            for u in range(4):
                i = 4 * it + u + 3
                if u & 1 == 0:
                    n = (i + 1) // 2 + 1
                    rdst, roff = self.KF + 8 * (n & 1), 2048 + 2048 * u
                else:
                    n = i // 2
                    rdst, roff = self.VF + 8 * (n & 1), 2048 * (u - 1)
                rd = [f"ds_read_b128 {v(rdst+4*m,4)}, {v(A[6])} offset:{8192*it+roff+1024*m}" for m in range(2)]
                even = it & 1 == 0
                kvslot = even and u < 2
                exslot = (even and u >= 2 or (not even and u < 2 and nextra == 2))
                order = self.o.get("aord", "QqsSPp")
                nrd = sum(c in "sS" for c in order[:order.index("q")])
                bar = even and u == 0
                after = {c: [] for c in order}
                after["s"], after["S"] = [rd[0]], [rd[1]]
                if bar:
                    after["Q" if nrd else "q"] = ["s_waitcnt lgkmcnt(0)", "s_barrier"]
                else:
                    after["q"] = [f"s_waitcnt lgkmcnt({nrd})"]
                if kvslot:
                    if not bar:
                        after["Q"] = [f"s_add_u32 m0, {s(sSB)}, {8192*((it+3)&3)}"]
                    after["P"] = [f"s_and_b32 {s(sKS)}, {s(sKS)}, 0x3ffff", kv(0)]
                    after["p"] = [kv(1024), f"s_add_u32 {s(sKS)}, {s(sKS)}, 8192"]
                elif exslot:
                    after["Q"] = [f"s_mov_b32 m0, {s(sDL)}"]
                    after["P"] = [f"s_and_b32 {s(sDS)}, {s(sDS)}, {mask}", f"buffer_load_dwordx4 {v(A[0])}, {srd(rs)}, {s(sDS)} offen lds"]
                    after["p"] = [f"s_add_u32 {s(sDS)}, {s(sDS)}, {s(sSA)}", f"s_add_u32 {s(sDL)}, {s(sDL)}, 1024"]
                elif u == 3:
                    after["P"] = [f"s_add_u32 m0, {s(sSB)}, {8192*((it+3)&3)}"]
                    after["p"] = [f"s_waitcnt vmcnt({2*nextra})"] + ([f"s_cmp_lt_u32 {s(sTRIP)}, {s(sXK)}"] if it == 3 else [])
                elif it == 3 and u == 2:
                    after["P"] = [f"s_add_u32 {s(sTRIP)}, {s(sTRIP)}, 1"]
                ops = {"Q": self.qk(i + 1, 0), "q": self.qk(i + 1, 1), "s": self.sm(i - 1, 0), "S": self.sm(i - 1, 1),
                       "P": self.pv(i - 1, 0), "p": self.pv(i - 1, 1)}
                r = 0
                for c, ne in zip(order, self.o.get("aexp") or [2 if c in "sS" else 3 for c in order]):
                    P(ops[c])
                    for t in after[c]:
                        P(t)
                    for _ in range(ne):
                        P(self.ex(i, r))
                        r += 1
                assert r == 16

    PD = [CODE, CODE + 1, CODE + 2, CODE + 3, X0, X0 + 1, X0 + 2, X0 + 3]

    def pack_setup(self):
        P = self.P
        l = v(vLANE)
        gw = T[7]
        P(f"s_lshl2_add_u32 {s(gw)}, s2, {s(sW)}")
        PD = self.PD
        P(f"s_cmp_ge_u32 {s(gw)}, 448")
        P("s_cbranch_scc1 L_pk2")
        P(f"v_lshrrev_b32 {v(vTMP)}, 3, {l}")
        P(f"v_mul_u32_u24 {v(vTMP)}, 5120, {v(vTMP)}")
        P(f"v_add_u32 {v(EXA+20)}, {v(vTMP)}, {v(vDS2K)}")
        P(f"s_lshr_b32 {s(T[0])}, {s(gw)}, 3")
        P(f"s_and_b32 {s(T[1])}, {s(gw)}, 7")
        P(f"s_mul_i32 {s(sTRIP)}, {s(T[1])}, {128*7168}")
        P(f"s_lshl_b32 {s(T[2])}, {s(T[0])}, 7")
        P(f"s_add_u32 {s(sTRIP)}, {s(sTRIP)}, {s(T[2])}")
        P(f"s_mov_b32 {s(sPD2)}, {8*7168}")
        P(f"s_lshl_b32 {s(sCSO)}, {s(T[1])}, 7")
        P(f"s_lshl4_add_u32 {s(sCSO)}, {s(T[2])}, {s(sCSO)}")
        P(f"s_add_u32 {s(sCSO)}, {s(sCSO)}, {CS}")
        P(f"s_bitcmp1_b32 {s(T[1])}, 0")
        P(f"s_cselect_b32 {s(sCSO)}, {OOB}, {s(sCSO)}")
        P(f"s_bitcmp1_b32 {s(T[1])}, 1")
        P(f"s_cselect_b32 {s(T[2])}, {OOB}, {s(T[2])}")
        P(f"v_lshrrev_b32 {v(vTMP)}, 1, {v(vL4)}")
        P(f"buffer_load_ushort {v(EXA+16)}, {v(vTMP)}, {srd(B1)}, {s(T[2])} offen")
        for t in range(2):
            P(f"s_lshl1_add_u32 {s(T[2])}, {s(T[0])}, {t}")
            P(f"s_mul_i32 {s(T[3])}, {s(T[2])}, 9363")
            P(f"s_lshr_b32 {s(T[3])}, {s(T[3])}, 16")
            P(f"s_mul_i32 {s(T[4])}, {s(T[3])}, 7")
            P(f"s_sub_u32 {s(T[2])}, {s(T[2])}, {s(T[4])}")
            P(f"s_bfe_u32 {s(T[4])}, {s(T[3])}, 0x10002")
            P(f"s_lshl1_add_u32 {s(T[4])}, {s(T[3])}, {s(T[4])}")
            P(f"s_and_b32 {s(T[4])}, {s(T[4])}, {self.o.get('rot', 1)}")
            P(f"s_lshl_b32 {s(T[4])}, {s(T[4])}, 1")
            P(f"s_and_b32 {s(T[5])}, {s(T[3])}, 3")
            P(f"s_lshr_b32 {s(T[6])}, {s(T[3])}, 2")
            P(f"s_lshl2_add_u32 {s(T[5])}, {s(T[5])}, {s(T[6])}")
            P(f"s_xor_b32 {s(T[5])}, {s(T[5])}, {s(T[4])}")
            P(f"s_mul_i32 {s(T[3])}, {s(T[3])}, 896")
            P(f"s_add_u32 {s(T[3])}, {s(T[3])}, {WP >> 10}")
            P(f"s_lshl2_add_u32 {s(sTO)}, {s(T[2])}, {s(T[3])}")
            P(f"s_cmp_eq_u32 {s(T[2])}, 6")
            P(f"s_cselect_b32 {s(T[6])}, 4, 2")
            P(f"s_cselect_b32 {s(sKS)}, 2, 30")
            P(f"s_cmp_lt_u32 {s(T[2])}, 2")
            P(f"s_cselect_b32 {s(T[6])}, 8, {s(T[6])}")
            P(f"s_cselect_b32 {s(sKS)}, 2, {s(sKS)}")
            P(f"s_cselect_b32 {s(T[7])}, 4, 60")
            P(f"s_mul_i32 {s(T[2])}, {s(T[2])}, {s(T[7])}")
            P(f"s_add_u32 {s(T[2])}, {s(T[2])}, 28")
            P(f"s_add_u32 {s(T[2])}, {s(T[2])}, {s(T[3])}")
            for u in range(2):
                d0, d1 = PD[4 * u + 2 * t], PD[4 * u + 2 * t + 1]
                P(f"s_lshl1_add_u32 {s(T[7])}, {s(T[1])}, {u}")
                P(f"s_xor_b32 {s(T[7])}, {s(T[7])}, {s(T[4])}")
                P(f"s_cmp_eq_u32 {s(T[7])}, 15")
                P(f"s_cselect_b32 {s(sXK)}, {s(T[5])}, {s(T[7])}")
                P(f"s_mul_i32 {s(sXK)}, {s(sXK)}, {s(T[6])}")
                P(f"s_add_u32 {s(sXK)}, {s(sXK)}, {s(T[2])}")
                P(f"s_cmp_eq_u32 {s(T[7])}, {s(T[5])}")
                P(f"s_cselect_b32 {s(d0)}, {s(sTO)}, {s(sXK)}")
                P(f"s_cselect_b32 {s(d1)}, 2, {s(sKS)}")
                P(f"s_add_u32 {s(d1)}, {s(d1)}, {s(d0)}")
                P(f"s_lshl_b32 {s(d0)}, {s(d0)}, 10")
                P(f"s_lshl_b32 {s(d1)}, {s(d1)}, 10")
        P(f"v_add_u32 {v(EXA+21)}, 1024, {v(vL16)}")
        P(f"v_mov_b32 {v(EXA+22)}, {v(EXA+21)}")
        P("s_branch L_pkdone")
        P("L_pk2:")
        P(f"buffer_load_ushort {v(EXA+16)}, {v(vL4)}, {srd(B1)}, 0 offen")
        P(f"v_mov_b32 {v(EXA+20)}, {v(vDS2K)}")
        P(f"s_sub_u32 {s(gw)}, {s(gw)}, 448")
        P(f"s_and_b32 {s(T[0])}, {s(gw)}, 15")
        P(f"s_bfe_u32 {s(T[1])}, {s(gw)}, 0x10004")
        P(f"s_lshr_b32 {s(T[2])}, {s(gw)}, 5")
        P(f"s_mul_i32 {s(sTRIP)}, {s(T[2])}, 7")
        P(f"s_lshl2_add_u32 {s(sTRIP)}, {s(T[1])}, {s(sTRIP)}")
        P(f"s_lshl_b32 {s(sTRIP)}, {s(sTRIP)}, 16")
        P(f"s_lshl_b32 {s(T[3])}, {s(T[0])}, 7")
        P(f"s_add_u32 {s(sTRIP)}, {s(sTRIP)}, {s(T[3])}")
        P(f"s_mov_b32 {s(sPD2)}, 16384")
        P(f"s_mov_b32 {s(sCSO)}, {OOB}")
        P(f"s_lshr_b32 {s(T[3])}, {s(T[0])}, 2")
        P(f"s_sub_u32 {s(T[4])}, {s(T[2])}, {s(T[3])}")
        P(f"s_and_b32 {s(T[4])}, {s(T[4])}, 3")
        P(f"s_lshl4_add_u32 {s(T[4])}, {s(T[1])}, {s(T[4])}")
        P(f"s_lshr_b32 {s(T[2])}, {s(T[2])}, 2")
        P(f"s_sub_u32 {s(T[0])}, {s(T[0])}, {s(T[2])}")
        P(f"s_sub_u32 {s(T[0])}, {s(T[0])}, 1")
        P(f"s_and_b32 {s(T[0])}, {s(T[0])}, 3")
        P(f"s_lshl2_add_u32 {s(T[3])}, {s(T[2])}, {s(T[3])}")
        P(f"s_mul_i32 {s(T[3])}, {s(T[3])}, {896*1024}")
        P(f"s_add_u32 {s(T[3])}, {s(T[3])}, {WP + 448*1024}")
        P(f"s_cmp_ge_u32 {s(gw)}, 512")
        P(f"s_cselect_b32 {s(T[3])}, {OOB}, {s(T[3])}")
        P(f"s_lshr_b32 {s(T[5])}, {s(T[4])}, 1")
        P(f"s_lshl1_add_u32 {s(T[5])}, {s(T[5])}, {s(T[0])}")
        P(f"s_and_b32 {s(T[6])}, {s(T[4])}, 1")
        P(f"s_lshl3_add_u32 {s(T[5])}, {s(T[5])}, {s(T[6])}")
        P(f"s_mul_i32 {s(T[6])}, {s(T[0])}, 112")
        P(f"s_add_u32 {s(T[6])}, {s(T[6])}, {s(T[4])}")
        P(f"s_cmp_lt_u32 {s(T[0])}, 2")
        P(f"s_cselect_b32 {s(T[5])}, {s(T[5])}, {s(T[6])}")
        P(f"s_cselect_b32 {s(T[6])}, 32, 4")
        P(f"s_cselect_b32 {s(T[7])}, 2, 28")
        P(f"s_lshl_b32 {s(T[5])}, {s(T[5])}, 10")
        P(f"s_lshl_b32 {s(T[6])}, {s(T[6])}, 10")
        P(f"s_lshl_b32 {s(T[7])}, {s(T[7])}, 10")
        P(f"s_add_u32 {s(PD[0])}, {s(T[5])}, {s(T[3])}")
        for t in range(1, 4):
            P(f"s_add_u32 {s(PD[t])}, {s(PD[t-1])}, {s(T[7])}")
        for t in range(4):
            P(f"s_lshl1_add_u32 {s(PD[4+t])}, {s(T[6])}, {s(PD[t])}")
        P(f"v_add_u32 {v(EXA+21)}, {s(T[6])}, {v(vL16)}")
        P(f"s_lshl_b32 {s(T[1])}, {s(T[1])}, 30")
        P(f"v_or_b32 {v(EXA+22)}, {s(T[1])}, {v(EXA+21)}")
        P("L_pkdone:")

    def pack_step(self, rd, wr):
        P = self.P
        for t in range(4):
            if wr is not None:
                b = 16 * wr + 4 * t
                P(f"v_mfma_f32_16x16x32_bf16 {v(EXA+4*t,4)}, {v(self.ONES,4)}, {a(b,4)}, {v(EXA+4*t,4) if wr else 0}")
                P(f"buffer_store_dwordx4 {a(b,4)}, {v((vL16, EXA+21, vL16, EXA+22)[wr])}, {srd(WS)}, {s(self.PD[4*(wr>>1)+t])} offen sc1")
            if rd is not None:
                for e in range(2):
                    P(f"ds_read_b64_tr_b16 {a(16*rd+4*t+2*e,2)}, {v(A[1+t])} offset:{rd*4096+e*2048}")

    def fallback(self):
        P = self.P
        M = 120
        P("s_waitcnt vmcnt(0) lgkmcnt(0)")
        for hd in range(2):
            i = hd
            S, CB = self.SB[i & 3], self.SB[2]
            l1, l2 = P.newlabel("fb"), P.newlabel("fb")
            P(f"v_mov_b32 {v(M)}, 0xff800000")
            P(f"s_mov_b32 {s(T[0])}, 0")
            P(f"{l1}:")
            for m in range(2):
                P(f"buffer_load_dwordx4 {v(self.KF+4*m,4)}, {v(A[5])}, {srd(WS)}, {s(T[0])} offen offset:{1024*m} sc1")
            P("s_waitcnt vmcnt(0)")
            P(self.qk(i, 0))
            P(self.qk(i, 1))
            for r in range(8):
                P(f"v_max3_f32 {v(M)}, {v(S+2*r)}, {v(S+2*r+1)}, {v(M)}")
            P(f"s_add_u32 {s(T[0])}, {s(T[0])}, 4096")
            P(f"s_cmp_lt_u32 {s(T[0])}, 0x40000")
            P(f"s_cbranch_scc1 {l1}")
            P(f"v_mov_b32 {v(vTMP)}, {v(M)}")
            P(f"v_permlane32_swap_b32 {v(M)}, {v(vTMP)}")
            P(f"v_max_f32 {v(M)}, {v(M)}, {v(vTMP)}")
            for r in range(16):
                P(f"v_sub_f32 {v(CB+r)}, 0, {v(M)}")
                P(f"v_mov_b32 {v(self.O_+16*hd+r)}, 0")
            for r in range(4):
                P(f"v_mov_b32 {v(self.LA_+4*hd+r)}, 0")
            P(f"s_mov_b32 {s(T[0])}, 0")
            P(f"{l2}:")
            for m in range(2):
                P(f"buffer_load_dwordx4 {v(self.KF+4*m,4)}, {v(A[5])}, {srd(WS)}, {s(T[0])} offen offset:{1024*m} sc1")
                P(f"buffer_load_dwordx4 {v(self.VF+4*m,4)}, {v(A[5])}, {srd(WS)}, {s(T[0])} offen offset:{2048+1024*m} sc1")
            P("s_waitcnt vmcnt(0)")
            P(self.qk(i, 0, v(CB, 16)))
            P(self.qk(i, 1))
            for r in range(16):
                P(self.ex(i, r))
            for m in range(2):
                P(self.pv(i, m))
                P(self.sm(i, m))
            P(f"s_add_u32 {s(T[0])}, {s(T[0])}, 4096")
            P(f"s_cmp_lt_u32 {s(T[0])}, 0x40000")
            P(f"s_cbranch_scc1 {l2}")
            P("s_nop 11")

    def p2(self):
        P = self.P
        P(f"s_mov_b32 {s(sTRIP)}, 0")
        P.wait_all()
        self.stamp(6)
        P(f"s_add_u32 m0, {s(sSB)}, 16384")
        P(".p2align 3")
        P("L_att_a:")
        self.att_body(PKS, 1, s(sPD))
        P("s_cbranch_scc1 L_att_a")
        P(f"s_cmp_lt_u32 {s(sTRIP)}, 8")
        P("s_cbranch_scc1 L_pack_a")
        P("L_att_tail:")
        i = 127
        P(self.sm(i - 1, 0))
        P("s_waitcnt lgkmcnt(0)")
        for r in range(0, 3):
            P(self.ex(i, r))
        P(self.pv(i - 1, 0))
        for r in range(3, 6):
            P(self.ex(i, r))
        P(self.pv(i - 1, 1))
        for r in range(6, 9):
            P(self.ex(i, r))
        P(self.sm(i - 1, 1))
        for r in range(9, 11):
            P(self.ex(i, r))
        P(self.pv(i, 0))
        for r in range(11, 14):
            P(self.ex(i, r))
        P(self.sm(i, 0))
        for r in range(14, 16):
            P(self.ex(i, r))
        P("s_nop 1")
        P(self.sm(i, 1))
        P(self.pv(i, 1))
        self.pub_offsets(OP, None)
        l = v(vLANE)
        P(f"v_and_b32 {v(A[6])}, 15, {l}")
        P(f"v_lshlrev_b32 {v(A[6])}, 4, {v(A[6])}")
        P(f"v_bfe_u32 {v(vTMP)}, {l}, 4, 1")
        P(f"v_lshl_or_b32 {v(A[6])}, {v(vTMP)}, 10, {v(A[6])}")
        P(f"v_lshrrev_b32 {v(vTMP)}, 5, {l}")
        P(f"v_lshl_or_b32 {v(A[6])}, {v(vTMP)}, 8, {v(A[6])}")
        self.stamp(7)
        lo, hi = (2.0 ** -60, 2.0 ** 60) if not self.force_fallback else (1.0, 0.5)
        RC = 122
        P(f"v_min_f32 {v(RC)}, {v(self.LA_)}, {v(self.LA_+4)}")
        P(f"v_add_f32 {v(RC+1)}, {v(self.LA_)}, {v(self.LA_+4)}")
        P(f"v_cmp_nle_f32 vcc, {f32(lo)}, {v(RC)}")
        P(f"s_mov_b64 {s(T[2],2)}, vcc")
        P(f"v_cmp_nge_f32 vcc, {f32(hi)}, {v(RC+1)}")
        P(f"s_or_b64 {s(T[2],2)}, {s(T[2],2)}, vcc")
        if not self.o.get("aabl"):
            P("s_cbranch_scc1 L_fallback")
        P("L_att_fin:")
        for hd in range(2):
            P(f"v_rcp_f32 {v(RC+hd)}, {v(self.LA_+4*hd)}")
        for hd in range(2):
            for r in range(16):
                P(f"v_mul_f32 {v(self.O_+16*hd+r)}, {v(RC+hd)}, {v(self.O_+16*hd+r)}")
            for r in range(8):
                P(f"v_cvt_pk_bf16_f32 {v(PK+8*hd+r)}, {v(self.O_+16*hd+2*r)}, {v(self.O_+16*hd+2*r+1)}")
            for m in range(2):
                P(f"buffer_store_dwordx4 {v(PK+8*hd+4*m,4)}, {v(A[6])}, {srd(WS)}, {s(sPUB)} offen offset:{2048*hd+512*m} sc1")
        self.xstamp("O stores issued")
        if self.o.get("cw", 1):
            self.code_warm(1024)
        P(f"s_mov_b32 {s(sPD2)}, 1")
        P(f"s_or_b32 {s(T[4])}, {s(sW)}, {s(sL)}")
        P("s_cbranch_scc1 L_nopk")
        P(f"s_atomic_add {s(sPD2)}, {s(WS,2)}, {s(sCT)} offset:{CT_TEAM + 8} glc")
        P("L_nopk:")
        self.gemm_a_addr(OP)
        P(f"v_and_b32 {v(A[5])}, 48, {v(vROW)}")
        P(f"s_lshl_b32 {s(T[0])}, {s(sFS)}, 7")
        P(f"s_lshl_b32 {s(T[2])}, {s(sTAU)}, 7")
        P(f"s_mul_i32 {s(sCSO)}, {s(sJ)}, {896*1024}")
        P(f"s_add_u32 {s(sCSO)}, {s(sCSO)}, {s(sW4K)}")
        P(f"s_add_u32 {s(sCSO)}, {s(sCSO)}, {WP}")
        P.wait_all()
        self.xstamp("O drained")

    def wo_setup(self):
        P = self.P
        P(f"s_lshl1_add_u32 {s(sDS)}, {s(sW)}, {s(sROT)}")
        P(f"s_lshl_b32 {s(sDS)}, {s(sDS)}, 18")
        P(f"s_mov_b32 {s(sSA)}, 16384")
        P(f"s_lshl_b32 {s(T[0])}, {s(sFS)}, 7")
        P(f"v_add_u32 {v(A[0])}, {s(T[0])}, {v(vDS2K)}")
        P(f"s_lshl_b32 {s(sDL)}, {s(sW)}, 15")

    def pack_side(self):
        P = self.P
        P("L_pack_a:")
        P(f"s_cmp_lg_u32 {s(sTRIP)}, 7")
        P("s_cbranch_scc1 L_pack_a2")
        for t in self.wp_l2_setup(A[1], T[0]):
            P(t)
        for i in range(self.o.get("wppre", 1)):
            P(f"buffer_load_dword {v(A[2+i])}, {v(A[1])}, {srd(WS)}, {s(T[0])} offen sc1")
            P(f"s_add_u32 {s(T[0])}, {s(T[0])}, 131072")
        P("s_branch L_att_a")
        P("L_pack_a2:")
        P(f"s_cmp_lg_u32 {s(sTRIP)}, 2")
        P("s_cbranch_scc1 L_pack_a3")
        self.pack_step(0, None)
        P("s_branch L_att_a")
        P("L_pack_a3:")
        P(f"s_cmp_lg_u32 {s(sTRIP)}, 3")
        P("s_cbranch_scc1 L_pack_a4")
        self.pack_step(1, 0)
        P("s_branch L_att_a")
        P("L_pack_a4:")
        self.pack_step(2, 1)
        self.wo_setup()
        P(".p2align 3")
        P("L_att_c:")
        self.att_body(WO, 2, 0x1fffff)
        P(f"s_cmp_eq_u32 {s(sTRIP)}, 8")
        P("s_cbranch_scc1 L_att_tail")
        P(f"s_cmp_lg_u32 {s(sTRIP)}, 5")
        P("s_cbranch_scc1 L_pack_c6")
        self.pack_step(3, 2)
        P("s_branch L_att_c")
        P("L_pack_c6:")
        P(f"s_cmp_lg_u32 {s(sTRIP)}, 6")
        P("s_cbranch_scc1 L_pack_c7")
        self.pack_step(None, 3)
        self.gather4([EXA + 4 * t for t in range(4)])
        P(f"s_lshl3_add_u32 {s(T[0])}, {s(sW4K)}, 31744")
        P(f"v_add_u32 {v(EXA+17)}, {s(T[0])}, {v(vL4)}")
        P(f"ds_write_b32 {v(EXA+17)}, {v(EXA)}")
        P("s_branch L_att_c")
        P("L_pack_c7:")
        l = v(vLANE)
        P(f"v_xor_b32 {v(EXA+17)}, 0x8000, {v(EXA+17)}")
        P(f"ds_read_b32 {v(EXA+1)}, {v(EXA+17)}")
        P(f"v_lshlrev_b32 {v(EXA+16)}, 16, {v(EXA+16)}")
        P(f"v_and_b32 {v(EXA+18)}, 0xf0, {v(vL16)}")
        P(f"v_bfe_u32 {v(EXA+19)}, {l}, 4, 1")
        P(f"v_lshl_or_b32 {v(EXA+18)}, {v(EXA+19)}, 3, {v(EXA+18)}")
        P(f"v_lshrrev_b32 {v(EXA+19)}, 5, {l}")
        P(f"v_lshl_or_b32 {v(EXA+18)}, {v(EXA+19)}, 10, {v(EXA+18)}")
        P("s_waitcnt lgkmcnt(0)")
        P(f"v_add_f32 {v(EXA)}, {v(EXA)}, {v(EXA+1)}")
        for x in self.cs_frag_list(EXA + 2, EXA, EXA + 16, EXA + 1):
            P(x)
        P(f"buffer_store_dwordx2 {v(EXA+2,2)}, {v(EXA+18)}, {srd(WS)}, {s(sCSO)} offen sc1")
        P("s_branch L_att_c")

    def slot_of(self, c):
        return (8, 9, 4, 5, 6, 7)[c] if c < 6 else (c + 4) % 10

    def wp_chunk(self, c, i):
        self.emit_dma(self.grp_wp(c)[i])

    B2P = 176
    TB = [160, 112, 240, 176, 64, 80, 160]
    WF = 128
    XT = T + [CODE, CODE + 1, CODE + 2, CODE + 3, X0, X0 + 1, X0 + 2]

    def dsread(self, f):
        c, i = f >> 4, f & 15
        addr = self.slot_of(c) * 16384 + i * 1024
        self.P.lg(f"ds_read_b128 {v(self.WF+4*(f&7),4)}, {v((vL16, A[2], A[3])[addr>>16])} offset:{addr & 0xffff}", ("F", f))

    def x1load(self, x):
        self.P.vm(f"buffer_load_dwordx4 {a(4*x,4)}, {v(A[0])}, {srd(WS)}, {s(self.XT[x>>2])} offen offset:{1024*(x&3)} sc1", ("X", x))

    def p3(self):
        P = self.P
        self.stamp(8)
        self.arrive_wait(sCO, 8, 16)
        self.stamp(9)
        slow, back = P.newlabel("slow"), P.newlabel("back")
        P(f"s_cmp_eq_u32 {s(sPD2)}, 15")
        P(f"s_cbranch_scc1 {slow}")
        P(f"{back}:")
        self.slow.append((slow, back, lambda: self.two_level_finish(8)))
        for x in range(self.o["LO"]):
            self.xload(x, 31)
        P("s_barrier")
        early = [c for c in range(10) if self.slot_of(c) >= 8]
        t0 = 2 * (64 - self.o["LO"])
        fill = [(40, True, (lambda i=i: P.vm(f"buffer_load_dwordx4 {v(self.B2P+4*i,4)}, {v(A[5])}, {srd(B2)}, {s(T[0])} offen offset:{64*i}", "b2")))
                for i in range(2)]
        fill += [(62, False, lambda: P.wait(vm="b2"))] + [(0, False, t) for t in self.rowswap_list(self.B2P, 2) + self.unpack_list(224, self.B2P, 8)]
        fill += [(t0 - 26, False, f"s_mov_b32 {s(sPD2)}, 0"), (0, False, f"s_atomic_add {s(sPD2)}, {s(WS,2)}, {s(T[2])} offset:{CT_REP + 8} glc")]
        fill += [(t0 - 2, False, lambda: self.poll_fast(T[2], CT_REP + 8, 16, sPD2))]
        n = 0
        for c in early:
            for pre, txt, tag in self.grp_wp(c):
                fill += [(0, False, t) for t in pre] + [(t0 + self.o.get("egap", 2) * n, True, (lambda txt=txt, tag=tag: P.vm(txt, tag)))]
                n += 1
        self.gemm_a(R, False, self.o["LO"], fill, LA=self.o["LO"])
        assert not fill
        self.pub_offsets(X1P, ST1)
        self.stamp(10)
        self.pack_R()
        self.stats_and_store(sPUB, sSTO)
        self.xstamp("x1 stores issued")
        P(f"s_lshl_b32 {s(sSTO)}, {s(sTT)}, 12")
        P(f"s_add_u32 {s(sSTO)}, {s(sSTO)}, {s(sLB)}")
        P(f"s_add_u32 {s(sSTO)}, {s(sSTO)}, {ST1}")
        self.mlp_addr()
        P(f"s_lshl_b32 {s(sXK)}, {s(sTT)}, 16")
        P(f"s_add_u32 {s(sXK)}, {s(sXK)}, {s(sLB)}")
        P(f"s_add_u32 {s(sXK)}, {s(sXK)}, {X1P}")
        P(f"v_add_u32 {v(A[0])}, {s(sXK)}, {v(vL16)}")
        P(f"s_lshl_b32 {s(sXK)}, {s(sROT)}, 13")
        P(f"s_lshl_b32 {s(sDS)}, {s(sFS)}, 12")
        P(f"s_xor_b32 {s(sDL)}, {s(sXK)}, {15 << 12}")
        tab = []
        for n, r in enumerate(self.XT):
            tab.append([f"s_xor_b32 {s(r)}, {s(sXK)}, {n << 12}", f"s_cmp_eq_u32 {s(r)}, {s(sDS)}", f"s_cselect_b32 {s(r)}, {s(sDL)}, {s(r)}"])
        P.wait(vm="pub")
        self.xstamp("x1 drained")

        fl = self.unpack_list(R, PK, 16) + [f"v_add_f32 {v(R+k)}, {v(R+k)}, {v(224+8*(k>>4)+(k&7))}" for k in range(32)]

        def rest():
            P("s_barrier")
            dm = [x for c in range(2, self.o["npre"]) for x in self.grp_wp(c)]
            while dm:
                if len(dm) == 4 * self.o.get("npoll", 2):
                    self.poll_issue(sCO, 16, sPD2)
                self.emit_dma(dm.pop(0))
                if tab:
                    for x in tab.pop(0):
                        P(x)
            assert not tab
            self.stamp(11)
        self.arrive_wait(sCO, 16, 16, rest)
        self.stamp(12)
        DSL = self.o["DSL"]
        for f in range(DSL):
            self.dsread(f)
        nx = self.o["LA"]
        for x in range(nx):
            self.x1load(x)
        for f in range(28):
            t, half = f >> 2, (f >> 1) & 1
            if f == 0:
                P.wait(lg=("F", 1))
            th = (half ^ f) & 1
            n = 8 * th + 4 * half
            d = v(self.TB[t] + n, 4) if t < 6 else a(240 + n, 4)
            for k in range(2):
                i = k ^ (f & 1)
                P(f"v_mfma_f32_16x16x32_bf16 {d}, {v(self.WF+4*((f&6)+i),4)}, {v(PK+8*i+4*th,4)}, {d if k else 0}")
                if k == 0:
                    self.dsread(f + DSL)
                    if fl:
                        P(fl.pop(0))
                else:
                    if f & 1:
                        P.wait(lg=("F", f + 2))
                    if f == 31 - DSL:
                        P.wait(vm=[("C", 2), ("C", 3)])
                        P("s_barrier")
                    elif f >= self.o.get("xgo", 16) and f & 1 == 0:
                        self.x1load(nx)
                        nx += 1
                    else:
                        for _ in range(2):
                            if fl:
                                P(fl.pop(0))
        assert not fl
        self.nx0 = nx

    sHC, sPM, sPI, sLO, sHI = range(ARR + 4, ARR + 9)
    sPF = [ARR + 9, ARR + 10, ARR + 11]
    sPO = [ARR + 12, ARR + 13, ARR + 14]

    def mlp_addr(self):
        P = self.P
        P(f"v_add_u32 {v(A[2])}, 0x10000, {v(vL16)}")
        P(f"v_add_u32 {v(A[3])}, 0x20000, {v(vL16)}")
        P(f"s_mul_i32 {s(T[0])}, {s(sTT)}, {224*1024}")
        P(f"s_add_u32 {s(T[0])}, {s(T[0])}, {s(sLB)}")
        P(f"s_add_u32 {s(T[0])}, {s(T[0])}, {HP}")
        P(f"s_mul_i32 {s(T[1])}, {s(sJ)}, 14336")
        P(f"s_add_u32 {s(sPUB)}, {s(T[0])}, {s(T[1])}")
        P(f"s_and_b32 {s(T[2])}, {s(sJ)}, 12")
        P(f"s_mul_i32 {s(T[1])}, {s(T[2])}, 14336")
        P(f"s_add_u32 {s(T[0])}, {s(T[0])}, {s(T[1])}")
        P(f"v_add_u32 {v(A[4])}, {s(T[0])}, {v(vL16)}")
        for r in range(4):
            P(f"s_add_u32 {s(T[0])}, {s(sJ)}, {r}")
            P(f"s_and_b32 {s(T[0])}, {s(T[0])}, 3")
            P(f"s_mul_i32 {s(ARR+r)}, {s(T[0])}, 14336")
        P(f"s_lshl2_add_u32 {s(self.sHC)}, {s(T[2])}, {s(sCO)}")
        P(f"s_lshl_b32 {s(T[0])}, {s(sTT)}, 9")
        P(f"s_lshl_b32 {s(T[1])}, {s(sL)}, 6")
        P(f"s_add_u32 {s(T[0])}, {s(T[0])}, {s(T[1])}")
        P(f"s_lshl2_add_u32 {s(self.sPM)}, {s(sJ)}, {s(T[0])}")
        P(f"s_lshl_b32 {s(T[1])}, {s(sTT)}, 16")
        P(f"s_add_u32 {s(T[1])}, {s(T[1])}, {s(sLB)}")
        P(f"s_add_u32 {s(T[1])}, {s(T[1])}, {PART}")
        P(f"s_lshl_b32 {s(T[2])}, {s(sJ)}, 12")
        P(f"s_add_u32 {s(self.sPI)}, {s(T[1])}, {s(T[2])}")
        for n in range(3):
            P(f"s_add_u32 {s(T[2])}, {s(sJ)}, {4*(n+1)}")
            P(f"s_and_b32 {s(T[2])}, {s(T[2])}, 15")
            P(f"s_lshl2_add_u32 {s(self.sPF[n])}, {s(T[2])}, {s(T[0])}")
            P(f"s_add_u32 {s(T[2])}, {s(T[2])}, {n * 1024}")
            P(f"s_lshl_b32 {s(T[2])}, {s(T[2])}, 12")
            P(f"s_add_u32 {s(self.sPO[n])}, {s(T[1])}, {s(T[2])}")
        P(f"s_mov_b32 {s(self.sLO)}, 2")
        P(f"s_mov_b32 {s(self.sHI)}, 4")
        P(f"s_mul_i32 {s(sSB)}, {s(sJ)}, 7168")
        P(f"s_add_u32 {s(sSB)}, {s(sSB)}, {CS}")
        P(f"s_add_u32 {s(sTRIP)}, {s(sSB)}, 4096")
        self.wq_setup()
        for t in self.kw_addr():
            P(t)
        P(f"s_cmp_eq_u32 {s(sL)}, 0")
        P(f"s_cselect_b32 {s(WQ+2)}, {2*MB}, 0")
        P(f"s_cselect_b32 {s(WKV+2)}, 65536, 0")

    def mlp(self):
        P = self.P
        o = self.o
        DSL, BG = o["DSL"], o.get("BG", 1)
        abl = o.get("abl", "")
        sHC, sPF, sPM, sPO, sPI = self.sHC, self.sPF, self.sPM, self.sPO, self.sPI
        BLK = [64, 80, 160, 176]
        WF, ST, EXB, C1, C2, SD, TM = 128, 224, 104, 108, 110, 220, 224
        TB, dsread = self.TB, self.dsread
        ACC = [[112, 240], [BLK[3], BLK[0]], [BLK[1], BLK[2]], [R, R + 16]]
        PBUF = [PK, TM, PK]
        PIN = [BLK[3], TM, BLK[2]]
        SUMP = [112 + k if k < 16 else 224 + k for k in range(32)]
        steps = []
        tile_end = {}

        half_end = {}
        nf = [28]

        def pair(xt, xs, blk, half, z):
            for e in range(2):
                steps.append(dict(f=nf[0], x=xt, xs=xs, acc=blk + 4 * half, z=z, blk=blk))
                nf[0] += 1

        ex_at = {}

        def extra(t, half):
            steps.append(dict(ex=2 * t + half, acc=TB[t] + 4 * half, x=("E", t)))
            ex_at.setdefault(t, len(steps) - 1)

        def ends(t, half):
            half_end[(t, half)] = tile_end[t] = len(steps) - 1
        for n in range(15):
            for k in range(4):
                pair(("X", 4 * n + 3), 4 * n, TB[k >> 1], k & 1, False)
        extra(2, 0)
        for k in range(4):
            extra(k >> 1, k & 1)
            ends(k >> 1, k & 1)
        x_dead = {}
        for t in range(2, 6):
            for half in range(2):
                for n in range(15):
                    pair(None, 4 * n, TB[t], half, False)
                    if n == 9:
                        extra(t + half, half ^ 1)
                        if (t, half) == (5, 1):
                            extra(6, 1)
                ends(t, half)
        for n in range(15):
            for half in range(2):
                pair(None, 4 * n, TB[6], half, False)
                ends(6, half)
            x_dead[n] = len(steps) - 1
        mlp2_start = len(steps)
        h_use = {}
        for n in range(14):
            h_use[n] = len(steps)
            for k in range(8):
                pair(("H", 4 * n + 3), 4 * n, ACC[k >> 2][(k >> 1) & 1], k & 1, n == 0)
        pass_start = {}
        for m in (2, 3):
            pass_start[m] = len(steps)
            for k in range(4):
                for n in range(14):
                    pair(None, 4 * n, ACC[m][k >> 1], k & 1, n == 0 and m == 2)
        assert nf[0] == 896
        N = len(steps)
        fstep = {st["f"]: i for i, st in enumerate(steps) if "f" in st}
        bars = [c for c in range(2, 56) if c == 2 or c % BG == 0 or c >= o.get("cb", 55) or c in o.get("xbar", [9, 11])]
        bar_own = {c: (fstep[16 * c - DSL] - 1 if c > 2 else -1) for c in bars}
        bar_at = {st: c for c, st in bar_own.items()}
        bar_pub = {c: bar_own[max(b for b in bars if b <= c)] for c in range(2, 56)}
        bar_free = {c: bar_own[min(b for b in bars if b >= c + 2)] for c in range(54)}
        last_in = lambda sl, c: max([x for x in range(c) if self.slot_of(x) == sl], default=None)

        nx0 = self.nx0

        def hload(qq):
            t, r = qq >> 3, qq & 7
            if r == 0 and t and t & 1 == 0:
                P(f"v_add_u32 {v(A[4])}, 4096, {v(A[4])}")
            P.vm(f"buffer_load_dwordx4 {a(4*qq,4)}, {v(A[4])}, {srd(WS)}, {s(ARR+(r>>1))} offen offset:{2048*(t&1)+1024*(r&1)} sc1", ("H", qq))

        PG = o.get("PG", 22)

        def off_bar(x):
            while x in bar_at or x - PG in bar_at:
                x += 1
            return x
        flags = o.get("flags", [[2, -56], [4, 56], [5, 112], [6, 156]])
        polls = {t: (off_bar(mlp2_start + at), sHC, (128, 136, 192, 200)[n], 4) for n, (t, at) in enumerate(flags)}
        arrivals = {t: (("hs", t), sHC, polls[t][2], sONE) for t in polls}
        px = o.get("px", [[4, 10, 92, 8, 146], [44, 10, 132, 8, 184], [116, 6, 194, 2, 216]])
        p2s = pass_start[2]
        for n in range(3):
            polls[f"p{n}"] = (off_bar(p2s + px[n][2]), sPM, 256, ("bit", n))
            arrivals[f"p{n}"] = (("ps", n), sPF[n], 256, (sONE, self.sLO, self.sHI)[n])
        PL_AT = [off_bar(p2s + x[4]) for x in px]
        arrived = {}
        ST_AT = o.get("stat", 60)
        KW_AT = [off_bar(pass_start[3] + x) for x in o.get("kw", [50, 80])]

        ops = []
        for x in range(nx0, 60):
            ops.append(dict(dl=8 * (x >> 2) - 1 - 2 * (3 - (x & 3)), av=0, fn=(lambda x=x: self.x1load(x)), k="x"))
        for i in range(4):
            ops.append(dict(dl=ST_AT - 24 + 8 * i, av=0, fn=(lambda i=i: self.stat_load(ST, sSTO, i, "st")), k="s"))
        for u in sorted(range(7), key=ex_at.get):
            ops.append(dict(dl=ex_at[u] - 2, av=max(0, ex_at[u] - 60), k="e", fn=(lambda u=u: P.vm(
                f"buffer_load_dwordx4 {v(EXA+4*u,4)}, {v(vL16)}, {srd(WS)}, {s(sTRIP if u >= 4 else sSB)} offen offset:{1024*(u&3)} sc1", ("E", u)))))
        groups = []
        for c in range(o["npre"], 56):
            prev = last_in(self.slot_of(c), c)
            if "w" not in abl:
                groups.append(dict(dl=bar_pub[c] - (o.get("g0lead", 0) if c < 10 else 0), av=bar_free[prev] + 1 if prev is not None else 0, d=self.grp_wp(c), k="w"))
        for qq in range(56):
            q = qq >> 2
            flag = min(t for t, _ in flags if t >= q >> 1)
            ops.append(dict(dl=h_use[q] - 1 - 2 * (3 - (qq & 3)), av=max(x_dead[q], polls[flag][0]) + 1, fn=(lambda qq=qq: hload(qq)), k="h"))
        if "n" not in abl:
            for g in range(4):
                groups.append(dict(dl=KW_AT[g >> 1] - o.get("kwlead", 10), av=bar_free[last_in(g, 56)] + 1, d=self.grp_wkv(g), k="n"))
            for e in range(8):
                groups.append(dict(dl=N + 100 + (e ^ 4), av=bar_free[last_in(e, 56)] + 1 if e ^ 4 < o.get("nwq", 2) else N + 9,
                                   d=self.grp_wq(e, e < 4 and o.get("nwq", 2) <= 4 and o.get("wrot", 1)), k="n",
                                   need=("kw", 2 * e + 1) if e < 4 else None))
        queues = {k: [x for x in ops if x["k"] == k and k not in abl] for k in "xshe"}
        cur = [None]

        def pick_group(i):
            if cur[0] is None:
                cand = [g for g in groups if g["av"] <= i + 2 and (not g.get("need") or (g["need"] in done and g["need"] not in P.lgq))]
                if cand:
                    cur[0] = min(cand, key=lambda g: g["dl"])
                    groups.remove(cur[0])
            return cur[0]

        items = []

        def item(text, first, deps=(), cost=None, vm=False, mark=None):
            if cost is None:
                cost = 8 if text.startswith(("v_exp", "v_rcp", "v_rsq")) else 4
            items.append(dict(t=text, first=first, deps=list(deps), cost=cost, vm=vm, mark=mark, at=None))
            return items[-1]

        def chain(texts, first, dep=None):
            for t in texts:
                dep = item(t, first, [dep] if dep else [])
            return dep

        def unp(dst, src, k):
            return f"v_and_b32 {v(dst)}, 0xffff0000, {v(src+(k>>1))}" if k & 1 else f"v_lshlrev_b32 {v(dst)}, 16, {v(src+(k>>1))}"
        k1 = -2 * math.sqrt(2 / math.pi) * math.log2(math.e)
        sl = self.stat_sum_list(ST)
        sl += [f"v_add_f32 {v(ST+2)}, {f32(1e-5)}, {v(ST+1)}", f"v_rsq_f32 {v(ST+2)}, {v(ST+2)}",
               f"v_mul_f32 {v(ST+3)}, {v(ST+1)}, {v(ST+2)}", f"v_fmaak_f32 {v(ST+3)}, {v(ST+3)}, {v(ST+2)}, {f32(1e-5)}",
               f"v_rsq_f32 {v(ST+3)}, {v(ST+3)}", f"v_mul_f32 {v(ST+2)}, {v(ST+2)}, {v(ST+3)}",
               f"v_rcp_f32 {v(SD)}, {v(ST+2)}", f"v_mul_f32 {v(C1)}, {f32(k1)}, {v(ST+2)}",
               f"v_mul_f32 {v(C2)}, {v(ST+2)}, {v(ST+2)}", f"v_mul_f32 {v(C2)}, {v(C2)}, {v(C1)}",
               f"v_mul_f32 {v(C2)}, {f32(0.044715)}, {v(C2)}"]
        sl += self.stat_frag_list(EXB, ST, SD, ST + 4)
        for r in (C1, C2, SD):
            sl += self.split_list(r, r + 1)
        chain(sl, ST_AT + 1)["mark"] = "st"

        def hstore(t, th):
            def f():
                if th == 0 and t and t & 1 == 0:
                    P(f"s_add_u32 {s(sPUB)}, {s(sPUB)}, 4096")
                P.vm(f"buffer_store_dwordx4 {v(PK+8*(t&1)+4*th,4)}, {v(vL16)}, {srd(WS)}, {s(sPUB)} offen offset:{2048*(t&1)+1024*th} sc1", ("hs", t))
            return f
        cvt_of = {}
        store_of = {}
        prev_store = None
        for t in range(7):
            b = TB[t]
            cv = {0: [], 1: []}
            for half in range(2):
                st0 = half_end[(t, half)] + 3
                for th in range(2):
                    for pr in range(2 * half, 2 * half + 2):
                        last = []
                        for k in range(2):
                            n = 8 * th + 2 * pr + k
                            e, tm = v(b + n), v(TM + n)
                            last.append(chain([f"v_mul_f32 {tm}, {e}, {e}", f"v_fma_f32 {tm}, {tm}, {v(C2+th)}, {v(C1+th)}",
                                               f"v_mul_f32 {tm}, {tm}, {e}", f"v_exp_f32 {tm}, {tm}",
                                               f"v_fma_f32 {tm}, {tm}, {v(SD+th)}, {v(SD+th)}", f"v_rcp_f32 {tm}, {tm}",
                                               f"v_mul_f32 {tm}, {tm}, {e}"], st0, cvt_of.get(n >> 1)))
                        n = 8 * th + 2 * pr
                        dep = last + ([store_of[(t - 2, th)]] if t >= 2 else [])
                        cvt_of[n >> 1] = item(f"v_cvt_pk_bf16_f32 {v(PK+8*(t&1)+4*th+pr)}, {v(TM+n)}, {v(TM+n+1)}", st0, dep)
                        cv[th].append(cvt_of[n >> 1])
                    if half:
                        prev_store = store_of[(t, th)] = item(hstore(t, th), st0, cv[th] + ([prev_store] if prev_store else []), cost=0, vm=True,
                                                              mark=t if th else None)

            if t == 1:
                for k in range(16):
                    item(f"v_accvgpr_read_b32 {v(TB[6]+k)}, {a(240+k)}", 0, [store_of[(0, 1)]], mark=("t6", k))

        def pstore(n, i):
            return lambda: P.vm(f"buffer_store_dwordx4 {v(PBUF[n]+4*i,4)}, {v(vL16)}, {srd(WS)}, {s(sPO[n])} offen offset:{1024*i} sc1", ("ps", n))

        def pload(n, i):
            def f():
                if i == 0 and n:
                    P(f"s_add_u32 {s(sPI)}, {s(sPI)}, {4 * MB}")
                P.vm(f"buffer_load_dwordx4 {v(PIN[n]+4*i,4)}, {v(vL16)}, {srd(WS)}, {s(sPI)} offen offset:{1024*i} sc1", ("pl", n))
            return f

        def send(n, first, gap):
            cvs = []
            for i in range(4):
                src = ACC[n][i >> 1] + 8 * (i & 1)
                cvs.append([item(f"v_cvt_pk_bf16_f32 {v(PBUF[n]+4*i+k)}, {v(src+2*k)}, {v(src+2*k+1)}", first[0],
                                 mark=("cv", n) if i == 3 and k == 3 else None) for k in range(4)])
            for i in range(4):
                item(pstore(n, i), first[1] + gap * i, cvs[i], cost=0, vm=True, mark=f"p{n}" if i == 3 else None)
        send(0, (p2s + 2, p2s + px[0][0]), px[0][1])
        send(1, (p2s + 2, p2s + px[1][0]), px[1][1])

        def kw_items(h):
            if "n" not in abl:
                for sx in range(4 * h, 4 * h + 4):
                    for m in range(2):
                        for e in range(2):
                            item((lambda sx=sx, m=m, e=e: self.kw_read(sx, m, e)), KW_AT[h] + 1, cost=5, mark=("kw", sx) if m and e else None)
        send(2, (pass_start[3] + 2, p2s + px[2][0]), px[2][1])
        prev = None
        for n in range(3):
            for i in range(4):
                prev = item(pload(n, i), polls[f"p{n}"][0] + 1 + px[n][3] * i, [prev] if prev else [], cost=0, vm=True, mark=("pli", n) if i == 3 else None)
        if o.setdefault("wqpre", 770):
            dep = chain(self.wq_l2_setup(A[6], A[7], T[0]), o["wqpre"] - 12)
            item(lambda: self.wq_l2(A[7], A[6], T[0]), o["wqpre"], [dep], cost=0, vm=True)
        kw_items(0)
        kw_items(1)
        acc_of = [item(unp(SUMP[k], PIN[0], k), PL_AT[0] + 1) for k in range(32)]
        tmp_of = {}
        for k in range(32):
            u = item(unp(104 + (k & 7), PIN[1], k), PL_AT[1] + 1, [tmp_of[k & 7]] if k & 7 in tmp_of else [])
            tmp_of[k & 7] = item(f"v_add_f32 {v(SUMP[k])}, {v(SUMP[k])}, {v(104+(k&7))}", PL_AT[1] + 1, [u, acc_of[k]])

        pending = {}
        done = {}

        def ready(x, i, pos):
            return x["first"] <= i and all(d["at"] is not None and d["at"] < pos for d in x["deps"])

        def emit(x, i, pos):
            x["at"] = pos
            items.remove(x)
            if callable(x["t"]):
                x["t"]()
            elif not ("g" in abl and i > 135):
                P(x["t"])
            if x["mark"] is not None:
                done[x["mark"]] = i
                if x["mark"] in arrivals:
                    pending[x["mark"]] = i

        def fill(i, pos, budget):
            g = pick_group(i)
            while budget >= 4:
                busy = o.get("freesalu", 1) and tile_end[1] < i and 6 not in done
                if g and g["d"][0][0] and not busy:
                    P(g["d"][0][0].pop(0))
                    g["set"] = pos
                    budget -= 4
                    continue
                cand = [x for x in items[:140] if not x["vm"] and x["cost"] <= budget and ready(x, i, pos)]
                if not cand:
                    break
                big = [x for x in cand[:40] if x["cost"] > 4]
                x = big[0] if big else cand[0]
                budget -= x["cost"] & ~3
                emit(x, i, pos)

        assert [c for c in bar_pub if bar_pub[c] == -1] in ([2], [2, 3])
        P.wait(vm=("X", 3), lg=("F", 29))
        self.xstamp("mlp first mfma")
        credit = 0.0
        for i, st in enumerate(steps):
            if i == mlp2_start:
                self.stamp(13)
            if i == pass_start[2]:
                self.stamp(14)
            if st.get("z") and i > 4:
                prev = [t for t in range(7) if TB[t] == st["blk"] and tile_end[t] < i]
                assert not prev or prev[-1] in done, ("accumulator reused before its epilogue", i)
            if "ex" in st:
                assert "st" in done
            if i == ex_at[6]:
                assert all(("t6", k) in done for k in range(16))

            def mf(k):
                if "f" in st:
                    f = st["f"]
                    th, e = ((f >> 1) ^ f) & 1, k ^ (f & 1)
                    d = v(st["acc"] + 8 * th, 4)
                    assert ("F", f | 1) not in P.lgq and st["x"] not in P.vmq
                    P(f"v_mfma_f32_16x16x32_bf16 {d}, {v(WF+4*((f&6)+e),4)}, {a(4*(st['xs']+2*e+th),4)}, {0 if st['z'] and k == 0 else d}")
                else:
                    d = v(st["acc"] + 8 * k, 4)
                    P(f"v_mfma_f32_16x16x16_bf16 {d}, {v(EXA+2*st['ex'],2)}, {v(EXB+2*k,2)}, {d}")
            mf(0)
            if o.get("fine") and o["fine"][0] >= 0:
                f0, fs_ = o["fine"]
                if i >= f0 and (i - f0) % fs_ == 0 and (i - f0) // fs_ < 64:
                    P(f"s_memtime {s(sTM,2)}")
                if i >= f0 and (i - f0) % fs_ == fs_ - 1 and (i - f0) // fs_ < 64:
                    P(f"v_writelane_b32 {v(vSTAMP)}, {s(sTM)}, {(i - f0) // fs_}")
            b1 = 8 if o.get("boost", -10) <= i - mlp2_start < o.get("boostend", 30) and 6 not in done else o["b1"]
            if "f" in st and st["f"] + DSL < 896:
                dsread(st["f"] + DSL)
            else:
                b1 += 4
            fill(i, 2 * i, b1)
            mf(1)
            b2 = o["b2"]
            nxt = steps[i + 1] if i + 1 < N else {}
            want_l = ("F", nxt["f"] | 1) if "f" in nxt else None
            want_v = [nxt.get("x")]
            assert not any(x["dl"] <= i for x in queues["x"] + queues["h"] + queues["e"] + groups + ([cur[0]] if cur[0] else [])), i
            if i in bar_at:
                want_v += [("C", c) for c in bar_pub if bar_pub[c] == i]
            if i == ST_AT:
                assert not queues["s"]
                want_v.append("st")
            if i in KW_AT:
                assert i == KW_AT[0] or ("cv", 2) in done
                want_v.append(("wkv", KW_AT.index(i)))
            if i in PL_AT[:2]:
                assert ("pli", PL_AT.index(i)) in done
                want_v.append(("pl", PL_AT.index(i)))
            waited = P.wait(vm=[x for x in want_v if x], lg=want_l)
            if i in bar_at:
                if "b" not in abl:
                    P("s_barrier")
                continue
            for key, (chk, reg, imm, tgt) in polls.items():
                if i == chk - PG:
                    self.poll_issue(reg, imm)
                if i == chk:
                    assert key in done and key not in pending, (key, i)
                    self.poll_fast(reg, imm, tgt)
            rates = o.get("rates", [0.5, 0.42, 0.42, 0.46, 0.42])
            credit = min(credit + rates[(i > tile_end[1]) + (i >= mlp2_start) + (6 in done) + (i >= p2s)], 2.0)
            did_vm = False
            cand = [x for x in items if x["vm"] and ready(x, i, 2 * i + 1)]
            if cand:
                emit(cand[0], i, 2 * i + 1)
                did_vm = True
            else:
                cand = [q[0] for q in queues.values() if q and q[0]["av"] <= i]
                g = pick_group(i)
                if g and g["av"] <= i:
                    urgent = min([g["dl"]] + [x["dl"] - 8 for x in groups if x["av"] <= i])
                    if not g["d"][0][0] or urgent - i <= o["D"]:
                        cand.append(dict(dl=urgent, k="g"))
                if cand:
                    best = min(cand, key=lambda x: x["dl"])
                    if credit >= 1.0 or best["dl"] - i <= o["D"]:
                        if best["k"] == "g":
                            self.emit_dma(g["d"].pop(0))
                            if not g["d"]:
                                cur[0] = None
                        else:
                            queues[best["k"]].pop(0)
                            best["fn"]()
                        did_vm = True
            if did_vm:
                credit = max(credit - 1.0, -1.0)
                b2 -= o.get("vmcost", 8)
            for k in list(pending):
                tag, reg, imm, data = arrivals[k]
                if tag not in P.vmq or i - pending[k] >= o.get("arrw", 26):
                    P.wait(vm=tag)
                    self.arrive(reg, imm, data)
                    del pending[k]
                    arrived[k] = i
            g = pick_group(i)
            if o.get("freesalu", 1) and not waited and P.ins[-1].kind == "mfma" and g and g["d"][0][0]:
                P(g["d"][0][0].pop(0))
            if i in o.get("cw", [20, 230, 430]) :
                self.code_warm(o.get("cwoff", 6144))
            fill(i, 2 * i + 1, b2)
        assert not pending and not any(queues.values()) and all(g["k"] == "n" for g in groups)
        self.left = (cur[0]["d"] if cur[0] else []) + [x for g in groups for x in g["d"]]
        self.info = dict(done={k: x for k, x in done.items() if not isinstance(k, tuple) or k[1] in (3, 7)}, tile_end=tile_end, rest=len(items), arrived=arrived,
                         mlp2_start=mlp2_start, passes=pass_start, N=N, left=len(self.left), polls={k: x[0] for k, x in polls.items()})
        P(f"s_add_u32 {s(T[7])}, {s(sLB)}, {LSTRIDE}")
        self.pub_offsets(XP, STX, T[7])
        for x in list(items):
            x["t"]() if callable(x["t"]) else P(x["t"])
        P.wait(lg=[("kw", sx) for sx in range(8)])
        self.stamp(15)
        P(f"s_mov_b32 {s(T[1])}, 0x00003f80")
        P(f"s_mov_b32 {s(T[2])}, 0x3f800000")
        for i in range(32):
            P(f"v_add_f32 {v(R+i)}, {v(R+i)}, {v(SUMP[i])}")
        P.wait(vm=("pl", 2))
        for i in range(32):
            P(f"v_dot2_f32_bf16 {v(R+i)}, {v(PIN[2]+(i>>1))}, {s(T[1+(i&1)])}, {v(R+i)}")
        self.pack_R()

    def build(self):
        P = self.P
        self.prologue()
        P("L_layer:")
        self.maybe_stop("p0")
        self.p1()
        self.maybe_stop("p1")
        self.p2()
        self.maybe_stop("p2")
        self.p3()
        self.maybe_stop("p3")
        self.mlp()
        P(f"s_cmp_lg_u32 {s(sL)}, 0")
        P("s_cbranch_scc1 L_out")
        self.stats_and_store(sPUB, sSTO)
        self.xstamp("x2 stores issued")
        nl = self.o.get("nleft", 8)
        for x in self.left[:nl]:
            self.emit_dma(x)
        P(f"s_mov_b32 {s(sL)}, 1")
        P(f"s_add_u32 {s(sLB)}, {s(sLB)}, {LSTRIDE}")
        P(f"s_add_u32 {s(sCO)}, {s(sCO)}, 4")
        P(f"s_add_u32 {s(sCT)}, {s(sCT)}, 4")
        mark = len(P.ins)
        self.p1_setup("b")
        setup = P.ins[mark:]
        del P.ins[mark:]
        n0 = self.o.get("nset", 60)
        P.ins += setup[:n0]
        self.xstamp("x2 setup done")
        P.wait(vm="pub")
        self.xstamp("x2 drained")
        self.arrive(sCO, 0)
        npl = max(nl, len(self.left) - self.o.get("npl", 4))
        for x in self.left[nl:npl]:
            self.emit_dma(x)
        self.poll_issue(sCO, 0)
        for x in self.left[npl:]:
            self.emit_dma(x)
        P.ins += setup[n0:]
        self.stamp(0)
        P("s_branch L_layer")
        self.pack_side()
        self.slow_polls()
        P("L_fallback:")
        self.fallback()
        P("s_branch L_att_fin")
        P("L_out:")
        self.row_offsets()
        for t in self.rowswap_list(PK, 4):
            P(t)
        for i in range(4):
            P(f"buffer_store_dwordx4 {v(PK+4*i,4)}, {v(vROW)}, {srd(OUT)}, {s((sPUB,sSTO)[i&1])} offen offset:{64*(i>>1)}" + self.o.get("outfl", " sc1"))
        P("L_fin:")
        if self.stamps:
            P(f"s_mov_b32 {s(sL)}, 2")
            P("s_waitcnt vmcnt(0)")
            self.stamp(0)
            P(f"s_lshl2_add_u32 {s(T[0])}, s2, {s(sW)}")
            P(f"s_lshl_b32 {s(T[0])}, {s(T[0])}, 8")
            P(f"s_add_u32 {s(T[0])}, {s(T[0])}, {STAMP}")
            P(f"buffer_store_dword {v(vSTAMP)}, {v(vL4)}, {srd(WS)}, {s(T[0])} offen")
            if self.o.get("probe") is not None:
                lane, thr, thr2 = self.o["probe"]
                P(f"s_lshl2_add_u32 {s(T[0])}, s2, {s(sW)}")
                P(f"s_cmp_lg_u32 {s(T[0])}, 0")
                P("s_cbranch_scc1 L_end")
                P(f"v_readlane_b32 {s(T[1])}, {v(vSTAMP)}, 0")
                P(f"v_readlane_b32 {s(T[2])}, {v(vSTAMP)}, {lane}")
                P(f"s_sub_u32 {s(T[2])}, {s(T[2])}, {s(T[1])}")
                P(f"s_cmp_lt_u32 {s(T[2])}, {thr}")
                P("s_cbranch_scc1 L_end")
                P(f"s_cmp_gt_u32 {s(T[2])}, {thr2}")
                P("s_cbranch_scc1 L_end")
                P(f"v_mov_b32 {v(A[1])}, 0")
                for n, ln in enumerate([1, 3, 6, 7, 13, 15, 23, 32]):
                    P(f"v_readlane_b32 {s(T[3])}, {v(vSTAMP)}, {ln}")
                    P(f"s_sub_u32 {s(T[3])}, {s(T[3])}, {s(T[1])}")
                    P(f"v_cvt_f32_u32 {v(A[2])}, {s(T[3])}")
                    P(f"buffer_store_short_d16_hi {v(A[2])}, {v(A[1])}, {srd(OUT)}, 0 offen offset:{2*n}")
            if self.o.get("dbgstamp") is not None:
                sel = [1, 3, 4, 6, 7, 10, 13, 15, 20, 22, 23, 26, 29, 31, 32]
                P(f"s_lshl2_add_u32 {s(T[0])}, s2, {s(sW)}")
                P(f"s_cmp_lg_u32 {s(T[0])}, {self.o['dbgstamp']}")
                P("s_cbranch_scc1 L_end")
                P(f"v_readlane_b32 {s(T[1])}, {v(vSTAMP)}, 0")
                P(f"v_mov_b32 {v(A[1])}, 0")
                for n, lane in enumerate(sel):
                    P(f"v_readlane_b32 {s(T[2])}, {v(vSTAMP)}, {lane}")
                    P(f"s_sub_u32 {s(T[2])}, {s(T[2])}, {s(T[1])}")
                    P(f"v_mov_b32 {v(A[2])}, {s(T[2])}")
                    P(f"buffer_store_dword {v(A[2])}, {v(A[1])}, {srd(DBG)}, 0 offen offset:{4+4*n}")
        if self.stop and len(self.stop) > 2:
            P(f"s_lshl2_add_u32 {s(T[0])}, s2, {s(sW)}")
            P(f"s_lshl_b32 {s(T[0])}, {s(T[0])}, 12")
            for i in range(4):
                P(f"buffer_store_dwordx4 {v(self.stop[2]+4*i,4)}, {v(vL16)}, {srd(OUT)}, {s(T[0])} offen offset:{1024*i}")
        P("L_end:")
        P("s_endpgm")
        body, nops = P.finish()
        import re
        if self.o.get("wfl") is not None:
            body = re.sub(r"(v1, s\[4:7\], s90 offen offset:\d+) sc1 lds", r"\1" + self.o["wfl"] + " lds", body)
        if self.o.get("ifl") is not None:
            body = re.sub(r"(s\[(12:15|16:19|20:23|24:27)\], s\d+ offen( offset:\d+)?) lds", r"\1" + self.o["ifl"] + " lds", body)
        if self.o.get("xfl") is not None:
            body = re.sub(r"(buffer_load_dwordx4 a\[.*) sc1", r"\1" + self.o["xfl"], body)
        if self.o.get("sfl") is not None:
            body = re.sub(r"(buffer_store_dwordx4 v\[.*s\[4:7\].*) sc1", r"\1" + self.o["sfl"], body)
        self.nops = nops
        ref = open(REF).read().split("\n")
        head = [x for x in ref if x.startswith(";") and "@launch" not in x and "Override" not in x and "grid=ceil" not in x]
        txt = "\n".join(head) + "\n; @launch grid=(256,1,1) block=(256,1,1) lds=163840\n"
        txt += f""".amdgcn_target "amdgcn-amd-amdhsa--gfx950"
.text
.globl {NAME}
.p2align 8
.type {NAME},@function
{NAME}:
{body}.section .rodata,"a"
.p2align 6
.amdhsa_kernel {NAME}
  .amdhsa_next_free_vgpr 512
  .amdhsa_next_free_sgpr 102
  .amdhsa_accum_offset 256
  .amdhsa_group_segment_fixed_size 0
  .amdhsa_kernarg_size 104
  .amdhsa_user_sgpr_count 2
  .amdhsa_user_sgpr_kernarg_segment_ptr 1
  .amdhsa_system_sgpr_workgroup_id_x 1
.end_amdhsa_kernel
"""
        return txt


if __name__ == "__main__":
    import json
    g = Gen(**(json.loads(sys.argv[2]) if len(sys.argv) > 2 else {}))
    txt = g.build()
    out = sys.argv[1] if len(sys.argv) > 1 else "k.s"
    open(out, "w").write(txt)
    print("nops", g.nops, "bytes", len(txt), g.info)
```
